```python
import torch

def _softmax(x, axis=-1):
    return torch.softmax(x, dim=axis)
def _gelu(x):
    return torch.nn.functional.gelu(x, approximate="tanh")
def _silu(x):
    return torch.nn.functional.silu(x)
def _sigmoid(x):
    return torch.sigmoid(x)
def _layernorm(x, axis=-1, eps=1e-5):
    m = x.mean(dim=axis, keepdim=True)
    v = x.var(dim=axis, keepdim=True, unbiased=False)
    return (x - m) / torch.sqrt(v + eps)
def _scatter_add(tgt, idx, src, axis=0):
    return tgt.clone().index_add_(axis, idx, src)
def _segment_sum(src, seg, n):
    out = torch.zeros((n,) + src.shape[1:], dtype=src.dtype)
    return out.index_add_(0, seg, src)
def _pad(x, pw):
    flat = tuple(v for pair in reversed(pw) for v in pair)
    return torch.nn.functional.pad(x, flat)

kernel_name = 'standalone__self_sup_conv_stem_wavlm__speech'

def setup_inputs():

    _w = (lambda a: (lambda t: t.to(torch.bfloat16) if t.is_floating_point() else t)(torch.as_tensor(a)))
    B, T, D, K = 2, 16000, 512, 31
    scale = (K * D) ** -0.5
    return {
        "x": _w((lambda *s: torch.randn(*s, dtype=torch.bfloat16) * 0.05)(B, T, D)),
        "w": _w((lambda *s: torch.randn(*s, dtype=torch.bfloat16) * 0.05)(K, D, D) * scale),
        "gn_gamma": _w((lambda *s: torch.randn(*s, dtype=torch.bfloat16) * 0.05)(D) * 0.1 + 1.0),
        "gn_beta": _w((lambda *s: torch.randn(*s, dtype=torch.bfloat16) * 0.05)(D) * 0.1),
    }

def reference(x, w, gn_gamma, gn_beta):
    B, T, D = x.shape
    K = w.shape[0]
    s = 2
    L = (T - K) // s + 1
    h = torch.einsum('blc,cd->bld', x[:, 0:s * L:s, :], w[0])
    for i in range(1, K):
        h = h + torch.einsum('blc,cd->bld', x[:, i:i + s * L:s, :], w[i])
    mu = torch.einsum('bld->bd', h)[:, None, :] / L
    var = torch.einsum('bld->bd', (h - mu) ** 2)[:, None, :] / L
    h = (h - mu) / torch.sqrt(var + 1e-5)
    h = h * gn_gamma[None, None, :] + gn_beta[None, None, :]
    return _gelu(h)
```

```python
from gen import *
import gen

SB = 37888
BOFF = 21504
NBUF = 4

def k2(a, O, OPT):
    WSTR = O['WSTR']
    a.raw(".p2align 8")
    a.raw(".type k2_gemm_kernel,@function")
    a.lab("k2_gemm_kernel")
    a("s_cmp_ge_u32 s2, 256")
    a("s_cbranch_scc1 K2_END")
    a("s_load_dwordx2 s[4:5], s[0:1], 48")
    a("v_lshrrev_b32 v1, 6, v0")
    a("v_and_b32 v2, 63, v0")
    a("v_readfirstlane_b32 s3, v1")
    a("s_and_b32 s6, s2, 7")
    a("s_lshl_b32 s6, s6, 2")
    a("s_lshr_b32 s7, s2, 6")
    a("s_add_u32 s6, s6, s7")
    a("s_lshr_b32 s7, s2, 3")
    a("s_and_b32 s7, s7, 7")
    a("s_lshr_b32 s20, s7, 2")
    a("s_and_b32 s21, s7, 3")
    a("s_lshl_b32 s22, s6, 1")
    a("s_add_u32 s22, s22, s20")
    a("s_lshl_b32 s23, s6, 2")
    a("s_add_u32 s23, s23, s21")
    a(f"s_mul_i32 s24, s22, {XFB}")
    a(f"s_mul_i32 s25, s23, {WSTR}")
    a(f"s_add_u32 s25, s25, {O['WT']}")
    a(f"s_mul_i32 s26, s22, {YFB}")
    a(f"s_add_u32 s26, s26, {O['YT']}")
    if O['XT']:
        a(f"s_add_u32 s24, s24, {O['XT']}")
    a("s_waitcnt lgkmcnt(0)")
    srd(a, 8, 4, "s24", XFB)
    srd(a, 12, 4, "s25", 524288)
    srd(a, 16, 4, "s26", YFB)
    a("v_and_b32 v3, 15, v2")
    a("v_lshrrev_b32 v4, 4, v2")
    a("v_lshlrev_b32 v1, 4, v2")
    a("v_lshrrev_b32 v5, 1, v3")
    a("v_xor_b32 v5, v5, v4")
    a("v_lshlrev_b32 v5, 4, v5")
    a("v_lshl_add_u32 v8, v3, 7, v5")
    a("v_lshrrev_b32 v5, 2, v3")
    a("v_lshl_add_u32 v6, v4, 3, v5")
    a("v_lshlrev_b32 v6, 9, v6")
    a("v_and_b32 v7, 1, v4")
    a("v_lshl_or_b32 v5, v7, 2, v5")
    a("s_and_b32 s27, s3, 3")
    a("s_lshl_b32 s28, s27, 1")
    a("v_xor_b32 v5, s28, v5")
    a("v_lshl_add_u32 v6, v5, 5, v6")
    a("v_and_b32 v5, 3, v3")
    a("v_lshl_add_u32 v6, v5, 3, v6")
    a(f"v_add_u32 v9, {BOFF}, v6")
    a("s_lshl_b32 s28, s21, 7")
    a("s_lshl_b32 s29, s27, 5")
    a("s_add_u32 s28, s28, s29")
    a("v_add_u32 v5, s28, v3")
    a("v_lshlrev_b32 v5, 2, v5")
    a("v_lshl_add_u32 v10, v4, 13, v5")
    ACC = 128
    for r in range(96):
        a(f"v_mov_b32 v{ACC+r}, 0")
    a("s_cmp_ge_u32 s3, 4")
    a("s_cbranch_scc1 K2_MH1")
    k2_wave(a, 0, O, OPT)
    a.lab("K2_MH1")
    k2_wave(a, 1, O, OPT)
    a.lab("K2_END")
    a("s_endpgm")

def k2_wave(a, mh, O, OPT):
    nrb = 6 if mh == 0 else 5
    p = 3 if mh == 0 else 2
    rb0 = 0 if mh == 0 else 6
    ACC = 128
    AF = 16
    BS = [64, 88]
    vAr, vAi, vB0, vB1 = 11, 12, 13, 14
    tag = f"K2M{mh}"
    if mh == 0:
        a("s_lshl_b32 s30, s27, 12")
        a(f"s_add_u32 s32, s30, {BOFF}")
        a("s_lshl_b32 s31, s27, 8")
        a("s_add_u32 s31, s31, 20480")
        a("s_mov_b32 s33, s31")
        strA, strB = 16384, XBLK
    else:
        a("s_mul_i32 s30, s27, 5120")
        a("s_mov_b32 s32, s30")
        a("s_add_u32 s31, s30, 4096")
        a("s_mov_b32 s33, s31")
        strA, strB = XBLK, XBLK
    srdM = "s[12:15]" if mh == 0 else "s[8:11]"

    def dma_list(sbuf):
        g = []
        g.append([f"s_add_u32 m0, s{sbuf}, s32", "s_nop 0", f"buffer_load_dwordx4 v1, {srdM}, s30 offen lds"])
        for k in range(1, 4):
            g.append([f"buffer_load_dwordx4 v1, {srdM}, s30 offen offset:{1024*k} lds"])
        if mh == 0:
            g.append([f"s_add_u32 m0, s{sbuf}, s33", "s_mov_b64 exec, 0xffff",
                      "buffer_load_dwordx4 v1, s[8:11], s31 offen lds", "s_mov_b64 exec, -1"])
        else:
            g.append([f"s_add_u32 m0, s{sbuf}, s33", "s_nop 0",
                      "buffer_load_dwordx4 v1, s[8:11], s31 offen lds"])
        g.append([f"s_add_u32 s30, s30, {strA}", f"s_add_u32 s31, s31, {strB}"])
        return g

    def a_reads(rb):
        off = (rb0 + rb) * 2048
        return [f"ds_read_b128 v[{AF+8*rb}:{AF+8*rb+3}], v{vAr} offset:{off}",
                f"ds_read_b128 v[{AF+8*rb+4}:{AF+8*rb+7}], v{vAi} offset:{off}"]
    def b_reads(B):
        r = []
        for cb, vb in ((0, vB0), (1, vB1)):
            for ri in range(2):
                d = B + 12 * cb + 4 * ri
                for t in range(2):
                    r.append(f"ds_read_b64_tr_b16 v[{d+2*t}:{d+2*t+1}], v{vb} offset:{ri*256+t*2048}")
        return r
    def b_xor(B):
        return [f"v_xor_b32 v{B+12*cb+8+q}, s34, v{B+12*cb+4+q}" for cb in range(2) for q in range(4)]
    def addr_upd(sbuf):
        return [f"v_add_u32 v{vAr}, s{sbuf}, v8", f"v_add_u32 v{vB0}, s{sbuf}, v9",
                f"v_xor_b32 v{vAi}, 64, v{vAr}", f"v_xor_b32 v{vB1}, 32, v{vB0}"]
    def mfmas(rb, B):
        Ar, Ai = AF + 8 * rb, AF + 8 * rb + 4
        def acc(cb, ri): return ACC + ((rb * 2 + cb) * 2 + ri) * 4
        def m(d, x, y): return f"v_mfma_f32_16x16x32_bf16 v[{d}:{d+3}], v[{x}:{x+3}], v[{y}:{y+3}], v[{d}:{d+3}]"
        Wr = lambda cb: B + 12 * cb
        Wi = lambda cb: B + 12 * cb + 4
        nWi = lambda cb: B + 12 * cb + 8
        return [m(acc(0,0), Ar, Wr(0)), m(acc(0,1), Ar, Wi(0)), m(acc(1,0), Ar, Wr(1)), m(acc(1,1), Ar, Wi(1)),
                m(acc(0,0), Ai, nWi(0)), m(acc(0,1), Ai, Wr(0)), m(acc(1,0), Ai, nWi(1)), m(acc(1,1), Ai, Wr(1))]

    a("s_mov_b32 s34, 0x80008000")
    a("s_mov_b32 s35, 0")
    for st in range(NBUF):
        for grp in dma_list(35):
            for ins in grp: a(ins)
        a(f"s_add_u32 s35, s35, {SB}")
    a("s_mov_b32 s35, 0")
    a(f"s_mov_b32 s36, {SB}")
    a("s_mov_b32 s37, 0")
    for ins in addr_upd(35): a(ins)
    a("s_waitcnt vmcnt(15)")
    a("s_barrier")
    for ins in b_reads(BS[0]): a(ins)
    for rb in range(nrb - 1):
        for ins in a_reads(rb): a(ins)
        if rb == 1:
            a("s_waitcnt lgkmcnt(4)")
            for ins in b_xor(BS[0]): a(ins)
    a.lab(f"{tag}_LOOP")
    for half in range(2):
        Bc, Bn = BS[half], BS[1 - half]
        a(f"s_waitcnt lgkmcnt({(nrb-1-p)*2})")
        side = {0: [a_reads(nrb-1)[0]], 1: [a_reads(nrb-1)[1]]}
        k = 0
        for rb in range(p):
            for ins in mfmas(rb, Bc):
                a(ins)
                for s_ in side.get(k, []): a(s_)
                k += 1
        a("s_waitcnt vmcnt(10) lgkmcnt(0)")
        a("s_barrier")
        nslot = (nrb - p) * 8
        side = {i: [] for i in range(nslot)}
        au = addr_upd(36)
        side[0] += au[:2]; side[1] += au[2:]
        br = b_reads(Bn)
        for i in range(8): side[2 + i // 2].append(br[i])
        slot = 6
        for rb in range(p):
            side[slot] += a_reads(rb); slot += 1
        slot = max(slot, 8)
        side[slot] += a_reads(p); nA_after_B = 2 * (p + 1)
        slot += 1
        dl = dma_list(35)
        dslot = slot
        for grp in dl:
            side[min(dslot, nslot - 1)] += grp
            dslot += 1
        xs = max(16, dslot - 1) if nslot > 16 else nslot - 5
        xs = 16
        side[xs].append(f"s_waitcnt lgkmcnt({nA_after_B})")
        xr = b_xor(Bn)
        for i in range(8): side[xs + i // 2].append(xr[i])
        for rb in range(p + 1, nrb - 1):
            sl = (rb - p + 1) * 8
            side[max(sl, xs + 4)] += a_reads(rb)
        side[nslot - 1] += ["s_mov_b32 s35, s36", f"s_add_u32 s36, s36, {SB}",
                            f"s_cmp_eq_u32 s36, {NBUF*SB}", "s_cselect_b32 s36, 0, s36"]
        k = 0
        for rb in range(p, nrb):
            for ins in mfmas(rb, Bc):
                a(ins)
                for s_ in side[k]: a(s_)
                k += 1
    a("s_add_u32 s37, s37, 1")
    a("s_cmp_lt_u32 s37, 16")
    a(f"s_cbranch_scc1 {tag}_LOOP")
    a("s_nop 7")
    a("s_nop 1")
    n = 0
    for rb in range(nrb):
        for i in range(4):
            if i % 2 == 0:
                a(f"s_mov_b32 s38, {(16*(rb0+rb)+i)*2048}")
            for cb in range(2):
                t = 16 + (n % 8); n += 1
                yr = ACC + ((rb * 2 + cb) * 2 + 0) * 4 + i
                yi = ACC + ((rb * 2 + cb) * 2 + 1) * 4 + i
                a(f"v_cvt_pk_bf16_f32 v{t}, v{yr}, v{yi}")
                a(f"buffer_store_dword v{t}, v10, s[16:19], s38 offen offset:{(i&1)*2048+cb*64}")
    a("s_endpgm")

def k34(a, O, OPT, final):
    name = "k4_out_kernel" if final else "k3_stats_kernel"
    tag = "K4" if final else "K3"
    a.raw(".p2align 8")
    a.raw(f".type {name},@function")
    a.lab(name)
    a("s_cmp_ge_u32 s2, 256")
    a(f"s_cbranch_scc1 {tag}_END")
    a("s_load_dwordx2 s[4:5], s[0:1], 48")
    if final:
        a("s_load_dwordx4 s[40:43], s[0:1], 16")
        a("s_load_dwordx2 s[44:45], s[0:1], 32")
    a("v_lshrrev_b32 v1, 6, v0")
    a("v_and_b32 v2, 63, v0")
    a("v_readfirstlane_b32 s3, v1")
    a("s_and_b32 s6, s2, 7")
    a("s_lshr_b32 s7, s2, 3")
    a("s_lshr_b32 s20, s6, 2")
    a("s_and_b32 s21, s6, 3")
    a("s_mul_i32 s22, s7, 6")
    a("s_mul_i32 s23, s7, 5")
    a("s_add_u32 s23, s23, 7")
    a("s_cmp_lt_u32 s7, 7")
    a("s_cselect_b32 s22, s22, s23")
    a("s_cselect_b32 s23, 6, 5")
    a("s_add_u32 s22, s22, s3")
    a("v_and_b32 v3, 15, v2")
    a("v_lshrrev_b32 v4, 4, v2")
    a("v_lshlrev_b32 v5, 4, v2")
    a("s_waitcnt lgkmcnt(0)")
    srd(a, 8, 4, O['YT'], YT_SIZE)
    srd(a, 12, 4, O['ST'], 256 * 1024)
    LB = 16
    GF = 80
    ACC = 128
    a(f"s_mov_b32 s24, {4*2*YFB}")
    a("v_mul_lo_u32 v6, v4, s24")
    a("v_lshl_add_u32 v6, v3, 4, v6")
    a(f"s_mul_i32 s25, s20, {NT}")
    a("s_add_u32 s25, s25, s22")
    a("s_lshl_b32 s25, s25, 11")
    a("s_lshl_b32 s24, s21, 9")
    a("s_add_u32 s25, s25, s24")
    a("s_cmp_lt_u32 s3, s23")
    a(f"s_cbranch_scc0 {tag}_NOLOAD")
    for ks in range(2):
        for r in range(4):
            for u in range(2):
                d = LB + ((ks * 2 + u) * 4 + r) * 4
                a(f"buffer_load_dwordx4 v[{d}:{d+3}], v6, s[8:11], s25 offen offset:{u*256}")
            if not (ks == 1 and r == 3):
                a(f"s_add_u32 s25, s25, {2*YFB if r < 3 else (16-3)*2*YFB}")
    a.lab(f"{tag}_NOLOAD")
    if final:
        a("v_cmp_gt_u32 vcc, 256, v0")
        a("s_and_saveexec_b64 s[26:27], vcc")
        a(f"s_cbranch_execz {tag}_NOPART")
        a("v_lshlrev_b32 v7, 2, v0")
        a("s_lshl_b32 s24, s6, 15")
        for gg in range(32):
            a(f"buffer_load_dword v{ACC+gg}, v7, s[12:15], s24 offen offset:{(gg&3)*1024}")
            if gg & 3 == 3 and gg < 31:
                a("s_add_u32 s24, s24, 4096")
        a.lab(f"{tag}_NOPART")
        a("s_mov_b64 exec, s[26:27]")
    a("s_lshr_b32 s28, s3, 1")
    a("s_and_b32 s29, s3, 1")
    a("s_lshl_b32 s30, s28, 4")
    a("v_add_u32 v8, s30, v3")
    a("s_lshl_b32 s30, s29, 5")
    a("s_add_u32 s30, s30, 1")
    a("v_lshlrev_b32 v9, 3, v4")
    a("v_add_u32 v9, s30, v9")
    a("v_mul_u32_u24 v9, v8, v9")
    a("v_lshlrev_b32 v8, 1, v8")
    T = 224
    for e in range(8):
        a(f"v_mad_u32_u24 v{T+e}, v8, {e>>1}, v9")
        if e & 1:
            a(f"v_add_u32 v{T+e}, 32, v{T+e}")
    trig_core(a, T, 232, 236, 240, scale="0x3d000000")
    a("s_lshl_b32 s30, s3, 11")
    a("v_add_u32 v10, s30, v5")
    a("ds_write_b128 v10, v[232:235]")
    a("ds_write_b128 v10, v[236:239] offset:1024")
    SL = 12288
    if final:
        a("s_and_saveexec_b64 s[26:27], vcc")
        a(f"s_cbranch_execz {tag}_NOPART2")
        nw = 16
        a("s_waitcnt vmcnt(0)")
        for st in (16, 8, 4, 2, 1):
            for i in range(st):
                a(f"v_add_f32 v{ACC+i}, v{ACC+i}, v{ACC+st+i}")
        a("v_lshlrev_b32 v7, 2, v0")
        a(f"ds_write_b32 v7, v{ACC} offset:{SL}")
        a.lab(f"{tag}_NOPART2")
        a("s_mov_b64 exec, s[26:27]")
    a("s_waitcnt lgkmcnt(0)")
    a("s_barrier")
    if final:
        a("v_cmp_gt_u32 vcc, 128, v0")
        a("s_and_saveexec_b64 s[26:27], vcc")
        a(f"s_cbranch_execz {tag}_NOAB")
        srd(a, 16, 40, None, 1024)
        srd(a, 28, 42, None, 1024)
        a("s_lshl_b32 s24, s21, 8")
        a("v_lshlrev_b32 v7, 1, v0")
        a("buffer_load_ushort v8, v7, s[16:19], s24 offen")
        a("buffer_load_ushort v9, v7, s[28:31], s24 offen")
        a("v_lshlrev_b32 v7, 2, v0")
        a(f"ds_read_b32 v11, v7 offset:{SL}")
        a(f"ds_read_b32 v12, v7 offset:{SL+512}")
        a("s_waitcnt lgkmcnt(0)")
        a(f"v_mul_f32 v11, {hexf(1.0/L)}, v11")
        a(f"v_mul_f32 v12, {hexf(1.0/L)}, v12")
        a("v_fma_f32 v12, -v11, v11, v12")
        a("v_max_f32 v12, 0, v12")
        a(f"v_add_f32 v12, {hexf(1e-5)}, v12")
        a("v_sqrt_f32 v12, v12")
        a("s_nop 0")
        a("v_rcp_f32 v12, v12")
        a("s_waitcnt vmcnt(0)")
        a("v_lshlrev_b32 v8, 16, v8")
        a("v_lshlrev_b32 v9, 16, v9")
        a("v_mul_f32 v8, v8, v12")
        a("v_fma_f32 v9, -v11, v8, v9")
        a(f"ds_write_b32 v7, v8 offset:{SL+1024}")
        a(f"ds_write_b32 v7, v9 offset:{SL+1536}")
        a.lab(f"{tag}_NOAB")
        a("s_mov_b64 exec, s[26:27]")
        a("s_waitcnt lgkmcnt(0)")
        a("s_barrier")
    a("s_cmp_lt_u32 s3, s23")
    if final:
        a(f"s_cbranch_scc0 {tag}_END")
    else:
        a(f"s_cbranch_scc0 {tag}_IDLE")
    for fr in range(12):
        a(f"ds_read_b128 v[{GF+4*fr}:{GF+4*fr+3}], v5 offset:{fr*1024}")
    if final:
        a("v_lshlrev_b32 v7, 4, v3")
        for u in range(2):
            a(f"ds_read_b128 v[{224+4*u}:{227+4*u}], v7 offset:{SL+1024+u*256}")
            a(f"ds_read_b128 v[{232+4*u}:{235+4*u}], v7 offset:{SL+1536+u*256}")
    a("s_waitcnt vmcnt(0)")
    for blk in range(4):
        b0 = LB + blk * 16
        for r in range(4):
            for i in range(r + 1, 4):
                a(f"v_swap_b32 v{b0+4*r+i}, v{b0+4*i+r}")
    a("s_waitcnt lgkmcnt(0)")
    if not final:
        a(f"s_mul_i32 s24, s22, {V}")
        a(f"s_sub_u32 s24, {L}, s24")
        for rb in range(3):
            a(f"v_add_u32 v7, {16*rb}, v3")
            a("v_cmp_gt_u32 vcc, s24, v7")
            a("s_nop 1")
            for q in range(16):
                r = GF + rb * 16 + q
                a(f"v_cndmask_b32 v{r}, 0, v{r}, vcc")
    a("s_nop 1")
    for rb in range(3):
        for ks in range(2):
            for hl in range(2):
                G = GF + ((rb * 2 + ks) * 2 + hl) * 4
                for u in range(2):
                    for i in range(4):
                        d = ACC + ((rb * 2 + u) * 4 + i) * 4
                        Bq = LB + ((ks * 2 + u) * 4 + i) * 4
                        c = "0" if (ks == 0 and hl == 0) else f"v[{d}:{d+3}]"
                        a(f"v_mfma_f32_16x16x32_bf16 v[{d}:{d+3}], v[{G}:{G+3}], v[{Bq}:{Bq+3}], {c}")
    a("s_nop 7")
    if not final:
        for u in range(2):
            for i in range(4):
                s1, s2 = 16 + u * 4 + i, 24 + u * 4 + i
                first = True
                for rb in range(3):
                    for r in range(4):
                        x = ACC + ((rb * 2 + u) * 4 + i) * 4 + r
                        if first:
                            a(f"v_mov_b32 v{s1}, v{x}")
                            a(f"v_mul_f32 v{s2}, v{x}, v{x}")
                            first = False
                        else:
                            a(f"v_add_f32 v{s1}, v{s1}, v{x}")
                            a(f"v_fmac_f32 v{s2}, v{x}, v{x}")
        a(f"s_branch {tag}_WR")
        a.lab(f"{tag}_IDLE")
        for r in range(16):
            a(f"v_mov_b32 v{16+r}, 0")
        a.lab(f"{tag}_WR")
        a("s_lshl_b32 s24, s3, 12")
        a("v_lshlrev_b32 v7, 10, v4")
        a("v_lshl_add_u32 v7, v3, 4, v7")
        a("v_add_u32 v7, s24, v7")
        for wh in range(2):
            for u in range(2):
                a(f"ds_write_b128 v7, v[{16+8*wh+4*u}:{19+8*wh+4*u}] offset:{SL+wh*512+u*256}")
        a("s_waitcnt lgkmcnt(0)")
        a("s_barrier")
        a("v_cmp_gt_u32 vcc, 256, v0")
        a("s_and_saveexec_b64 s[26:27], vcc")
        a(f"s_cbranch_execz {tag}_END")
        a("v_lshlrev_b32 v7, 2, v0")
        for k in range(24):
            a(f"ds_read_b32 v{32+k}, v7 offset:{SL+k*1024}")
            if k == 11:
                a("s_waitcnt lgkmcnt(0)")
        a("s_waitcnt lgkmcnt(0)")
        for k in range(1, 24):
            a(f"v_add_f32 v32, v32, v{32+k}")
        a("s_lshl_b32 s24, s6, 5")
        a("s_add_u32 s24, s24, s7")
        a("s_lshl_b32 s24, s24, 10")
        a("buffer_store_dword v32, v7, s[12:15], s24 offen")
    else:
        a(f"s_mul_i32 s24, s20, {L*1024}")
        srd(a, 16, 44, "s24", L * 1024)
        a("v_lshlrev_b32 v7, 12, v4")
        a("v_lshl_add_u32 v7, v3, 3, v7")
        a("s_lshl_b32 s24, s21, 8")
        a("v_add_u32 v7, s24, v7")
        a(f"s_mul_i32 s25, s22, {V*1024}")
        a(f"s_mov_b32 s30, {hexf(-2.302208198)}")
        a(f"s_mov_b32 s31, {hexf(-2.302208198*0.044715)}")
        a("v_mov_b32 v15, s30")
        n = 0
        for rb in range(3):
            for r in range(4):
                for u in range(2):
                    t = 16 + (n % 4) * 12; n += 1
                    for i in range(4):
                        x = ACC + ((rb * 2 + u) * 4 + i) * 4 + r
                        a(f"v_fma_f32 v{t+i}, v{x}, v{224+4*u+i}, v{232+4*u+i}")
                    for i in range(4):
                        a(f"v_mul_f32 v{t+4+i}, v{t+i}, v{t+i}")
                    for i in range(4):
                        a(f"v_fma_f32 v{t+4+i}, v{t+4+i}, s31, v15")
                    for i in range(4):
                        a(f"v_mul_f32 v{t+4+i}, v{t+4+i}, v{t+i}")
                    for i in range(4):
                        a(f"v_exp_f32 v{t+4+i}, v{t+4+i}")
                    for i in range(4):
                        a(f"v_add_f32 v{t+4+i}, 1.0, v{t+4+i}")
                    for i in range(4):
                        a(f"v_rcp_f32 v{t+4+i}, v{t+4+i}")
                    for i in range(4):
                        a(f"v_mul_f32 v{t+i}, v{t+i}, v{t+4+i}")
                    a(f"v_cvt_pk_bf16_f32 v{t+8}, v{t}, v{t+1}")
                    a(f"v_cvt_pk_bf16_f32 v{t+9}, v{t+2}, v{t+3}")
                    a(f"buffer_store_dwordx2 v[{t+8}:{t+9}], v7, s[16:19], s25 offen offset:{u*128}")
                a("s_add_u32 s25, s25, 1024")
            a(f"s_add_u32 s25, s25, {12*1024}")
    a.lab(f"{tag}_END")
    a("s_endpgm")

import struct
def hexf(x):
    return "0x%08x" % struct.unpack("<I", struct.pack("<f", x))[0]

def emit(a, O, OPT):
    k2(a, O, OPT)
    k34(a, O, OPT, False)
    k34(a, O, OPT, True)
    return [("k2_gemm_kernel", 256, 512, NBUF * SB, 256),
            ("k3_stats_kernel", 256, 384, 12288 + 24576, 256),
            ("k4_out_kernel", 256, 384, 12288 + 2048, 256)]
```

```python
import sys

NAME = "standalone__self_sup_conv_stem_wavlm__speech"

T2 = 8000
L = 7985
V = 48
NT = 167
XBLK = NT * 128
XFB = 32 * XBLK
XT_SIZE = 64 * XFB
YFB = NT * 2048
YT_SIZE = 64 * YFB

OPT = dict(wpad=0, cpw=4)

class A:
    def __init__(self):
        self.l = []
    def __call__(self, s):
        self.l.append("    " + s)
    def lab(self, s):
        self.l.append(s + ":")
    def raw(self, s):
        self.l.append(s)
    def c(self, s):
        self.l.append("    ; " + s)
    def text(self):
        return "\n".join(self.l) + "\n"

def vr(a, n=1):
    return f"v{a}" if n == 1 else f"v[{a}:{a+n-1}]"
def sr(a, n=1):
    return f"s{a}" if n == 1 else f"s[{a}:{a+n-1}]"

def srd(a, s, base, off, size):
    if off is None:
        a(f"s_mov_b32 s{s}, s{base}")
        a(f"s_mov_b32 s{s+1}, s{base+1}")
    else:
        a(f"s_add_u32 s{s}, s{base}, {off}")
        a(f"s_addc_u32 s{s+1}, s{base+1}, 0")
    a(f"s_and_b32 s{s+1}, s{s+1}, 0xffff")
    a(f"s_mov_b32 s{s+2}, {size}")
    a(f"s_mov_b32 s{s+3}, 0x00020000")

def trig(a, vA, vM0, T, hi, lo, tmp, scale=None):
    for e in range(8):
        a(f"v_mad_u32_u24 v{T+e}, v{vA}, {e}, v{vM0}")
    trig_core(a, T, hi, lo, tmp, scale)

def trig_core(a, T, hi, lo, tmp, scale=None):
    for e in range(8):
        a(f"v_and_b32 v{T+e}, 127, v{T+e}")
    for e in range(8):
        a(f"v_cvt_f32_u32 v{T+e}, v{T+e}")
    for e in range(8):
        a(f"v_mul_f32 v{T+e}, 0x3c000000, v{T+e}")
    for e in range(8):
        a(f"v_cos_f32 v{T+e}, v{T+e}")
    a("s_nop 0")
    if scale is not None:
        for e in range(8):
            a(f"v_mul_f32 v{T+e}, {scale}, v{T+e}")
    for q in range(4):
        a(f"v_cvt_pk_bf16_f32 v{hi+q}, v{T+2*q}, v{T+2*q+1}")
    for q in range(4):
        a(f"v_lshlrev_b32 v{tmp}, 16, v{hi+q}")
        a(f"v_and_b32 v{tmp+1}, 0xffff0000, v{hi+q}")
        a(f"v_sub_f32 v{T+2*q}, v{T+2*q}, v{tmp}")
        a(f"v_sub_f32 v{T+2*q+1}, v{T+2*q+1}, v{tmp+1}")
    for q in range(4):
        a(f"v_cvt_pk_bf16_f32 v{lo+q}, v{T+2*q}, v{T+2*q+1}")

def interleave_perm(a, raw, ops, sLo, sHi):
    for q in range(4):
        for m in range(4):
            r0 = raw + 4 * (2 * m) + q
            r1 = raw + 4 * (2 * m + 1) + q
            a(f"v_perm_b32 v{ops+4*(2*q)+m}, v{r1}, v{r0}, s{sLo}")
            a(f"v_perm_b32 v{ops+4*(2*q+1)+m}, v{r1}, v{r0}, s{sHi}")

def layout():
    O = {}
    O['WSTR'] = 524288 + OPT['wpad']
    O['XT'] = 0
    O['WT'] = 48 << 20
    O['YT'] = O['WT'] + ((128 * O['WSTR'] + (1 << 20) - 1) >> 20 << 20) + (1 << 20)
    O['ST'] = O['YT'] + (24 << 20)
    assert O['ST'] + (4 << 20) <= (256 << 20)
    return O

def k1(a, O):
    CPW = OPT['cpw']
    NW = 1024 // CPW
    NX = 2 * 8 * 42
    WSTR = O['WSTR']
    a.raw(".p2align 8")
    a.raw(".type k1_xform_kernel,@function")
    a.lab("k1_xform_kernel")
    a(f"s_cmp_ge_u32 s2, {NW+NX}")
    a("s_cbranch_scc1 K1_END")
    a("s_load_dwordx4 s[4:7], s[0:1], 0")
    a("s_load_dwordx2 s[8:9], s[0:1], 48")
    a("v_lshrrev_b32 v120, 6, v0")
    a("v_and_b32 v121, 63, v0")
    a("v_readfirstlane_b32 s3, v120")
    a("v_and_b32 v122, 15, v121")
    a("v_lshrrev_b32 v123, 4, v121")
    a("s_mov_b32 s28, 0x05040100")
    a("s_mov_b32 s29, 0x07060302")
    a("v_and_b32 v124, 3, v122")
    a("v_lshlrev_b32 v124, 2, v124")
    a("v_lshrrev_b32 v125, 3, v122")
    a("v_lshl_add_u32 v124, v125, 1, v124")
    a("s_lshl_b32 s10, s3, 4")
    a("s_add_u32 s10, s10, 1")
    a("v_add_u32 v124, s10, v124")
    a("v_bfe_u32 v125, v122, 2, 1")
    a("v_lshlrev_b32 v121, 4, v121")
    a("s_waitcnt lgkmcnt(0)")
    a(f"s_cmp_lt_u32 s2, {NW}")
    a("s_cbranch_scc1 K1_W")

    a.c("x-type workgroup: 4 consecutive tiles, one 128-channel group")
    a(f"s_sub_u32 s11, s2, {NW}")
    a("s_and_b32 s12, s11, 7")
    a("s_lshr_b32 s11, s11, 3")
    a("s_cmp_ge_u32 s11, 42")
    a("s_cselect_b32 s13, 1, 0")
    a("s_mul_i32 s14, s13, 42")
    a("s_sub_u32 s11, s11, s14")
    a("s_lshl_b32 s11, s11, 2")
    a("s_add_u32 s11, s11, s3")
    a("s_mul_i32 s14, s13, 16384000")
    srd(a, 16, 4, "s14", 16384000)
    srd(a, 20, 8, O['XT'] if O['XT'] else None, XT_SIZE)
    a("v_lshlrev_b32 v126, 14, v123")
    a("v_lshl_add_u32 v126, v122, 4, v126")
    a(f"s_mul_i32 s15, s11, {48*2048}")
    a("s_lshl_b32 s24, s12, 8")
    a("s_add_u32 s15, s15, s24")
    for ks in range(2):
        for e2 in range(4):
            e = 2 * e2
            r = 32 * ks + 4 * e
            a(f"buffer_load_dwordx4 v[{r}:{r+3}], v126, s[16:19], s15 offen")
            a(f"buffer_load_dwordx4 v[{r+4}:{r+7}], v126, s[16:19], s15 offen offset:2048")
            if not (ks == 1 and e2 == 3):
                a(f"s_add_u32 s15, s15, {4096 if e2 < 3 else 32*2048 - 3*4096}")
    a("v_lshlrev_b32 v127, 3, v123")
    for ks in range(2):
        if ks == 1:
            a("v_add_u32 v127, 32, v127")
        a("v_lshlrev_b32 v112, 5, v125")
        a("v_mad_u32_u24 v113, v124, v127, v112")
        trig(a, 124, 113, 64, 72, 76, 80)
        a(f"s_lshl_b32 s24, s3, 12")
        a(f"v_add_u32 v114, s24, v121")
        a(f"ds_write_b128 v114, v[72:75] offset:{ks*2048}")
        a(f"ds_write_b128 v114, v[76:79] offset:{ks*2048+1024}")
    a("v_lshrrev_b32 v112, 1, v123")
    a(f"s_mov_b32 s24, {2*XFB}")
    a("v_mul_lo_u32 v112, v112, s24")
    a("v_lshrrev_b32 v113, 2, v122")
    a(f"s_mov_b32 s24, {XBLK}")
    a("v_mul_lo_u32 v113, v113, s24")
    a("v_add_u32 v112, v112, v113")
    a("v_and_b32 v113, 3, v122")
    a("v_and_b32 v114, 1, v123")
    a("v_lshl_add_u32 v113, v114, 2, v113")
    a("s_lshr_b32 s24, s11, 1")
    a("s_and_b32 s24, s24, 7")
    a("v_xor_b32 v113, s24, v113")
    a("v_lshl_add_u32 v120, v113, 4, v112")
    a(f"s_mul_i32 s25, s13, {XFB}")
    a(f"s_mul_i32 s24, s12, {4*XBLK}")
    a("s_add_u32 s25, s25, s24")
    a("s_lshl_b32 s24, s11, 7")
    a("s_add_u32 s25, s25, s24")
    a("s_waitcnt lgkmcnt(0)")
    a("s_barrier")
    a(f"s_cmp_ge_u32 s11, {NT}")
    a("s_cbranch_scc1 K1_END")
    a("s_waitcnt vmcnt(8)")
    interleave_perm(a, 0, 64, 28, 29)
    a("s_waitcnt vmcnt(0)")
    interleave_perm(a, 32, 0, 28, 29)
    for rb in range(4):
        for fr in range(4):
            a(f"ds_read_b128 v[{96+4*fr}:{99+4*fr}], v121 offset:{rb*4096+fr*1024}")
        for term in range(4):
            a(f"s_waitcnt lgkmcnt({3-term})")
            ops = 64 if term < 2 else 0
            for i in range(8):
                c = "0" if term == 0 else f"v[{32+4*i}:{35+4*i}]"
                a(f"v_mfma_f32_16x16x32_bf16 v[{32+4*i}:{35+4*i}], v[{96+4*term}:{99+4*term}], v[{ops+4*i}:{ops+4*i+3}], {c}")
        a("s_nop 7")
        for r in range(4):
            t = 112 + 4 * (r & 1)
            for q in range(4):
                a(f"v_cvt_pk_bf16_f32 v{t+q}, v{32+4*(2*q)+r}, v{32+4*(2*q+1)+r}")
            a(f"buffer_store_dwordx4 v[{t}:{t+3}], v120, s[20:23], s25 offen")
            if not (rb == 3 and r == 3):
                a(f"s_add_u32 s25, s25, {2*2*XFB}")
    a("s_endpgm")

    a.lab("K1_W")
    a.c("w-type workgroup: CPW consecutive input channels c', wave = column quarter nq")
    srd(a, 16, 6, None, 31 * 524288)
    srd(a, 20, 8, O['WT'], 128 * WSTR)
    a(f"s_mul_i32 s11, s2, {CPW}")
    a("s_lshr_b32 s12, s11, 9")
    a("s_and_b32 s13, s11, 511")
    a("s_lshl_b32 s14, s12, 19")
    a("s_lshl_b32 s15, s13, 10")
    a("s_add_u32 s14, s14, s15")
    a("s_lshl_b32 s15, s3, 8")
    a("s_add_u32 s14, s14, s15")
    a("v_and_b32 v126, 1, v123")
    a("v_lshlrev_b32 v126, 23, v126")
    a("v_lshl_add_u32 v126, v122, 4, v126")
    def wloads():
        a("s_mov_b32 s15, s14")
        for e in range(8):
            a(f"buffer_load_dwordx4 v[{4*e}:{4*e+3}], v126, s[16:19], s15 offen")
            if e < 7:
                a("s_add_u32 s15, s15, 0x100000")
    wloads()
    a("v_and_b32 v127, 1, v123")
    a("v_lshlrev_b32 v127, 3, v127")
    a("v_mul_u32_u24 v112, 96, v125")
    a("v_mad_u32_u24 v113, v124, v127, v112")
    trig(a, 124, 113, 64, 72, 76, 80)
    a("v_cmp_lt_u32 vcc, 1, v123")
    a("s_lshl_b32 s24, s3, 10")
    a("v_add_u32 v114, s24, v121")
    for q in range(4):
        a(f"v_cndmask_b32 v{72+q}, v{72+q}, v{76+q}, vcc")
    a("ds_write_b128 v114, v[72:75]")
    a("v_lshrrev_b32 v112, 1, v123")
    a(f"s_mov_b32 s24, {4*WSTR}")
    a("v_mul_lo_u32 v112, v112, s24")
    a("v_and_b32 v113, 1, v123")
    a("v_lshl_add_u32 v112, v113, 8, v112")
    a("v_and_b32 v113, 1, v122")
    a("v_lshl_add_u32 v124, v113, 4, v112")
    a("v_lshrrev_b32 v125, 1, v122")
    a(f"s_mul_i32 s26, s3, {WSTR}")
    a("s_lshl_b32 s24, s11, 9")
    a("s_add_u32 s26, s26, s24")
    a("s_waitcnt lgkmcnt(0)")
    a("s_barrier")
    for rb in range(4):
        a(f"ds_read_b128 v[{96+4*rb}:{99+4*rb}], v121 offset:{rb*1024}")
    a("s_mov_b32 s27, 0")
    a("s_waitcnt vmcnt(0) lgkmcnt(0)")
    a.lab("K1_W_LOOP")
    a("s_add_u32 s24, s11, s27")
    a("s_and_b32 s30, s24, 3")
    a("s_lshr_b32 s24, s24, 1")
    a("s_and_b32 s24, s24, 4")
    a("s_or_b32 s30, s30, s24")
    a("v_xor_b32 v112, s30, v125")
    a("v_lshl_add_u32 v120, v112, 5, v124")
    a("s_lshl_b32 s25, s27, 9")
    a("s_add_u32 s25, s25, s26")
    interleave_perm(a, 0, 32, 28, 29)
    a("s_add_u32 s27, s27, 1")
    a("s_add_u32 s14, s14, 1024")
    a(f"s_cmp_ge_u32 s27, {CPW}")
    a("s_cbranch_scc1 K1_W_NOLOAD")
    wloads()
    a.lab("K1_W_NOLOAD")
    for rb in range(4):
        for i in range(8):
            a(f"v_mfma_f32_16x16x32_bf16 v[{64+4*i}:{67+4*i}], v[{96+4*rb}:{99+4*rb}], v[{32+4*i}:{35+4*i}], 0")
        a("s_nop 7")
        for r in range(4):
            t = 112 + 4 * (r & 1)
            for q in range(4):
                a(f"v_cvt_pk_bf16_f32 v{t+q}, v{64+4*(2*q)+r}, v{64+4*(2*q+1)+r}")
            a(f"buffer_store_dwordx4 v[{t}:{t+3}], v120, s[20:23], s25 offen")
            if not (rb == 3 and r == 3):
                a(f"s_add_u32 s25, s25, {2*4*WSTR}")
    a("s_waitcnt vmcnt(16)")
    a(f"s_cmp_lt_u32 s27, {CPW}")
    a("s_cbranch_scc1 K1_W_LOOP")
    a.lab("K1_END")
    a("s_endpgm")
    return NW + NX

def descriptor(a, name, vgpr, sgpr=64):
    a.raw(".p2align 6")
    a.raw(f".amdhsa_kernel {name}")
    a.raw(f"  .amdhsa_next_free_vgpr {vgpr}")
    a.raw(f"  .amdhsa_next_free_sgpr {sgpr}")
    a.raw(f"  .amdhsa_accum_offset {min(256, (vgpr+3)//4*4)}")
    a.raw("  .amdhsa_group_segment_fixed_size 0")
    a.raw("  .amdhsa_kernarg_size 56")
    a.raw("  .amdhsa_user_sgpr_count 2")
    a.raw("  .amdhsa_user_sgpr_kernarg_segment_ptr 1")
    a.raw("  .amdhsa_system_sgpr_workgroup_id_x 1")
    a.raw(".end_amdhsa_kernel")

HEADER = """; Kernarg layout for this problem (56 bytes, ptrs only, base s[0:1]):
"""

def main():
    out = NAME + ".s"
    for arg in sys.argv[1:]:
        if "=" in arg:
            k, v = arg.split("=")
            OPT[k] = int(v)
        else:
            out = arg
    O = layout()
    import kernels2
    a = A()
    body = A()
    launches = []
    g1 = k1(body, O)
    launches.append(("k1_xform_kernel", g1, 256, 16384, 128))
    launches += kernels2.emit(body, O, OPT)
    only = OPT.get('only', 0)
    a.raw(HEADER.rstrip("\n"))
    for (n, g, b, lds, v) in launches:
        a.raw(f"; @launch kernel={n} grid=({g},1,1) block=({b},1,1) lds={lds}")
    a.raw('.amdgcn_target "amdgcn-amd-amdhsa--gfx950"')
    a.raw(".text")
    for (n, g, b, lds, v) in launches:
        a.raw(f".globl {n}")
    txt = a.text() + body.text()
    d = A()
    d.raw('.section .rodata,"a"')
    for (n, g, b, lds, v) in launches:
        descriptor(d, n, v)
    txt += d.text()
    open(out, "w").write(txt)
    print("wrote", out, len(txt), "bytes;", {k: hex(v) for k, v in O.items()})

if __name__ == "__main__":
    main()
```

```python
import sys
base = open(sys.argv[1]).read()
def k0(name, body, grid):
    lines = base.split('\n')
    idx = [i for i,l in enumerate(lines) if l.startswith('; @launch')]
    new = lines[:idx[0]] + [f"; @launch kernel=k0_kernel grid=({grid},1,1) block=(256,1,1) lds=0"] + lines[idx[0]:]
    s = '\n'.join(new)
    code = f""".globl k0_kernel
.p2align 8
.type k0_kernel,@function
k0_kernel:
    s_cmp_ge_u32 s2, {grid}
    s_cbranch_scc1 K0_END
{body}
K0_END:
    s_endpgm
"""
    s = s.replace(".p2align 8\n.type k1_xform_kernel", code + ".p2align 8\n.type k1_xform_kernel", 1)
    s += """.p2align 6
.amdhsa_kernel k0_kernel
  .amdhsa_next_free_vgpr 32
  .amdhsa_next_free_sgpr 32
  .amdhsa_accum_offset 32
  .amdhsa_group_segment_fixed_size 0
  .amdhsa_kernarg_size 56
  .amdhsa_user_sgpr_count 2
  .amdhsa_user_sgpr_kernarg_segment_ptr 1
  .amdhsa_system_sgpr_workgroup_id_x 1
.end_amdhsa_kernel
"""
    open(f'var/{name}.s', 'w').write(s)
def srd(s, karg, size):
    return f"""    s_load_dwordx2 s[{s}:{s+1}], s[0:1], {karg}
    s_waitcnt lgkmcnt(0)
    s_and_b32 s{s+1}, s{s+1}, 0xffff
    s_mov_b32 s{s+2}, {size}
    s_mov_b32 s{s+3}, 0x00020000
"""
tid = """    s_lshl_b32 s3, s2, 8
    v_add_u32 v1, s3, v0
"""
k0('e_empty', "", 256)
b = srd(4, 0, 32768000) + srd(8, 8, 16252928) + srd(12, 48, 160<<20) + srd(16, 32, 16353280) + tid + """    v_lshlrev_b32 v1, 12, v1
    buffer_load_dword v2, v1, s[4:7], 0 offen
    buffer_load_dword v3, v1, s[8:11], 0 offen
    buffer_load_dword v4, v1, s[12:15], 0 offen
    buffer_load_dword v5, v1, s[16:19], 0 offen
    s_waitcnt vmcnt(0)
"""
k0('e_touch4k', b, 160)
b = srd(4, 0, 32768000) + srd(8, 8, 16252928) + tid + """    v_lshlrev_b32 v1, 4, v1
    s_mov_b32 s20, 0
    buffer_load_dwordx4 v[4:7], v1, s[4:7], s20 offen
    s_add_u32 s20, s20, 0x800000
    buffer_load_dwordx4 v[8:11], v1, s[4:7], s20 offen
    s_add_u32 s20, s20, 0x800000
    buffer_load_dwordx4 v[12:15], v1, s[4:7], s20 offen
    s_add_u32 s20, s20, 0x800000
    buffer_load_dwordx4 v[16:19], v1, s[4:7], s20 offen
    buffer_load_dwordx4 v[20:23], v1, s[8:11], 0 offen
    s_mov_b32 s20, 0x800000
    buffer_load_dwordx4 v[24:27], v1, s[8:11], s20 offen
    s_waitcnt vmcnt(0)
"""
k0('e_readin', b, 2048)
st = "".join(f"    buffer_store_dwordx4 v[4:7], v1, s[12:15], s20 offen\n    s_add_u32 s20, s20, 0x800000\n" for i in range(14))
b = srd(12, 48, 112<<20) + tid + "    v_lshlrev_b32 v1, 4, v1\n    s_mov_b32 s20, 0\n    v_mov_b32 v4, 0\n    v_mov_b32 v5, 0\n    v_mov_b32 v6, 0\n    v_mov_b32 v7, 0\n" + st
k0('e_writews', b, 2048)
```

```python
from gen import *
import gen

SB = 37888
BOFF = 21504
NBUF = 4

def k2(a, O, OPT):
    WSTR = O['WSTR']
    a.raw(".p2align 8")
    a.raw(".type k2_gemm_kernel,@function")
    a.lab("k2_gemm_kernel")
    a("s_cmp_ge_u32 s2, 256")
    a("s_cbranch_scc1 K2_END")
    a("s_load_dwordx2 s[4:5], s[0:1], 48")
    if OPT.get('stamp'):
        a("s_memtime s[48:49]")
        a("s_memrealtime s[50:51]")
    a("v_lshrrev_b32 v1, 6, v0")
    a("v_and_b32 v2, 63, v0")
    a("v_readfirstlane_b32 s3, v1")
    a("s_and_b32 s6, s2, 7")
    a("s_lshl_b32 s6, s6, 2")
    a("s_lshr_b32 s7, s2, 6")
    a("s_add_u32 s6, s6, s7")
    a("s_lshr_b32 s7, s2, 3")
    a("s_and_b32 s7, s7, 7")
    a("s_lshr_b32 s20, s7, 2")
    a("s_and_b32 s21, s7, 3")
    a("s_lshl_b32 s22, s6, 1")
    a("s_add_u32 s22, s22, s20")
    a("s_lshl_b32 s23, s6, 2")
    a("s_add_u32 s23, s23, s21")
    a(f"s_mul_i32 s24, s22, {XFB}")
    a(f"s_mul_i32 s25, s23, {WSTR}")
    a(f"s_add_u32 s25, s25, {O['WT']}")
    a(f"s_mul_i32 s26, s22, {YFB}")
    a(f"s_add_u32 s26, s26, {O['YT']}")
    if O['XT']:
        a(f"s_add_u32 s24, s24, {O['XT']}")
    a("s_waitcnt lgkmcnt(0)")
    srd(a, 8, 4, "s24", XFB)
    srd(a, 12, 4, "s25", 524288)
    srd(a, 16, 4, "s26", YFB)
    a("v_and_b32 v3, 15, v2")
    a("v_lshrrev_b32 v4, 4, v2")
    a("v_lshlrev_b32 v1, 4, v2")
    a("v_lshrrev_b32 v5, 1, v3")
    a("v_xor_b32 v5, v5, v4")
    a("v_lshlrev_b32 v5, 4, v5")
    a("v_lshl_add_u32 v8, v3, 7, v5")
    a("v_lshrrev_b32 v5, 2, v3")
    a("v_lshl_add_u32 v6, v4, 3, v5")
    a("v_lshlrev_b32 v6, 9, v6")
    a("v_and_b32 v7, 1, v4")
    a("v_lshl_or_b32 v5, v7, 2, v5")
    a("s_and_b32 s27, s3, 3")
    a("s_lshl_b32 s28, s27, 1")
    a("v_xor_b32 v5, s28, v5")
    a("v_lshl_add_u32 v6, v5, 5, v6")
    a("v_and_b32 v5, 3, v3")
    a("v_lshl_add_u32 v6, v5, 3, v6")
    a(f"v_add_u32 v9, {BOFF}, v6")
    a("s_lshl_b32 s28, s21, 7")
    a("s_lshl_b32 s29, s27, 5")
    a("s_add_u32 s28, s28, s29")
    a("v_add_u32 v5, s28, v3")
    a("v_lshlrev_b32 v5, 2, v5")
    a("v_lshl_add_u32 v10, v4, 13, v5")
    ACC = 128
    for r in range(96):
        a(f"v_mov_b32 v{ACC+r}, 0")
    a("s_cmp_ge_u32 s3, 4")
    a("s_cbranch_scc1 K2_MH1")
    k2_wave(a, 0, O, OPT)
    a.lab("K2_MH1")
    k2_wave(a, 1, O, OPT)
    a.lab("K2_END")
    a("s_endpgm")

def k2_wave(a, mh, O, OPT):
    nrb = 6 if mh == 0 else 5
    p = 3 if mh == 0 else 2
    rb0 = 0 if mh == 0 else 6
    ACC = 128
    AF = 16
    BS = [64, 88]
    vAr, vAi, vB0, vB1 = 11, 12, 13, 14
    tag = f"K2M{mh}"
    if mh == 0:
        a("s_lshl_b32 s30, s27, 12")
        a(f"s_add_u32 s32, s30, {BOFF}")
        a("s_lshl_b32 s31, s27, 8")
        a("s_add_u32 s31, s31, 20480")
        a("s_mov_b32 s33, s31")
        strA, strB = 16384, XBLK
    else:
        a("s_mul_i32 s30, s27, 5120")
        a("s_mov_b32 s32, s30")
        a("s_add_u32 s31, s30, 4096")
        a("s_mov_b32 s33, s31")
        strA, strB = XBLK, XBLK
    srdM = "s[12:15]" if mh == 0 else "s[8:11]"

    def dma_list(sbuf):
        g = []
        g.append([f"s_add_u32 m0, s{sbuf}, s32", "s_nop 0", f"buffer_load_dwordx4 v1, {srdM}, s30 offen{NTF('ntk2')} lds"])
        for k in range(1, 4):
            g.append([f"buffer_load_dwordx4 v1, {srdM}, s30 offen offset:{1024*k}{NTF('ntk2')} lds"])
        if mh == 0:
            g.append([f"s_add_u32 m0, s{sbuf}, s33", "s_mov_b64 exec, 0xffff",
                      f"buffer_load_dwordx4 v1, s[8:11], s31 offen{NTF('ntk2')} lds", "s_mov_b64 exec, -1"])
        else:
            g.append([f"s_add_u32 m0, s{sbuf}, s33", "s_nop 0",
                      f"buffer_load_dwordx4 v1, s[8:11], s31 offen{NTF('ntk2')} lds"])
        g.append([f"s_add_u32 s30, s30, {strA}", f"s_add_u32 s31, s31, {strB}"])
        return g

    def a_reads(rb):
        off = (rb0 + rb) * 2048
        return [f"ds_read_b128 v[{AF+8*rb}:{AF+8*rb+3}], v{vAr} offset:{off}",
                f"ds_read_b128 v[{AF+8*rb+4}:{AF+8*rb+7}], v{vAi} offset:{off}"]
    def b_reads(B):
        r = []
        for cb, vb in ((0, vB0), (1, vB1)):
            for ri in range(2):
                d = B + 12 * cb + 4 * ri
                for t in range(2):
                    r.append(f"ds_read_b64_tr_b16 v[{d+2*t}:{d+2*t+1}], v{vb} offset:{ri*256+t*2048}")
        return r
    def b_xor(B):
        return [f"v_xor_b32 v{B+12*cb+8+q}, s34, v{B+12*cb+4+q}" for cb in range(2) for q in range(4)]
    def addr_upd(sbuf):
        return [f"v_add_u32 v{vAr}, s{sbuf}, v8", f"v_add_u32 v{vB0}, s{sbuf}, v9",
                f"v_xor_b32 v{vAi}, 64, v{vAr}", f"v_xor_b32 v{vB1}, 32, v{vB0}"]
    def mfmas(rb, B):
        Ar, Ai = AF + 8 * rb, AF + 8 * rb + 4
        def acc(cb, ri): return ACC + ((rb * 2 + cb) * 2 + ri) * 4
        def m(d, x, y):
            if OPT.get('k2swap'): x, y = y, x
            return f"v_mfma_f32_16x16x32_bf16 v[{d}:{d+3}], v[{x}:{x+3}], v[{y}:{y+3}], v[{d}:{d+3}]"
        Wr = lambda cb: B + 12 * cb
        Wi = lambda cb: B + 12 * cb + 4
        nWi = lambda cb: B + 12 * cb + 8
        if OPT.get('k2ord') == 1:
            return [m(acc(0,0), Ar, Wr(0)), m(acc(0,1), Ai, Wr(0)), m(acc(1,0), Ar, Wr(1)), m(acc(1,1), Ai, Wr(1)),
                    m(acc(0,1), Ar, Wi(0)), m(acc(0,0), Ai, nWi(0)), m(acc(1,1), Ar, Wi(1)), m(acc(1,0), Ai, nWi(1))]
        if OPT.get('k2ord') == 2:
            return [m(acc(0,0), Ar, Wr(0)), m(acc(1,0), Ar, Wr(1)), m(acc(0,1), Ar, Wi(0)), m(acc(1,1), Ar, Wi(1)),
                    m(acc(0,1), Ai, Wr(0)), m(acc(1,1), Ai, Wr(1)), m(acc(0,0), Ai, nWi(0)), m(acc(1,0), Ai, nWi(1))]
        return [m(acc(0,0), Ar, Wr(0)), m(acc(0,1), Ar, Wi(0)), m(acc(1,0), Ar, Wr(1)), m(acc(1,1), Ar, Wi(1)),
                m(acc(0,0), Ai, nWi(0)), m(acc(0,1), Ai, Wr(0)), m(acc(1,0), Ai, nWi(1)), m(acc(1,1), Ai, Wr(1))]

    a("s_mov_b32 s34, 0x80008000")
    a("s_mov_b32 s35, 0")
    for st in range(NBUF):
        for grp in dma_list(35):
            for ins in grp: a(ins)
        a(f"s_add_u32 s35, s35, {SB}")
    a("s_mov_b32 s35, 0")
    a(f"s_mov_b32 s36, {SB}")
    a("s_mov_b32 s37, 0")
    for ins in addr_upd(35): a(ins)
    a("s_waitcnt vmcnt(15)")
    a("s_barrier")
    if OPT.get('stamp'):
        a("s_memtime s[44:45]")
        a("s_memrealtime s[46:47]")
    for ins in b_reads(BS[0]): a(ins)
    for rb in range(nrb - 1):
        for ins in a_reads(rb): a(ins)
        if rb == 1:
            a("s_waitcnt lgkmcnt(4)")
            for ins in b_xor(BS[0]): a(ins)
    a.lab(f"{tag}_LOOP")
    for half in range(2):
        Bc, Bn = BS[half], BS[1 - half]
        a(f"s_waitcnt lgkmcnt({(nrb-1-p)*2})")
        side = {0: [a_reads(nrb-1)[0]], 1: [a_reads(nrb-1)[1]]}
        k = 0
        for rb in range(p):
            for ins in mfmas(rb, Bc):
                a(ins)
                for s_ in side.get(k, []):
                    if OPT.get('k2nolds') and s_.startswith('ds_read'): continue
                    a(s_)
                k += 1
        if OPT.get('k2nodma'):
            a("s_waitcnt lgkmcnt(0)")
        else:
            a("s_waitcnt vmcnt(10) lgkmcnt(0)")
        if not OPT.get('k2nobar'):
            a("s_barrier")
        nslot = (nrb - p) * 8
        side = {i: [] for i in range(nslot)}
        au = addr_upd(36)
        side[0] += au[:2]; side[1] += au[2:]
        br = b_reads(Bn)
        for i in range(8): side[2 + i // 2].append(br[i])
        slot = 6
        for rb in range(p):
            side[slot] += a_reads(rb); slot += 1
        slot = max(slot, 8)
        side[slot] += a_reads(p); nA_after_B = 2 * (p + 1)
        slot += 1
        dl = dma_list(35)
        if OPT.get('k2nodma'):
            dl = []
        dslot = slot
        for grp in dl:
            side[min(dslot, nslot - 1)] += grp
            dslot += 1
        xs = max(16, dslot - 1) if nslot > 16 else nslot - 5
        xs = 16
        side[xs].append(f"s_waitcnt lgkmcnt({nA_after_B})")
        xr = b_xor(Bn)
        for i in range(8): side[xs + i // 2].append(xr[i])
        for rb in range(p + 1, nrb - 1):
            sl = (rb - p + 1) * 8
            side[max(sl, xs + 4)] += a_reads(rb)
        side[nslot - 1] += ["s_mov_b32 s35, s36", f"s_add_u32 s36, s36, {SB}",
                            f"s_cmp_eq_u32 s36, {NBUF*SB}", "s_cselect_b32 s36, 0, s36"]
        k = 0
        for rb in range(p, nrb):
            for ins in mfmas(rb, Bc):
                a(ins)
                for s_ in side[k]:
                    if OPT.get('k2nolds') and s_.startswith('ds_read'): continue
                    a(s_)
                k += 1
    a("s_add_u32 s37, s37, 1")
    a("s_cmp_lt_u32 s37, 16")
    a(f"s_cbranch_scc1 {tag}_LOOP")
    if OPT.get('stamp'):
        a("s_memtime s[52:53]")
        a("s_memrealtime s[54:55]")
    a("s_nop 7")
    a("s_nop 1")
    n = 0
    for rb in range(nrb):
        for i in range(4):
            if i % 2 == 0:
                a(f"s_mov_b32 s38, {(16*(rb0+rb)+i)*2048}")
            for cb in range(2):
                t = 16 + (n % 8); n += 1
                yr = ACC + ((rb * 2 + cb) * 2 + 0) * 4 + i
                yi = ACC + ((rb * 2 + cb) * 2 + 1) * 4 + i
                a(f"v_cvt_pk_bf16_f32 v{t}, v{yr}, v{yi}")
                a(f"buffer_store_dword v{t}, v10, s[16:19], s38 offen offset:{(i&1)*2048+cb*64}{NTF('ntys')}")
    if OPT.get('stamp'):
        a("s_waitcnt vmcnt(0)")
        a("s_memtime s[56:57]")
        a("s_memrealtime s[58:59]")
        a("s_waitcnt lgkmcnt(0)")
        srd(a, 60, 4, O['ST'] + (1 << 20), 1 << 20)
        for k in range(12):
            a(f"v_mov_b32 v{16+k}, s{48+k}")
        for k in range(4):
            a(f"v_mov_b32 v{28+k}, s{44+k}")
        a("s_lshl_b32 s38, s2, 3")
        a("s_add_u32 s38, s38, s3")
        a("s_lshl_b32 s38, s38, 6")
        a("v_mov_b32 v40, 0")
        a("s_mov_b64 exec, 1")
        for k in range(4):
            a(f"buffer_store_dwordx4 v[{16+4*k}:{19+4*k}], v40, s[60:63], s38 offen offset:{16*k}")
    a("s_endpgm")

def k34(a, O, OPT, final):
    name = "k4_out_kernel" if final else "k3_stats_kernel"
    tag = "K4" if final else "K3"
    a.raw(".p2align 8")
    a.raw(f".type {name},@function")
    a.lab(name)
    a("s_cmp_ge_u32 s2, 256")
    a(f"s_cbranch_scc1 {tag}_END")
    stamp_begin(a)
    a("s_load_dwordx2 s[4:5], s[0:1], 48")
    if final:
        a("s_load_dwordx4 s[40:43], s[0:1], 16")
        a("s_load_dwordx2 s[44:45], s[0:1], 32")
    a("v_lshrrev_b32 v1, 6, v0")
    a("v_and_b32 v2, 63, v0")
    a("v_readfirstlane_b32 s3, v1")
    a("s_and_b32 s6, s2, 15")
    a("s_lshr_b32 s7, s2, 4")
    a("s_lshr_b32 s20, s6, 3")
    a("s_and_b32 s21, s6, 7")
    a("s_mul_i32 s22, s7, 11")
    a("s_mul_i32 s23, s7, 10")
    a("s_add_u32 s23, s23, 7")
    a("s_cmp_lt_u32 s7, 7")
    a("s_cselect_b32 s22, s22, s23")
    a("s_cselect_b32 s23, 11, 10")
    a("s_add_u32 s22, s22, s3")
    a("v_and_b32 v3, 15, v2")
    a("v_lshrrev_b32 v4, 4, v2")
    a("v_lshlrev_b32 v5, 4, v2")
    LB = 16
    GF = 48
    ACC = 96
    AB = 144
    T = 152
    a(f"s_mov_b32 s24, {4*2*YFB}")
    a("v_mul_lo_u32 v6, v4, s24")
    a("v_lshl_add_u32 v6, v3, 4, v6")
    a(f"s_mul_i32 s25, s20, {NT}")
    a("s_add_u32 s25, s25, s22")
    a("s_lshl_b32 s25, s25, 11")
    a("s_lshl_b32 s24, s21, 8")
    a("s_add_u32 s25, s25, s24")
    a("s_waitcnt lgkmcnt(0)")
    srd(a, 8, 4, O['YT'], YT_SIZE)
    srd(a, 12, 4, O['ST'], 256 * 512)
    a("s_cmp_lt_u32 s3, s23")
    a(f"s_cbranch_scc0 {tag}_NOLOAD")
    for ks in range(2):
        for r in range(4):
            d = LB + (ks * 4 + r) * 4
            a(f"buffer_load_dwordx4 v[{d}:{d+3}], v6, s[8:11], s25 offen{NTF('ntyl')}")
            if not (ks == 1 and r == 3):
                a(f"s_add_u32 s25, s25, {2*YFB if r < 3 else (16-3)*2*YFB}")
    a.lab(f"{tag}_NOLOAD")
    SL = 12288
    t0 = 1 if final else 0
    if final:
        a("s_cmp_lg_u32 s3, 0")
        a(f"s_cbranch_scc1 {tag}_TAB")
        srd(a, 16, 40, None, 1024)
        srd(a, 28, 42, None, 1024)
        a("v_lshlrev_b32 v7, 2, v2")
        a("s_lshl_b32 s24, s6, 13")
        for gg in range(16):
            a(f"buffer_load_dword v{ACC+gg}, v7, s[12:15], s24 offen offset:{(gg&7)*512}")
            a(f"buffer_load_dword v{ACC+16+gg}, v7, s[12:15], s24 offen offset:{(gg&7)*512+256}")
            if gg == 7:
                a("s_add_u32 s24, s24, 4096")
        a("s_lshl_b32 s24, s21, 7")
        a("v_lshlrev_b32 v8, 1, v2")
        a("buffer_load_ushort v9, v8, s[16:19], s24 offen")
        a("buffer_load_ushort v10, v8, s[28:31], s24 offen")
        a("s_waitcnt vmcnt(0)")
        for st in (8, 4, 2, 1):
            for i in range(st):
                a(f"v_add_f32 v{ACC+i}, v{ACC+i}, v{ACC+st+i}")
                a(f"v_add_f32 v{ACC+16+i}, v{ACC+16+i}, v{ACC+16+st+i}")
        a(f"v_mul_f32 v11, {hexf(1.0/L)}, v{ACC}")
        a(f"v_mul_f32 v12, {hexf(1.0/L)}, v{ACC+16}")
        a("v_fma_f32 v12, -v11, v11, v12")
        a("v_max_f32 v12, 0, v12")
        a(f"v_add_f32 v12, {hexf(1e-5)}, v12")
        a("v_sqrt_f32 v12, v12")
        a("v_lshlrev_b32 v9, 16, v9")
        a("v_rcp_f32 v12, v12")
        a("v_lshlrev_b32 v10, 16, v10")
        a("v_mul_f32 v9, v9, v12")
        a("v_fma_f32 v10, -v11, v9, v10")
        a(f"ds_write_b32 v7, v9 offset:{SL}")
        a(f"ds_write_b32 v7, v10 offset:{SL+256}")
        a(f"s_branch {tag}_TABDONE")
        a.lab(f"{tag}_TAB")
    a(f"s_cmp_ge_u32 s3, {t0+6}")
    a(f"s_cbranch_scc1 {tag}_TABDONE")
    a(f"s_sub_u32 s27, s3, {t0}")
    a("s_lshr_b32 s28, s27, 1")
    a("s_and_b32 s29, s27, 1")
    a("s_lshl_b32 s30, s28, 4")
    a("v_add_u32 v8, s30, v3")
    a("s_lshl_b32 s30, s29, 5")
    a("s_add_u32 s30, s30, 1")
    a("v_lshlrev_b32 v9, 3, v4")
    a("v_add_u32 v9, s30, v9")
    a("v_mul_u32_u24 v9, v8, v9")
    a("v_lshlrev_b32 v8, 1, v8")
    for e in range(8):
        a(f"v_mad_u32_u24 v{GF+e}, v8, {e>>1}, v9")
        if e & 1:
            a(f"v_add_u32 v{GF+e}, 32, v{GF+e}")
    trig_core(a, GF, GF + 8, GF + 12, GF + 16, scale="0x3d000000")
    a("s_lshl_b32 s30, s27, 11")
    a("v_add_u32 v10, s30, v5")
    a(f"ds_write_b128 v10, v[{GF+8}:{GF+11}]")
    a(f"ds_write_b128 v10, v[{GF+12}:{GF+15}] offset:1024")
    a.lab(f"{tag}_TABDONE")
    a("s_waitcnt lgkmcnt(0)")
    a("s_barrier")
    a("s_cmp_lt_u32 s3, s23")
    if final:
        a(f"s_cbranch_scc0 {tag}_END")
    else:
        a(f"s_cbranch_scc0 {tag}_IDLE")
    for fr in range(12):
        a(f"ds_read_b128 v[{GF+4*fr}:{GF+4*fr+3}], v5 offset:{fr*1024}")
    if final:
        a("v_lshlrev_b32 v7, 4, v3")
        a(f"ds_read_b128 v[{AB}:{AB+3}], v7 offset:{SL}")
        a(f"ds_read_b128 v[{AB+4}:{AB+7}], v7 offset:{SL+256}")
    a("s_waitcnt vmcnt(0)")
    stamp_mid(a)
    for blk in range(2):
        b0 = LB + blk * 16
        for r in range(4):
            for i in range(r + 1, 4):
                a(f"v_swap_b32 v{b0+4*r+i}, v{b0+4*i+r}")
    a("s_waitcnt lgkmcnt(0)")
    if not final:
        a(f"s_mul_i32 s24, s22, {V}")
        a(f"s_sub_u32 s24, {L}, s24")
        a(f"s_cmp_ge_u32 s24, {V}")
        a(f"s_cbranch_scc1 {tag}_FULL")
        for rb in range(3):
            a(f"v_add_u32 v7, {16*rb}, v3")
            a("v_cmp_gt_u32 vcc, s24, v7")
            a("s_nop 1")
            for q in range(16):
                r = GF + rb * 16 + q
                a(f"v_cndmask_b32 v{r}, 0, v{r}, vcc")
        a.lab(f"{tag}_FULL")
    a("s_nop 1")
    for rb in range(3):
        for ks in range(2):
            for hl in range(2):
                G = GF + ((rb * 2 + ks) * 2 + hl) * 4
                for i in range(4):
                    d = ACC + (rb * 4 + i) * 4
                    Bq = LB + (ks * 4 + i) * 4
                    c = "0" if (ks == 0 and hl == 0) else f"v[{d}:{d+3}]"
                    a(f"v_mfma_f32_16x16x32_bf16 v[{d}:{d+3}], v[{G}:{G+3}], v[{Bq}:{Bq+3}], {c}")
    if not final:
        a("s_nop 7")
        for i in range(4):
            x = ACC + i * 4
            a(f"v_mov_b32 v{16+i}, v{x}")
            a(f"v_mul_f32 v{20+i}, v{x}, v{x}")
        for rb in range(3):
            for r in range(4):
                if rb == 0 and r == 0: continue
                for i in range(4):
                    x = ACC + (rb * 4 + i) * 4 + r
                    a(f"v_add_f32 v{16+i}, v{16+i}, v{x}")
                    a(f"v_fmac_f32 v{20+i}, v{x}, v{x}")
        for sw in ("v_permlane32_swap_b32", "v_permlane16_swap_b32"):
            for i in range(8):
                a(f"v_mov_b32 v{24+i}, v{16+i}")
            a("s_nop 0")
            for i in range(8):
                a(f"{sw} v{16+i}, v{24+i}")
            for i in range(8):
                a(f"v_add_f32 v{16+i}, v{16+i}, v{24+i}")
        a(f"s_branch {tag}_WR")
        a.lab(f"{tag}_IDLE")
        for r in range(8):
            a(f"v_mov_b32 v{16+r}, 0")
        a.lab(f"{tag}_WR")
        a("s_lshl_b32 s24, s3, 9")
        a("v_lshlrev_b32 v7, 4, v3")
        a("v_add_u32 v7, s24, v7")
        a(f"ds_write_b128 v7, v[16:19] offset:{SL}")
        a(f"ds_write_b128 v7, v[20:23] offset:{SL+256}")
        a("s_waitcnt lgkmcnt(0)")
        a("s_barrier")
        a("s_cmp_ge_u32 s3, 2")
        a(f"s_cbranch_scc1 {tag}_END")
        a("v_lshlrev_b32 v7, 2, v0")
        for k in range(12):
            a(f"ds_read_b32 v{32+k}, v7 offset:{SL+k*512}")
        a("s_waitcnt lgkmcnt(0)")
        for k in range(1, 12):
            a(f"v_add_f32 v32, v32, v{32+k}")
        a("s_lshl_b32 s24, s6, 4")
        a("s_add_u32 s24, s24, s7")
        a("s_lshl_b32 s24, s24, 9")
        a("buffer_store_dword v32, v7, s[12:15], s24 offen")
        stamp_end(a, O, 2)
    else:
        a(f"s_mul_i32 s24, s20, {L*1024}")
        srd(a, 16, 44, "s24", L * 1024)
        a("v_lshlrev_b32 v7, 12, v4")
        a("v_lshl_add_u32 v7, v3, 3, v7")
        a("s_lshl_b32 s24, s21, 7")
        a("v_add_u32 v7, s24, v7")
        a(f"s_mul_i32 s25, s22, {V*1024}")
        a(f"s_mov_b32 s30, {hexf(-2.302208198)}")
        a(f"s_mov_b32 s31, {hexf(-2.302208198*0.044715)}")
        a("v_mov_b32 v15, s30")
        a("s_nop 3")
        n = 0
        for rb in range(3):
            for rp in range(2):
                t = 16 + (n % 2) * 20; n += 1
                vals = [(r, i) for r in (2 * rp, 2 * rp + 1) for i in range(4)]
                for k, (r, i) in enumerate(vals):
                    x = ACC + (rb * 4 + i) * 4 + r
                    a(f"v_fma_f32 v{t+k}, v{x}, v{AB+i}, v{AB+4+i}")
                for k in range(8):
                    a(f"v_mul_f32 v{t+8+k}, v{t+k}, v{t+k}")
                for k in range(8):
                    a(f"v_fma_f32 v{t+8+k}, v{t+8+k}, s31, v15")
                for k in range(8):
                    a(f"v_mul_f32 v{t+8+k}, v{t+8+k}, v{t+k}")
                for k in range(8):
                    a(f"v_exp_f32 v{t+8+k}, v{t+8+k}")
                for k in range(8):
                    a(f"v_add_f32 v{t+8+k}, 1.0, v{t+8+k}")
                for k in range(8):
                    a(f"v_rcp_f32 v{t+8+k}, v{t+8+k}")
                for k in range(8):
                    a(f"v_mul_f32 v{t+k}, v{t+k}, v{t+8+k}")
                for h in range(2):
                    a(f"v_cvt_pk_bf16_f32 v{t+16+2*h}, v{t+4*h}, v{t+4*h+1}")
                    a(f"v_cvt_pk_bf16_f32 v{t+17+2*h}, v{t+4*h+2}, v{t+4*h+3}")
                    a(f"buffer_store_dwordx2 v[{t+16+2*h}:{t+17+2*h}], v7, s[16:19], s25 offen offset:{h*1024}{NTF('nto')}")
                a("s_add_u32 s25, s25, 2048")
            a(f"s_add_u32 s25, s25, {12*1024}")
        stamp_end(a, O, 3)
    a.lab(f"{tag}_END")
    a("s_endpgm")

import struct
def hexf(x):
    return "0x%08x" % struct.unpack("<I", struct.pack("<f", x))[0]

def emit(a, O, OPT):
    gen.OPT.update(OPT)
    k2(a, O, OPT)
    k34(a, O, OPT, False)
    k34(a, O, OPT, True)
    return [("k2_gemm_kernel", 256, 512, NBUF * SB, 256),
            ("k3_stats_kernel", 256, 768, 12288 + 6144, 168),
            ("k4_out_kernel", 256, 768, 12288 + 512, 168)]
```

```python
import sys

NAME = "standalone__self_sup_conv_stem_wavlm__speech"

T2 = 8000
L = 7985
V = 48
NT = 167
XBLK = NT * 128
XFB = 32 * XBLK
XT_SIZE = 64 * XFB
YFB = NT * 2048
YT_SIZE = 64 * YFB

OPT = dict(wpad=0, cpw=1, xfirst=1, ntx=0, ntw=0, ntxs=0, ntws=0, ntk2=0, ntys=0, ntyl=0, nto=0)
def NTF(k): return ' nt' if OPT.get(k) else ''

class A:
    def __init__(self):
        self.l = []
    def __call__(self, s):
        self.l.append("    " + s)
    def lab(self, s):
        self.l.append(s + ":")
    def raw(self, s):
        self.l.append(s)
    def c(self, s):
        self.l.append("    ; " + s)
    def text(self):
        return "\n".join(self.l) + "\n"

def vr(a, n=1):
    return f"v{a}" if n == 1 else f"v[{a}:{a+n-1}]"
def sr(a, n=1):
    return f"s{a}" if n == 1 else f"s[{a}:{a+n-1}]"

def srd(a, s, base, off, size):
    if off is None:
        a(f"s_mov_b32 s{s}, s{base}")
        a(f"s_mov_b32 s{s+1}, s{base+1}")
    else:
        a(f"s_add_u32 s{s}, s{base}, {off}")
        a(f"s_addc_u32 s{s+1}, s{base+1}, 0")
    a(f"s_and_b32 s{s+1}, s{s+1}, 0xffff")
    a(f"s_mov_b32 s{s+2}, {size}")
    a(f"s_mov_b32 s{s+3}, 0x00020000")

def trig(a, vA, vM0, T, hi, lo, tmp, scale=None):
    if OPT.get('k1nocomp'): return
    for e in range(8):
        a(f"v_mad_u32_u24 v{T+e}, v{vA}, {e}, v{vM0}")
    trig_core(a, T, hi, lo, tmp, scale)

def trig_core(a, T, hi, lo, tmp, scale=None):
    for e in range(8):
        a(f"v_and_b32 v{T+e}, 127, v{T+e}")
    for e in range(8):
        a(f"v_cvt_f32_u32 v{T+e}, v{T+e}")
    for e in range(8):
        a(f"v_mul_f32 v{T+e}, 0x3c000000, v{T+e}")
    for e in range(8):
        a(f"v_cos_f32 v{T+e}, v{T+e}")
    a("s_nop 0")
    if scale is not None:
        for e in range(8):
            a(f"v_mul_f32 v{T+e}, {scale}, v{T+e}")
    for q in range(4):
        a(f"v_cvt_pk_bf16_f32 v{hi+q}, v{T+2*q}, v{T+2*q+1}")
    for q in range(4):
        a(f"v_lshlrev_b32 v{tmp}, 16, v{hi+q}")
        a(f"v_and_b32 v{tmp+1}, 0xffff0000, v{hi+q}")
        a(f"v_sub_f32 v{T+2*q}, v{T+2*q}, v{tmp}")
        a(f"v_sub_f32 v{T+2*q+1}, v{T+2*q+1}, v{tmp+1}")
    for q in range(4):
        a(f"v_cvt_pk_bf16_f32 v{lo+q}, v{T+2*q}, v{T+2*q+1}")

def interleave_perm(a, raw, ops, sLo, sHi):
    if OPT.get('k1nocomp'): return
    for q in range(4):
        for m in range(4):
            r0 = raw + 4 * (2 * m) + q
            r1 = raw + 4 * (2 * m + 1) + q
            a(f"v_perm_b32 v{ops+4*(2*q)+m}, v{r1}, v{r0}, s{sLo}")
            a(f"v_perm_b32 v{ops+4*(2*q+1)+m}, v{r1}, v{r0}, s{sHi}")

def stamp_begin(a):
    if OPT.get('stamp'):
        a("s_memtime s[64:65]")
        a("s_memrealtime s[66:67]")
        a("s_load_dwordx2 s[76:77], s[0:1], 48")
        a("s_lshl_b32 s78, s2, 4")

def stamp_mid(a):
    if OPT.get('stamp'):
        a("s_memrealtime s[80:81]")

def stamp_end(a, O, kidx):
    if OPT.get('stamp'):
        a("s_waitcnt vmcnt(0) lgkmcnt(0)")
        a("s_memtime s[68:69]")
        a("s_memrealtime s[70:71]")
        a("s_waitcnt lgkmcnt(0)")
        srd(a, 72, 76, O['ST'] + (2 << 20) + kidx * (1 << 20), 1 << 20)
        a("s_mov_b32 s64, s80")
        a("s_mov_b32 s65, s81")
        for k in range(8):
            a(f"v_mov_b32 v{16+k}, s{64+k}")
        a("s_add_u32 s78, s78, s3")
        a("s_lshl_b32 s78, s78, 5")
        a("v_mov_b32 v30, 0")
        a("s_mov_b64 exec, 1")
        for k in range(2):
            a(f"buffer_store_dwordx4 v[{16+4*k}:{19+4*k}], v30, s[72:75], s78 offen offset:{16*k}")

def layout():
    O = {}
    O['WSTR'] = 524288 + OPT['wpad']
    O['XT'] = 0
    O['WT'] = 48 << 20
    O['YT'] = O['WT'] + ((128 * O['WSTR'] + (1 << 20) - 1) >> 20 << 20) + (1 << 20)
    O['ST'] = O['YT'] + (24 << 20)
    assert O['ST'] + (8 << 20) <= (256 << 20)
    return O

def k1(a, O):
    CPW = OPT['cpw']
    NW = 1024 // CPW
    NX = 2 * 8 * 42
    WSTR = O['WSTR']
    a.raw(".p2align 8")
    a.raw(".type k1_xform_kernel,@function")
    a.lab("k1_xform_kernel")
    a(f"s_cmp_ge_u32 s2, {NW+NX}")
    a("s_cbranch_scc1 K1_END")
    stamp_begin(a)
    a("s_load_dwordx4 s[4:7], s[0:1], 0")
    a("s_load_dwordx2 s[8:9], s[0:1], 48")
    a("v_lshrrev_b32 v120, 6, v0")
    a("v_and_b32 v121, 63, v0")
    a("v_readfirstlane_b32 s3, v120")
    a("v_and_b32 v122, 15, v121")
    a("v_lshrrev_b32 v123, 4, v121")
    a("s_mov_b32 s28, 0x05040100")
    a("s_mov_b32 s29, 0x07060302")
    a("v_and_b32 v124, 3, v122")
    a("v_lshlrev_b32 v124, 2, v124")
    a("v_lshrrev_b32 v125, 3, v122")
    a("v_lshl_add_u32 v124, v125, 1, v124")
    a("s_lshl_b32 s10, s3, 4")
    a("s_add_u32 s10, s10, 1")
    a("v_add_u32 v124, s10, v124")
    a("v_bfe_u32 v125, v122, 2, 1")
    a("v_lshlrev_b32 v121, 4, v121")
    a("s_waitcnt lgkmcnt(0)")
    if OPT.get('xfirst'):
        a(f"s_add_u32 s10, s2, {NW}")
        a(f"s_sub_u32 s11, s2, {NX}")
        a(f"s_cmp_lt_u32 s2, {NX}")
        a("s_cselect_b32 s2, s10, s11")
    a(f"s_cmp_lt_u32 s2, {NW}")
    if OPT.get('skipw'):
        a("s_cbranch_scc1 K1_END")
    else:
        a("s_cbranch_scc1 K1_W")
    if OPT.get('skipx'):
        a("s_endpgm")

    a.c("x-type workgroup: 4 consecutive tiles, one 128-channel group")
    a(f"s_sub_u32 s11, s2, {NW}")
    a("s_and_b32 s12, s11, 7")
    a("s_lshr_b32 s11, s11, 3")
    a("s_cmp_ge_u32 s11, 42")
    a("s_cselect_b32 s13, 1, 0")
    a("s_mul_i32 s14, s13, 42")
    a("s_sub_u32 s11, s11, s14")
    a("s_lshl_b32 s11, s11, 2")
    a("s_add_u32 s11, s11, s3")
    a("s_mul_i32 s14, s13, 16384000")
    srd(a, 16, 4, "s14", 16384000)
    srd(a, 20, 8, O['XT'] if O['XT'] else None, XT_SIZE)
    a("v_lshlrev_b32 v126, 14, v123")
    a("v_lshl_add_u32 v126, v122, 4, v126")
    a(f"s_mul_i32 s15, s11, {48*2048}")
    a("s_lshl_b32 s24, s12, 8")
    a("s_add_u32 s15, s15, s24")
    for ks in range(2):
        for e2 in range(4):
            e = 2 * e2
            r = 32 * ks + 4 * e
            if not OPT.get('k1nold'):
                a(f"buffer_load_dwordx4 v[{r}:{r+3}], v126, s[16:19], s15 offen{NTF('ntx')}")
                a(f"buffer_load_dwordx4 v[{r+4}:{r+7}], v126, s[16:19], s15 offen offset:2048{NTF('ntx')}")
            if not (ks == 1 and e2 == 3):
                a(f"s_add_u32 s15, s15, {4096 if e2 < 3 else 32*2048 - 3*4096}")
    a("v_lshlrev_b32 v127, 3, v123")
    for ks in range(2):
        if ks == 1:
            a("v_add_u32 v127, 32, v127")
        a("v_lshlrev_b32 v112, 5, v125")
        a("v_mad_u32_u24 v113, v124, v127, v112")
        trig(a, 124, 113, 64, 72, 76, 80)
        a(f"s_lshl_b32 s24, s3, 12")
        a(f"v_add_u32 v114, s24, v121")
        a(f"ds_write_b128 v114, v[72:75] offset:{ks*2048}")
        a(f"ds_write_b128 v114, v[76:79] offset:{ks*2048+1024}")
    a("v_lshrrev_b32 v112, 1, v123")
    a(f"s_mov_b32 s24, {2*XFB}")
    a("v_mul_lo_u32 v112, v112, s24")
    a("v_lshrrev_b32 v113, 2, v122")
    a(f"s_mov_b32 s24, {XBLK}")
    a("v_mul_lo_u32 v113, v113, s24")
    a("v_add_u32 v112, v112, v113")
    a("v_and_b32 v113, 3, v122")
    a("v_and_b32 v114, 1, v123")
    a("v_lshl_add_u32 v113, v114, 2, v113")
    a("s_lshr_b32 s24, s11, 1")
    a("s_and_b32 s24, s24, 7")
    a("v_xor_b32 v113, s24, v113")
    a("v_lshl_add_u32 v120, v113, 4, v112")
    a(f"s_mul_i32 s25, s13, {XFB}")
    a(f"s_mul_i32 s24, s12, {4*XBLK}")
    a("s_add_u32 s25, s25, s24")
    a("s_lshl_b32 s24, s11, 7")
    a("s_add_u32 s25, s25, s24")
    if OPT.get('k1lin'):
        a("v_mov_b32 v120, v121")
        a(f"s_sub_u32 s25, s2, {NW}")
        a("s_lshl_b32 s25, s25, 2")
        a("s_add_u32 s25, s25, s3")
        a("s_lshl_b32 s25, s25, 14")
    a("s_waitcnt lgkmcnt(0)")
    a("s_barrier")
    a(f"s_cmp_ge_u32 s11, {NT}")
    a("s_cbranch_scc1 K1_END")
    a("s_waitcnt vmcnt(8)")
    interleave_perm(a, 0, 64, 28, 29)
    a("s_waitcnt vmcnt(0)")
    stamp_mid(a)
    interleave_perm(a, 32, 0, 28, 29)
    for rb in range(4):
        for fr in range(4):
            a(f"ds_read_b128 v[{96+4*fr}:{99+4*fr}], v121 offset:{rb*4096+fr*1024}")
        for term in range(4):
            a(f"s_waitcnt lgkmcnt({3-term})")
            ops = 64 if term < 2 else 0
            for i in range(8 if not OPT.get('k1nocomp') else 0):
                c = "0" if term == 0 else f"v[{32+4*i}:{35+4*i}]"
                a(f"v_mfma_f32_16x16x32_bf16 v[{32+4*i}:{35+4*i}], v[{96+4*term}:{99+4*term}], v[{ops+4*i}:{ops+4*i+3}], {c}")
        a("s_nop 7")
        for r in range(4):
            t = 112 + 4 * (r & 1)
            for q in range(4 if not OPT.get('k1nocomp') else 1):
                a(f"v_cvt_pk_bf16_f32 v{t+q}, v{32+4*(2*q)+r}, v{32+4*(2*q+1)+r}")
            if not OPT.get('k1nost'):
                a(f"buffer_store_dwordx4 v[{t}:{t+3}], v120, s[20:23], s25 offen{NTF('ntxs')}")
            if not (rb == 3 and r == 3):
                a(f"s_add_u32 s25, s25, {1024 if OPT.get('k1lin') else 2*2*XFB}")
    stamp_end(a, O, 0)
    a("s_endpgm")

    a.lab("K1_W")
    a.c("w-type workgroup: CPW consecutive input channels c', wave = column quarter nq")
    srd(a, 16, 6, None, 31 * 524288)
    srd(a, 20, 8, O['WT'], 128 * WSTR)
    a(f"s_mul_i32 s11, s2, {CPW}")
    a("s_lshr_b32 s12, s11, 9")
    a("s_and_b32 s13, s11, 511")
    a("s_lshl_b32 s14, s12, 19")
    a("s_lshl_b32 s15, s13, 10")
    a("s_add_u32 s14, s14, s15")
    a("s_lshl_b32 s15, s3, 8")
    a("s_add_u32 s14, s14, s15")
    a("v_and_b32 v126, 1, v123")
    a("v_lshlrev_b32 v126, 23, v126")
    a("v_lshl_add_u32 v126, v122, 4, v126")
    def wloads():
        a("s_mov_b32 s15, s14")
        for e in range(8):
            if not OPT.get('k1nold'):
                a(f"buffer_load_dwordx4 v[{4*e}:{4*e+3}], v126, s[16:19], s15 offen{NTF('ntw')}")
            if e < 7:
                a("s_add_u32 s15, s15, 0x100000")
    wloads()
    a("v_and_b32 v127, 1, v123")
    a("v_lshlrev_b32 v127, 3, v127")
    a("v_mul_u32_u24 v112, 96, v125")
    a("v_mad_u32_u24 v113, v124, v127, v112")
    trig(a, 124, 113, 64, 72, 76, 80)
    a("v_cmp_lt_u32 vcc, 1, v123")
    a("s_lshl_b32 s24, s3, 10")
    a("v_add_u32 v114, s24, v121")
    for q in range(4):
        a(f"v_cndmask_b32 v{72+q}, v{72+q}, v{76+q}, vcc")
    a("ds_write_b128 v114, v[72:75]")
    a("v_lshrrev_b32 v112, 1, v123")
    a(f"s_mov_b32 s24, {4*WSTR}")
    a("v_mul_lo_u32 v112, v112, s24")
    a("v_and_b32 v113, 1, v123")
    a("v_lshl_add_u32 v112, v113, 8, v112")
    a("v_and_b32 v113, 1, v122")
    a("v_lshl_add_u32 v124, v113, 4, v112")
    a("v_lshrrev_b32 v125, 1, v122")
    a(f"s_mul_i32 s26, s3, {WSTR}")
    a("s_lshl_b32 s24, s11, 9")
    a("s_add_u32 s26, s26, s24")
    a("s_waitcnt lgkmcnt(0)")
    a("s_barrier")
    for rb in range(4):
        a(f"ds_read_b128 v[{96+4*rb}:{99+4*rb}], v121 offset:{rb*1024}")
    a("s_mov_b32 s27, 0")
    a("s_waitcnt vmcnt(0) lgkmcnt(0)")
    stamp_mid(a)
    a.lab("K1_W_LOOP")
    a("s_add_u32 s24, s11, s27")
    a("s_and_b32 s30, s24, 3")
    a("s_lshr_b32 s24, s24, 1")
    a("s_and_b32 s24, s24, 4")
    a("s_or_b32 s30, s30, s24")
    a("v_xor_b32 v112, s30, v125")
    a("v_lshl_add_u32 v120, v112, 5, v124")
    a("s_lshl_b32 s25, s27, 9")
    a("s_add_u32 s25, s25, s26")
    if OPT.get('k1lin'):
        a("v_mov_b32 v120, v121")
        a(f"s_add_u32 s25, s11, s27")
        a("s_lshl_b32 s25, s25, 2")
        a("s_add_u32 s25, s25, s3")
        a("s_lshl_b32 s25, s25, 14")
    interleave_perm(a, 0, 32, 28, 29)
    a("s_add_u32 s27, s27, 1")
    a("s_add_u32 s14, s14, 1024")
    a(f"s_cmp_ge_u32 s27, {CPW}")
    a("s_cbranch_scc1 K1_W_NOLOAD")
    wloads()
    a.lab("K1_W_NOLOAD")
    for rb in range(4):
        for i in range(8 if not OPT.get('k1nocomp') else 0):
            a(f"v_mfma_f32_16x16x32_bf16 v[{64+4*i}:{67+4*i}], v[{96+4*rb}:{99+4*rb}], v[{32+4*i}:{35+4*i}], 0")
        a("s_nop 7")
        for r in range(4):
            t = 112 + 4 * (r & 1)
            for q in range(4 if not OPT.get('k1nocomp') else 1):
                a(f"v_cvt_pk_bf16_f32 v{t+q}, v{64+4*(2*q)+r}, v{64+4*(2*q+1)+r}")
            if not OPT.get('k1nost'):
                a(f"buffer_store_dwordx4 v[{t}:{t+3}], v120, s[20:23], s25 offen{NTF('ntws')}")
            if not (rb == 3 and r == 3):
                a(f"s_add_u32 s25, s25, {1024 if OPT.get('k1lin') else 2*4*WSTR}")
    a("s_waitcnt vmcnt(16)")
    a(f"s_cmp_lt_u32 s27, {CPW}")
    a("s_cbranch_scc1 K1_W_LOOP")
    stamp_end(a, O, 0)
    a.lab("K1_END")
    a("s_endpgm")
    return NW + NX

def descriptor(a, name, vgpr, sgpr=96):
    a.raw(".p2align 6")
    a.raw(f".amdhsa_kernel {name}")
    a.raw(f"  .amdhsa_next_free_vgpr {vgpr}")
    a.raw(f"  .amdhsa_next_free_sgpr {sgpr}")
    a.raw(f"  .amdhsa_accum_offset {min(256, (vgpr+3)//4*4)}")
    a.raw("  .amdhsa_group_segment_fixed_size 0")
    a.raw("  .amdhsa_kernarg_size 56")
    a.raw("  .amdhsa_user_sgpr_count 2")
    a.raw("  .amdhsa_user_sgpr_kernarg_segment_ptr 1")
    a.raw("  .amdhsa_system_sgpr_workgroup_id_x 1")
    a.raw(".end_amdhsa_kernel")

HEADER = """; Kernarg layout for this problem (56 bytes, ptrs only, base s[0:1]):
"""

def main():
    out = NAME + ".s"
    for arg in sys.argv[1:]:
        if "=" in arg:
            k, v = arg.split("=")
            OPT[k] = int(v)
        else:
            out = arg
    O = layout()
    import kernels2
    a = A()
    body = A()
    launches = []
    g1 = k1(body, O)
    launches.append(("k1_xform_kernel", g1, 256, OPT.get('k1lds', 16384), 128))
    launches += kernels2.emit(body, O, OPT)
    only = OPT.get('only', 0)
    a.raw(HEADER.rstrip("\n"))
    for (n, g, b, lds, v) in launches:
        a.raw(f"; @launch kernel={n} grid=({g},1,1) block=({b},1,1) lds={lds}")
    a.raw('.amdgcn_target "amdgcn-amd-amdhsa--gfx950"')
    a.raw(".text")
    for (n, g, b, lds, v) in launches:
        a.raw(f".globl {n}")
    txt = a.text() + body.text()
    d = A()
    d.raw('.section .rodata,"a"')
    for (n, g, b, lds, v) in launches:
        descriptor(d, n, v)
    txt += d.text()
    open(out, "w").write(txt)
    print("wrote", out, len(txt), "bytes;", {k: hex(v) for k, v in O.items()})

if __name__ == "__main__":
    main()
```

```python
from gen import *
import gen

SB = 37888
BOFF = 21504
NBUF = 4

def k2(a, O, OPT):
    WSTR = O['WSTR']
    a.raw(".p2align 8")
    a.raw(".type k2_gemm_kernel,@function")
    a.lab("k2_gemm_kernel")
    a("s_cmp_ge_u32 s2, 256")
    a("s_cbranch_scc1 K2_END")
    a("s_load_dwordx2 s[4:5], s[0:1], 48")
    if OPT.get('stamp'):
        a("s_memtime s[48:49]")
        a("s_memrealtime s[50:51]")
    a("v_lshrrev_b32 v1, 6, v0")
    a("v_and_b32 v2, 63, v0")
    a("v_readfirstlane_b32 s3, v1")
    a("s_and_b32 s6, s2, 7")
    a("s_lshl_b32 s6, s6, 2")
    a("s_lshr_b32 s7, s2, 6")
    a("s_add_u32 s6, s6, s7")
    a("s_lshr_b32 s7, s2, 3")
    a("s_and_b32 s7, s7, 7")
    a("s_lshr_b32 s20, s7, 2")
    a("s_and_b32 s21, s7, 3")
    a("s_lshl_b32 s22, s6, 1")
    a("s_add_u32 s22, s22, s20")
    a("s_lshl_b32 s23, s6, 2")
    a("s_add_u32 s23, s23, s21")
    a(f"s_mul_i32 s24, s22, {XFB}")
    a(f"s_mul_i32 s25, s23, {WSTR}")
    a(f"s_add_u32 s25, s25, {O['WT']}")
    a(f"s_mul_i32 s26, s22, {YFB}")
    a(f"s_add_u32 s26, s26, {O['YT']}")
    if O['XT']:
        a(f"s_add_u32 s24, s24, {O['XT']}")
    a("s_waitcnt lgkmcnt(0)")
    srd(a, 8, 4, "s24", XFB)
    srd(a, 12, 4, "s25", 524288)
    srd(a, 16, 4, "s26", YFB)
    a("v_and_b32 v3, 15, v2")
    a("v_lshrrev_b32 v4, 4, v2")
    a("v_lshlrev_b32 v1, 4, v2")
    a("v_lshrrev_b32 v5, 1, v3")
    a("v_xor_b32 v5, v5, v4")
    a("v_lshlrev_b32 v5, 4, v5")
    a("v_lshl_add_u32 v8, v3, 7, v5")
    a("v_lshrrev_b32 v5, 2, v3")
    a("v_lshl_add_u32 v6, v4, 3, v5")
    a("v_lshlrev_b32 v6, 9, v6")
    a("v_and_b32 v7, 1, v4")
    a("v_lshl_or_b32 v5, v7, 2, v5")
    a("s_and_b32 s27, s3, 3")
    a("s_lshl_b32 s28, s27, 1")
    a("v_xor_b32 v5, s28, v5")
    a("v_lshl_add_u32 v6, v5, 5, v6")
    a("v_and_b32 v5, 3, v3")
    a("v_lshl_add_u32 v6, v5, 3, v6")
    a(f"v_add_u32 v9, {BOFF}, v6")
    a("s_lshl_b32 s28, s21, 7")
    a("s_lshl_b32 s29, s27, 5")
    a("s_add_u32 s28, s28, s29")
    a("v_add_u32 v5, s28, v3")
    a("v_lshlrev_b32 v5, 2, v5")
    a("v_lshl_add_u32 v10, v4, 13, v5")
    ACC = 128
    for r in range(96):
        a(f"v_mov_b32 v{ACC+r}, 0")
    a("s_cmp_ge_u32 s3, 4")
    a("s_cbranch_scc1 K2_MH1")
    k2_wave(a, 0, O, OPT)
    a.lab("K2_MH1")
    k2_wave(a, 1, O, OPT)
    a.lab("K2_END")
    a("s_endpgm")

def k2_wave(a, mh, O, OPT):
    nrb = 6 if mh == 0 else 5
    p = 3 if mh == 0 else 2
    rb0 = 0 if mh == 0 else 6
    ACC = 128
    AF = 16
    BS = [64, 88]
    vAr, vAi, vB0, vB1 = 11, 12, 13, 14
    tag = f"K2M{mh}"
    if mh == 0:
        a("s_lshl_b32 s30, s27, 12")
        a(f"s_add_u32 s32, s30, {BOFF}")
        a("s_lshl_b32 s31, s27, 8")
        a("s_add_u32 s31, s31, 20480")
        a("s_mov_b32 s33, s31")
        strA, strB = 16384, XBLK
    else:
        a("s_mul_i32 s30, s27, 5120")
        a("s_mov_b32 s32, s30")
        a("s_add_u32 s31, s30, 4096")
        a("s_mov_b32 s33, s31")
        strA, strB = XBLK, XBLK
    srdM = "s[12:15]" if mh == 0 else "s[8:11]"

    def dma_list(sbuf):
        g = []
        g.append([f"s_add_u32 m0, s{sbuf}, s32", "s_nop 0", f"buffer_load_dwordx4 v1, {srdM}, s30 offen{NTF('ntk2')} lds"])
        for k in range(1, 4):
            g.append([f"buffer_load_dwordx4 v1, {srdM}, s30 offen offset:{1024*k}{NTF('ntk2')} lds"])
        if mh == 0:
            g.append([f"s_add_u32 m0, s{sbuf}, s33", "s_mov_b64 exec, 0xffff",
                      f"buffer_load_dwordx4 v1, s[8:11], s31 offen{NTF('ntk2')} lds", "s_mov_b64 exec, -1"])
        else:
            g.append([f"s_add_u32 m0, s{sbuf}, s33", "s_nop 0",
                      f"buffer_load_dwordx4 v1, s[8:11], s31 offen{NTF('ntk2')} lds"])
        g.append([f"s_add_u32 s30, s30, {strA}", f"s_add_u32 s31, s31, {strB}"])
        return g

    def a_reads(rb):
        off = (rb0 + rb) * 2048
        return [f"ds_read_b128 v[{AF+8*rb}:{AF+8*rb+3}], v{vAr} offset:{off}",
                f"ds_read_b128 v[{AF+8*rb+4}:{AF+8*rb+7}], v{vAi} offset:{off}"]
    def b_reads(B):
        r = []
        for cb, vb in ((0, vB0), (1, vB1)):
            for ri in range(2):
                d = B + 12 * cb + 4 * ri
                for t in range(2):
                    r.append(f"ds_read_b64_tr_b16 v[{d+2*t}:{d+2*t+1}], v{vb} offset:{ri*256+t*2048}")
        return r
    def b_xor(B):
        return [f"v_xor_b32 v{B+12*cb+8+q}, s34, v{B+12*cb+4+q}" for cb in range(2) for q in range(4)]
    def addr_upd(sbuf):
        return [f"v_add_u32 v{vAr}, s{sbuf}, v8", f"v_add_u32 v{vB0}, s{sbuf}, v9",
                f"v_xor_b32 v{vAi}, 64, v{vAr}", f"v_xor_b32 v{vB1}, 32, v{vB0}"]
    def mfmas(rb, B):
        Ar, Ai = AF + 8 * rb, AF + 8 * rb + 4
        def acc(cb, ri): return ACC + ((rb * 2 + cb) * 2 + ri) * 4
        def m(d, x, y):
            if OPT.get('k2swap'): x, y = y, x
            return f"v_mfma_f32_16x16x32_bf16 v[{d}:{d+3}], v[{x}:{x+3}], v[{y}:{y+3}], v[{d}:{d+3}]"
        Wr = lambda cb: B + 12 * cb
        Wi = lambda cb: B + 12 * cb + 4
        nWi = lambda cb: B + 12 * cb + 8
        if OPT.get('k2ord') == 1:
            return [m(acc(0,0), Ar, Wr(0)), m(acc(0,1), Ai, Wr(0)), m(acc(1,0), Ar, Wr(1)), m(acc(1,1), Ai, Wr(1)),
                    m(acc(0,1), Ar, Wi(0)), m(acc(0,0), Ai, nWi(0)), m(acc(1,1), Ar, Wi(1)), m(acc(1,0), Ai, nWi(1))]
        if OPT.get('k2ord') == 2:
            return [m(acc(0,0), Ar, Wr(0)), m(acc(1,0), Ar, Wr(1)), m(acc(0,1), Ar, Wi(0)), m(acc(1,1), Ar, Wi(1)),
                    m(acc(0,1), Ai, Wr(0)), m(acc(1,1), Ai, Wr(1)), m(acc(0,0), Ai, nWi(0)), m(acc(1,0), Ai, nWi(1))]
        return [m(acc(0,0), Ar, Wr(0)), m(acc(0,1), Ar, Wi(0)), m(acc(1,0), Ar, Wr(1)), m(acc(1,1), Ar, Wi(1)),
                m(acc(0,0), Ai, nWi(0)), m(acc(0,1), Ai, Wr(0)), m(acc(1,0), Ai, nWi(1)), m(acc(1,1), Ai, Wr(1))]

    a("s_mov_b32 s34, 0x80008000")
    a("s_mov_b32 s35, 0")
    for st in range(NBUF):
        for grp in dma_list(35):
            for ins in grp: a(ins)
        a(f"s_add_u32 s35, s35, {SB}")
    a("s_mov_b32 s35, 0")
    a(f"s_mov_b32 s36, {SB}")
    a("s_mov_b32 s37, 0")
    for ins in addr_upd(35): a(ins)
    a("s_waitcnt vmcnt(15)")
    a("s_barrier")
    if OPT.get('stamp'):
        a("s_memtime s[44:45]")
        a("s_memrealtime s[46:47]")
    for ins in b_reads(BS[0]): a(ins)
    for rb in range(nrb - 1):
        for ins in a_reads(rb): a(ins)
        if rb == 1:
            a("s_waitcnt lgkmcnt(4)")
            for ins in b_xor(BS[0]): a(ins)
    a.lab(f"{tag}_LOOP")
    for half in range(2):
        Bc, Bn = BS[half], BS[1 - half]
        a(f"s_waitcnt lgkmcnt({(nrb-1-p)*2})")
        side = {0: [a_reads(nrb-1)[0]], 1: [a_reads(nrb-1)[1]]}
        k = 0
        for rb in range(p):
            for ins in mfmas(rb, Bc):
                a(ins)
                for s_ in side.get(k, []):
                    if OPT.get('k2nolds') and s_.startswith('ds_read'): continue
                    a(s_)
                k += 1
        if OPT.get('k2nodma'):
            a("s_waitcnt lgkmcnt(0)")
        else:
            a("s_waitcnt vmcnt(10) lgkmcnt(0)")
        if not OPT.get('k2nobar'):
            a("s_barrier")
        nslot = (nrb - p) * 8
        side = {i: [] for i in range(nslot)}
        au = addr_upd(36)
        side[0] += au[:2]; side[1] += au[2:]
        br = b_reads(Bn)
        for i in range(8): side[2 + i // 2].append(br[i])
        slot = 6
        for rb in range(p):
            side[slot] += a_reads(rb); slot += 1
        slot = max(slot, 8)
        side[slot] += a_reads(p); nA_after_B = 2 * (p + 1)
        slot += 1
        dl = dma_list(35)
        if OPT.get('k2nodma'):
            dl = []
        dslot = slot
        for grp in dl:
            side[min(dslot, nslot - 1)] += grp
            dslot += 1
        xs = max(16, dslot - 1) if nslot > 16 else nslot - 5
        xs = 16
        side[xs].append(f"s_waitcnt lgkmcnt({nA_after_B})")
        xr = b_xor(Bn)
        for i in range(8): side[xs + i // 2].append(xr[i])
        for rb in range(p + 1, nrb - 1):
            sl = (rb - p + 1) * 8
            side[max(sl, xs + 4)] += a_reads(rb)
        side[nslot - 1] += ["s_mov_b32 s35, s36", f"s_add_u32 s36, s36, {SB}",
                            f"s_cmp_eq_u32 s36, {NBUF*SB}", "s_cselect_b32 s36, 0, s36"]
        k = 0
        for rb in range(p, nrb):
            for ins in mfmas(rb, Bc):
                a(ins)
                for s_ in side[k]:
                    if OPT.get('k2nolds') and s_.startswith('ds_read'): continue
                    a(s_)
                k += 1
    a("s_add_u32 s37, s37, 1")
    a("s_cmp_lt_u32 s37, 16")
    a(f"s_cbranch_scc1 {tag}_LOOP")
    if OPT.get('stamp'):
        a("s_memtime s[52:53]")
        a("s_memrealtime s[54:55]")
    a("s_nop 7")
    a("s_nop 1")
    n = 0
    for rb in range(nrb):
        for i in range(4):
            if i % 2 == 0:
                a(f"s_mov_b32 s38, {(16*(rb0+rb)+i)*2048}")
            for cb in range(2):
                t = 16 + (n % 8); n += 1
                yr = ACC + ((rb * 2 + cb) * 2 + 0) * 4 + i
                yi = ACC + ((rb * 2 + cb) * 2 + 1) * 4 + i
                a(f"v_cvt_pk_bf16_f32 v{t}, v{yr}, v{yi}")
                a(f"buffer_store_dword v{t}, v10, s[16:19], s38 offen offset:{(i&1)*2048+cb*64}{NTF('ntys')}")
    if OPT.get('stamp'):
        a("s_waitcnt vmcnt(0)")
        a("s_memtime s[56:57]")
        a("s_memrealtime s[58:59]")
        a("s_waitcnt lgkmcnt(0)")
        srd(a, 60, 4, O['ST'] + (1 << 20), 1 << 20)
        for k in range(12):
            a(f"v_mov_b32 v{16+k}, s{48+k}")
        for k in range(4):
            a(f"v_mov_b32 v{28+k}, s{44+k}")
        a("s_lshl_b32 s38, s2, 3")
        a("s_add_u32 s38, s38, s3")
        a("s_lshl_b32 s38, s38, 6")
        a("v_mov_b32 v40, 0")
        a("s_mov_b64 exec, 1")
        for k in range(4):
            a(f"buffer_store_dwordx4 v[{16+4*k}:{19+4*k}], v40, s[60:63], s38 offen offset:{16*k}")
    a("s_endpgm")

def k34(a, O, OPT, final):
    name = "k4_out_kernel" if final else "k3_stats_kernel"
    tag = "K4" if final else "K3"
    a.raw(".p2align 8")
    a.raw(f".type {name},@function")
    a.lab(name)
    a("s_cmp_ge_u32 s2, 256")
    a(f"s_cbranch_scc1 {tag}_END")
    stamp_begin(a)
    a("s_load_dwordx2 s[4:5], s[0:1], 48")
    if final:
        a("s_load_dwordx4 s[40:43], s[0:1], 16")
        a("s_load_dwordx2 s[44:45], s[0:1], 32")
    a("v_lshrrev_b32 v1, 6, v0")
    a("v_and_b32 v2, 63, v0")
    a("v_readfirstlane_b32 s3, v1")
    a("s_and_b32 s6, s2, 15")
    a("s_lshr_b32 s7, s2, 4")
    a("s_lshr_b32 s20, s6, 3")
    a("s_and_b32 s21, s6, 7")
    a("s_mul_i32 s22, s7, 11")
    a("s_mul_i32 s23, s7, 10")
    a("s_add_u32 s23, s23, 7")
    a("s_cmp_lt_u32 s7, 7")
    a("s_cselect_b32 s22, s22, s23")
    a("s_cselect_b32 s23, 11, 10")
    a("s_add_u32 s22, s22, s3")
    a("v_and_b32 v3, 15, v2")
    a("v_lshrrev_b32 v4, 4, v2")
    a("v_lshlrev_b32 v5, 4, v2")
    LB = 16
    GF = 48
    ACC = 96
    AB = 144
    T = 152
    a(f"s_mov_b32 s24, {4*2*YFB}")
    a("v_mul_lo_u32 v6, v4, s24")
    a("v_lshl_add_u32 v6, v3, 4, v6")
    a(f"s_mul_i32 s25, s20, {NT}")
    a("s_add_u32 s25, s25, s22")
    a("s_lshl_b32 s25, s25, 11")
    a("s_lshl_b32 s24, s21, 8")
    a("s_add_u32 s25, s25, s24")
    a("s_waitcnt lgkmcnt(0)")
    srd(a, 8, 4, O['YT'], YT_SIZE)
    srd(a, 12, 4, O['ST'], 256 * 512)
    a("s_cmp_lt_u32 s3, s23")
    a(f"s_cbranch_scc0 {tag}_NOLOAD")
    for ks in range(2):
        for r in range(4):
            d = LB + (ks * 4 + r) * 4
            a(f"buffer_load_dwordx4 v[{d}:{d+3}], v6, s[8:11], s25 offen{NTF('ntyl')}")
            if not (ks == 1 and r == 3):
                a(f"s_add_u32 s25, s25, {2*YFB if r < 3 else (16-3)*2*YFB}")
    a.lab(f"{tag}_NOLOAD")
    SL = 12288
    t0 = 1 if final else 0
    if final:
        a("s_cmp_lg_u32 s3, 0")
        a(f"s_cbranch_scc1 {tag}_TAB")
        srd(a, 16, 40, None, 1024)
        srd(a, 28, 42, None, 1024)
        a("v_lshlrev_b32 v7, 2, v2")
        a("s_lshl_b32 s24, s6, 13")
        for gg in range(16):
            a(f"buffer_load_dword v{ACC+gg}, v7, s[12:15], s24 offen offset:{(gg&7)*512}")
            a(f"buffer_load_dword v{ACC+16+gg}, v7, s[12:15], s24 offen offset:{(gg&7)*512+256}")
            if gg == 7:
                a("s_add_u32 s24, s24, 4096")
        a("s_lshl_b32 s24, s21, 7")
        a("v_lshlrev_b32 v8, 1, v2")
        a("buffer_load_ushort v9, v8, s[16:19], s24 offen")
        a("buffer_load_ushort v10, v8, s[28:31], s24 offen")
        a("s_waitcnt vmcnt(0)")
        for st in (8, 4, 2, 1):
            for i in range(st):
                a(f"v_add_f32 v{ACC+i}, v{ACC+i}, v{ACC+st+i}")
                a(f"v_add_f32 v{ACC+16+i}, v{ACC+16+i}, v{ACC+16+st+i}")
        a(f"v_mul_f32 v11, {hexf(1.0/L)}, v{ACC}")
        a(f"v_mul_f32 v12, {hexf(1.0/L)}, v{ACC+16}")
        a("v_fma_f32 v12, -v11, v11, v12")
        a("v_max_f32 v12, 0, v12")
        a(f"v_add_f32 v12, {hexf(1e-5)}, v12")
        a("v_sqrt_f32 v12, v12")
        a("v_lshlrev_b32 v9, 16, v9")
        a("v_rcp_f32 v12, v12")
        a("v_lshlrev_b32 v10, 16, v10")
        a("v_mul_f32 v9, v9, v12")
        a("v_fma_f32 v10, -v11, v9, v10")
        a(f"ds_write_b32 v7, v9 offset:{SL}")
        a(f"ds_write_b32 v7, v10 offset:{SL+256}")
        a(f"s_branch {tag}_TABDONE")
        a.lab(f"{tag}_TAB")
    a(f"s_cmp_ge_u32 s3, {t0+6}")
    a(f"s_cbranch_scc1 {tag}_TABDONE")
    a(f"s_sub_u32 s27, s3, {t0}")
    a("s_lshr_b32 s28, s27, 1")
    a("s_and_b32 s29, s27, 1")
    a("s_lshl_b32 s30, s28, 4")
    a("v_add_u32 v8, s30, v3")
    a("s_lshl_b32 s30, s29, 5")
    a("s_add_u32 s30, s30, 1")
    a("v_lshlrev_b32 v9, 3, v4")
    a("v_add_u32 v9, s30, v9")
    a("v_mul_u32_u24 v9, v8, v9")
    a("v_lshlrev_b32 v8, 1, v8")
    for e in range(8):
        a(f"v_mad_u32_u24 v{GF+e}, v8, {e>>1}, v9")
        if e & 1:
            a(f"v_add_u32 v{GF+e}, 32, v{GF+e}")
    trig_core(a, GF, GF + 8, GF + 12, GF + 16, scale="0x3d000000")
    a("s_lshl_b32 s30, s27, 11")
    a("v_add_u32 v10, s30, v5")
    a(f"ds_write_b128 v10, v[{GF+8}:{GF+11}]")
    a(f"ds_write_b128 v10, v[{GF+12}:{GF+15}] offset:1024")
    a.lab(f"{tag}_TABDONE")
    a("s_waitcnt lgkmcnt(0)")
    a("s_barrier")
    a("s_cmp_lt_u32 s3, s23")
    if final:
        a(f"s_cbranch_scc0 {tag}_END")
    else:
        a(f"s_cbranch_scc0 {tag}_IDLE")
    for fr in range(12):
        a(f"ds_read_b128 v[{GF+4*fr}:{GF+4*fr+3}], v5 offset:{fr*1024}")
    if final:
        a("v_lshlrev_b32 v7, 4, v3")
        a(f"ds_read_b128 v[{AB}:{AB+3}], v7 offset:{SL}")
        a(f"ds_read_b128 v[{AB+4}:{AB+7}], v7 offset:{SL+256}")
    a("s_waitcnt vmcnt(0)")
    stamp_mid(a)
    for blk in range(2):
        b0 = LB + blk * 16
        for r in range(4):
            for i in range(r + 1, 4):
                a(f"v_swap_b32 v{b0+4*r+i}, v{b0+4*i+r}")
    a("s_waitcnt lgkmcnt(0)")
    if not final:
        a(f"s_mul_i32 s24, s22, {V}")
        a(f"s_sub_u32 s24, {L}, s24")
        a(f"s_cmp_ge_u32 s24, {V}")
        a(f"s_cbranch_scc1 {tag}_FULL")
        for rb in range(3):
            a(f"v_add_u32 v7, {16*rb}, v3")
            a("v_cmp_gt_u32 vcc, s24, v7")
            a("s_nop 1")
            for q in range(16):
                r = GF + rb * 16 + q
                a(f"v_cndmask_b32 v{r}, 0, v{r}, vcc")
        a.lab(f"{tag}_FULL")
    a("s_nop 1")
    for rb in range(3):
        for ks in range(2):
            for hl in range(2):
                G = GF + ((rb * 2 + ks) * 2 + hl) * 4
                for i in range(4):
                    d = ACC + (rb * 4 + i) * 4
                    Bq = LB + (ks * 4 + i) * 4
                    c = "0" if (ks == 0 and hl == 0) else f"v[{d}:{d+3}]"
                    a(f"v_mfma_f32_16x16x32_bf16 v[{d}:{d+3}], v[{G}:{G+3}], v[{Bq}:{Bq+3}], {c}")
    if not final:
        a("s_nop 7")
        for i in range(4):
            x = ACC + i * 4
            a(f"v_mov_b32 v{16+i}, v{x}")
            a(f"v_mul_f32 v{20+i}, v{x}, v{x}")
        for rb in range(3):
            for r in range(4):
                if rb == 0 and r == 0: continue
                for i in range(4):
                    x = ACC + (rb * 4 + i) * 4 + r
                    a(f"v_add_f32 v{16+i}, v{16+i}, v{x}")
                    a(f"v_fmac_f32 v{20+i}, v{x}, v{x}")
        for sw in ("v_permlane32_swap_b32", "v_permlane16_swap_b32"):
            for i in range(8):
                a(f"v_mov_b32 v{24+i}, v{16+i}")
            a("s_nop 0")
            for i in range(8):
                a(f"{sw} v{16+i}, v{24+i}")
            for i in range(8):
                a(f"v_add_f32 v{16+i}, v{16+i}, v{24+i}")
        a(f"s_branch {tag}_WR")
        a.lab(f"{tag}_IDLE")
        for r in range(8):
            a(f"v_mov_b32 v{16+r}, 0")
        a.lab(f"{tag}_WR")
        a("s_lshl_b32 s24, s3, 9")
        a("v_lshlrev_b32 v7, 4, v3")
        a("v_add_u32 v7, s24, v7")
        a(f"ds_write_b128 v7, v[16:19] offset:{SL}")
        a(f"ds_write_b128 v7, v[20:23] offset:{SL+256}")
        a("s_waitcnt lgkmcnt(0)")
        a("s_barrier")
        a("s_cmp_ge_u32 s3, 2")
        a(f"s_cbranch_scc1 {tag}_END")
        a("v_lshlrev_b32 v7, 2, v0")
        for k in range(12):
            a(f"ds_read_b32 v{32+k}, v7 offset:{SL+k*512}")
        a("s_waitcnt lgkmcnt(0)")
        for k in range(1, 12):
            a(f"v_add_f32 v32, v32, v{32+k}")
        a("s_lshl_b32 s24, s6, 4")
        a("s_add_u32 s24, s24, s7")
        a("s_lshl_b32 s24, s24, 9")
        a("buffer_store_dword v32, v7, s[12:15], s24 offen")
        stamp_end(a, O, 2)
    else:
        a(f"s_mul_i32 s24, s20, {L*1024}")
        srd(a, 16, 44, "s24", L * 1024)
        a("v_lshlrev_b32 v7, 12, v4")
        a("v_lshl_add_u32 v7, v3, 3, v7")
        a("s_lshl_b32 s24, s21, 7")
        a("v_add_u32 v7, s24, v7")
        a(f"s_mul_i32 s25, s22, {V*1024}")
        a(f"s_mov_b32 s30, {hexf(-2.302208198)}")
        a(f"s_mov_b32 s31, {hexf(-2.302208198*0.044715)}")
        a("v_mov_b32 v15, s30")
        a("s_nop 3")
        n = 0
        for rb in range(3):
            for rp in range(2):
                t = 16 + (n % 2) * 20; n += 1
                vals = [(r, i) for r in (2 * rp, 2 * rp + 1) for i in range(4)]
                for k, (r, i) in enumerate(vals):
                    x = ACC + (rb * 4 + i) * 4 + r
                    a(f"v_fma_f32 v{t+k}, v{x}, v{AB+i}, v{AB+4+i}")
                for k in range(8):
                    a(f"v_mul_f32 v{t+8+k}, v{t+k}, v{t+k}")
                for k in range(8):
                    a(f"v_fma_f32 v{t+8+k}, v{t+8+k}, s31, v15")
                for k in range(8):
                    a(f"v_mul_f32 v{t+8+k}, v{t+8+k}, v{t+k}")
                for k in range(8):
                    a(f"v_exp_f32 v{t+8+k}, v{t+8+k}")
                for k in range(8):
                    a(f"v_add_f32 v{t+8+k}, 1.0, v{t+8+k}")
                for k in range(8):
                    a(f"v_rcp_f32 v{t+8+k}, v{t+8+k}")
                for k in range(8):
                    a(f"v_mul_f32 v{t+k}, v{t+k}, v{t+8+k}")
                for h in range(2):
                    a(f"v_cvt_pk_bf16_f32 v{t+16+2*h}, v{t+4*h}, v{t+4*h+1}")
                    a(f"v_cvt_pk_bf16_f32 v{t+17+2*h}, v{t+4*h+2}, v{t+4*h+3}")
                    a(f"buffer_store_dwordx2 v[{t+16+2*h}:{t+17+2*h}], v7, s[16:19], s25 offen offset:{h*1024}{NTF('nto')}")
                a("s_add_u32 s25, s25, 2048")
            a(f"s_add_u32 s25, s25, {12*1024}")
        stamp_end(a, O, 3)
    a.lab(f"{tag}_END")
    a("s_endpgm")

import struct
def hexf(x):
    return "0x%08x" % struct.unpack("<I", struct.pack("<f", x))[0]

def emit(a, O, OPT):
    gen.OPT.update(OPT)
    if OPT.get('fused'):
        l2 = None
    elif OPT.get('k2b'):
        import kernels3
        l2 = kernels3.k2b(a, O, OPT)
    else:
        k2(a, O, OPT)
        l2 = ("k2_gemm_kernel", 256, 512, NBUF * SB, 256)
    k34(a, O, OPT, False)
    k34(a, O, OPT, True)
    return ([l2] if l2 else []) + [
            ("k3_stats_kernel", 256, 768, 12288 + 6144, 168),
            ("k4_out_kernel", 256, 768, 12288 + 512, 168)]
```

```python
from gen import *
import gen

AOFF_ROWS = 176
BOFF2 = AOFF_ROWS * 128
SB2 = BOFF2 + 16384
NBUF2 = 4
SYNC = NBUF2 * SB2
LDS2 = SYNC + 64

def k2b_setup(a, O, OPT):
    WSTR = O['WSTR']
    a("s_load_dwordx2 s[4:5], s[0:1], 48")
    if OPT.get('stamp'):
        a("s_memtime s[48:49]")
        a("s_memrealtime s[50:51]")
    a("v_lshrrev_b32 v1, 6, v0")
    a("v_and_b32 v2, 63, v0")
    a("v_readfirstlane_b32 s3, v1")
    a("s_and_b32 s6, s2, 7")
    a("s_lshl_b32 s6, s6, 2")
    a("s_lshr_b32 s7, s2, 6")
    a("s_add_u32 s6, s6, s7")
    a("s_lshr_b32 s7, s2, 3")
    a("s_and_b32 s7, s7, 7")
    a("s_lshr_b32 s20, s7, 2")
    a("s_and_b32 s21, s7, 3")
    a("s_lshl_b32 s22, s6, 1")
    a("s_add_u32 s22, s22, s20")
    a("s_lshl_b32 s23, s6, 2")
    a("s_add_u32 s23, s23, s21")
    a(f"s_mul_i32 s24, s22, {XFB}")
    a(f"s_mul_i32 s25, s23, {WSTR}")
    a(f"s_add_u32 s25, s25, {O['WT']}")
    a(f"s_mul_i32 s26, s22, {YFB}")
    a(f"s_add_u32 s26, s26, {O['YT']}")
    if O['XT']:
        a(f"s_add_u32 s24, s24, {O['XT']}")
    a("s_waitcnt lgkmcnt(0)")
    srd(a, 8, 4, "s24", XFB)
    srd(a, 12, 4, "s25", 524288)
    srd(a, 16, 4, "s26", YFB)

def consumer(a, O, OPT):
    AF, BP, BQ, NW, ACC = 8, 40, 56, 72, 80
    vT, vL, vAr, vAi, vB, vPA, vY = 0, 1, 2, 3, 4, 5, 6
    nt = NTF('ntk2')
    a("v_and_b32 v8, 15, v2")
    a("v_lshrrev_b32 v9, 4, v2")
    a(f"v_lshlrev_b32 v{vL}, 4, v2")
    a("s_mul_i32 s30, s3, 5120")
    a("s_mov_b32 s36, s30")
    a("s_lshl_b32 s31, s3, 12")
    a(f"s_add_u32 s37, s31, {BOFF2}")
    a("s_lshl_b32 s33, s3, 8")
    a("s_add_u32 s33, s33, 20480")
    a("s_mov_b32 s38, s33")
    a("s_mov_b32 s44, 0xffff")
    a("s_cmp_eq_u32 s3, 3")
    a("s_cselect_b32 s44, 0xff, s44")
    a("s_mov_b32 s45, 0")
    def dma_groups(sbuf):
        g = []
        g.append([f"s_add_u32 m0, s{sbuf}, s36", "s_nop 0", f"buffer_load_dwordx4 v{vL}, s[8:11], s30 offen{nt} lds"])
        for k in range(1, 4):
            g.append([f"buffer_load_dwordx4 v{vL}, s[8:11], s30 offen offset:{1024*k}{nt} lds"])
        g.append(["s_add_u32 m0, m0, 4096", "s_add_u32 s34, s30, 4096", f"buffer_load_dwordx4 v{vL}, s[8:11], s34 offen{nt} lds"])
        g.append([f"s_add_u32 m0, s{sbuf}, s37", f"s_add_u32 s30, s30, {XBLK}", f"buffer_load_dwordx4 v{vL}, s[12:15], s31 offen{nt} lds"])
        for k in range(1, 4):
            g.append([f"buffer_load_dwordx4 v{vL}, s[12:15], s31 offen offset:{1024*k}{nt} lds"])
        g.append([f"s_add_u32 m0, s{sbuf}, s38", "s_mov_b64 exec, s[44:45]",
                  f"buffer_load_dwordx4 v{vL}, s[8:11], s33 offen{nt} lds", "s_mov_b64 exec, -1",
                  "s_add_u32 s31, s31, 16384", f"s_add_u32 s33, s33, {XBLK}"])
        return g
    a("s_mov_b32 s39, 0")
    spread = 1
    for st in range(NBUF2 - (1 if spread else 0)):
        for grp in dma_groups(39):
            for ins in grp: a(ins)
        a(f"s_add_u32 s39, s39, {SB2}")
    a("v_lshrrev_b32 v10, 1, v8")
    a("v_xor_b32 v10, v10, v9")
    a("v_lshlrev_b32 v10, 4, v10")
    a(f"v_lshl_add_u32 v{vAr}, v8, 7, v10")
    a(f"v_xor_b32 v{vAi}, 64, v{vAr}")
    a("v_lshrrev_b32 v10, 2, v8")
    a("v_lshl_add_u32 v11, v9, 3, v10")
    a("v_lshlrev_b32 v11, 9, v11")
    a("v_and_b32 v12, 1, v9")
    a("v_lshl_or_b32 v10, v12, 2, v10")
    a("s_lshl_b32 s28, s3, 1")
    a("v_xor_b32 v10, s28, v10")
    a("v_lshl_add_u32 v11, v10, 5, v11")
    a("v_and_b32 v10, 3, v8")
    a("v_lshl_add_u32 v11, v10, 3, v11")
    a(f"v_add_u32 v{vB}, {BOFF2}, v11")
    a("v_and_b32 v10, 3, v8")
    a("v_lshlrev_b32 v10, 2, v10")
    a(f"v_add_u32 v{vPA}, {SYNC}, v10")
    a("s_lshl_b32 s28, s3, 2")
    a(f"s_add_u32 s28, s28, {SYNC}")
    a("v_mov_b32 v7, s28")
    a("s_lshl_b32 s28, s21, 7")
    a("s_lshl_b32 s29, s3, 5")
    a("s_add_u32 s28, s28, s29")
    a("v_add_u32 v10, s28, v8")
    a("v_lshlrev_b32 v10, 2, v10")
    a(f"v_lshl_add_u32 v{vY}, v9, 13, v10")
    a("v_mov_b32 v12, 0"); a("v_mov_b32 v13, 0"); a("v_mov_b32 v14, 0"); a("v_mov_b32 v15, 0")
    a(f"s_mul_i32 s28, s3, {SB2}")
    a(f"s_add_u32 s28, s28, {167*128}")
    a(f"v_add_u32 v10, s28, v{vL}")
    a("ds_write_b128 v10, v[12:15]")
    a("s_mov_b64 exec, 0xff")
    a("ds_write_b128 v10, v[12:15] offset:1024")
    a("s_mov_b64 exec, -1")
    a("s_lshl_b32 s46, 1, s3")
    a("s_mov_b32 s47, 0")
    for r in range(176):
        a(f"v_mov_b32 v{ACC+r}, 0")
    a("s_mov_b32 s35, 0x80008000")

    def a_reads(rb):
        s = AF + 8 * (rb % 4)
        return [f"ds_read_b128 v[{s}:{s+3}], v{vAr} offset:{rb*2048}",
                f"ds_read_b128 v[{s+4}:{s+7}], v{vAi} offset:{rb*2048}"]
    def b_reads(B):
        r = []
        for cb in range(2):
            for ri in range(2):
                d = B + 8 * cb + 4 * ri
                for t in range(2):
                    r.append(f"ds_read_b64_tr_b16 v[{d+2*t}:{d+2*t+1}], v{vB} offset:{ri*256+t*2048}")
            r.append(f"v_xor_b32 v{vB}, 32, v{vB}")
        return r
    def b_xor(B, cb):
        return [f"v_xor_b32 v{NW+4*cb+q}, s35, v{B+8*cb+4+q}" for q in range(4)]
    def mfmas(rb, B):
        s = AF + 8 * (rb % 4)
        Ar, Ai = s, s + 4
        def acc(cb, ri): return ACC + ((rb * 2 + cb) * 2 + ri) * 4
        def m(d, x, y): return f"v_mfma_f32_16x16x32_bf16 v[{d}:{d+3}], v[{x}:{x+3}], v[{y}:{y+3}], v[{d}:{d+3}]"
        Wr = lambda cb: B + 8 * cb
        Wi = lambda cb: B + 8 * cb + 4
        nWi = lambda cb: NW + 4 * cb
        return [m(acc(0,0), Ar, Wr(0)), m(acc(0,1), Ar, Wi(0)), m(acc(1,0), Ar, Wr(1)), m(acc(1,1), Ar, Wi(1)),
                m(acc(0,0), Ai, nWi(0)), m(acc(0,1), Ai, Wr(0)), m(acc(1,0), Ai, nWi(1)), m(acc(1,1), Ai, Wr(1))]
    vWA = 7
    slow = []
    def arrive():
        return [f"v_mov_b32 v{vT}, s40", f"ds_write_b32 v{vWA}, v{vT}"]
    npoll = [0]
    def poll_issue(vP):
        return [f"ds_read_b32 v{vP}, v{vPA}"]
    def poll_check(vP):
        n = npoll[0]; npoll[0] += 1
        slow.extend([f"K2B_S{n}:", f"ds_read_b32 v{vP}, v{vPA}", "s_waitcnt lgkmcnt(0)", f"v_cmp_gt_u32 vcc, s40, v{vP}",
                     "s_nop 1", f"s_cbranch_vccnz K2B_S{n}", f"s_branch K2B_Q{n}"])
        return (["s_waitcnt lgkmcnt(0)", f"v_cmp_gt_u32 vcc, s40, v{vP}"], [f"s_cbranch_vccnz K2B_S{n}", f"K2B_Q{n}:"])
    def emit(ins):
        if ins.endswith(":"): a.lab(ins[:-1])
        else: a(ins)

    a("s_mov_b32 s40, 1")
    a(f"s_waitcnt vmcnt({20 if spread else 30}) lgkmcnt(0)")
    a("s_mov_b64 exec, 0xf")
    a(f"ds_write_b32 v{vPA}, v12")
    a("s_mov_b64 exec, -1")
    a("s_waitcnt lgkmcnt(0)")
    a("s_barrier")
    if OPT.get('stamp'):
        a("s_memtime s[52:53]")
        a("s_memrealtime s[54:55]")
    for ins in b_reads(BP): a(ins)
    for rb in (0, 1, 3):
        for ins in a_reads(rb): a(ins)
    a("s_waitcnt lgkmcnt(6)")
    for cb in range(2):
        for ins in b_xor(BP, cb): a(ins)
    a("s_mov_b32 s41, 0")
    a(f"s_mov_b32 s42, {SB2}")
    a("s_mov_b32 s39, 0")
    a(f"s_mov_b32 s29, {3*SB2}")
    a.lab("K2B_LOOP")
    for half in range(2):
        Bc, Bn = (BP, BQ) if half == 0 else (BQ, BP)
        side = {k: [] for k in range(88)}
        lds_issue = {}
        def put(k, ins, tag=None):
            if OPT.get('k2nolds') and (ins.startswith("ds_read_b128") or ins.startswith("ds_read_b64")): return
            if OPT.get('k2noA') and ins.startswith("ds_read_b128"): return
            if OPT.get('k2nosync') and (tag in ("W", "P") or "K2B_" in ins or ins.startswith("v_cmp_gt") or (ins.startswith("ds_read_b32")) or "vccnz" in ins): return
            if OPT.get('k2nowait') and ins.startswith("s_waitcnt"): return
            side[k].append(ins)
            if tag: lds_issue.setdefault(k, []).append(tag)
        def put_a(k, rb, tag):
            r = a_reads(rb)
            put(k, r[0], tag); put(k + 1, r[1], tag)
        put_a(0, 2, "A2")
        for rb in range(4, 11):
            put_a(8 * (rb - 3), rb, f"A{rb}")
        P = OPT.get('parr', 58)
        put(P, "s_sub_u32 s43, s42, s41"); put(P, "s_add_u32 s40, s40, 1")
        put(P, f"v_add_u32 v{vAr}, s43, v{vAr}")
        put(P + 1, f"v_add_u32 v{vAi}, s43, v{vAi}"); put(P + 1, f"v_add_u32 v{vB}, s43, v{vB}")
        ar = arrive()
        put(P + 1, ar[0])
        put(P + 2, "s_waitcnt vmcnt(20)")
        put(P + 2, ar[1], "W")
        put(P + OPT.get('pdly', 5), poll_issue(Bn)[0], "P")
        C = OPT.get('pchk', 67)
        pc, pb = poll_check(Bn)
        for ins in pc: put(C - 2, ins)
        for ins in pb: put(C, ins)
        br = b_reads(Bn)
        for i_, ins in enumerate(br): put(C + 1 + i_ if C + 1 + i_ < 78 else 77, ins, "B" if ins.startswith("ds_") else None)
        put_a(78, 0, "N0"); put_a(80, 1, "N1"); put_a(82, 3, "N3")
        dl = dma_groups(29)
        if OPT.get('k2nodma'): dl = []
        dpos = [4, 10, 14, 20, 26, 30, 36, 42, 46, 52]
        for i_, grp in enumerate(dl):
            for ins in grp: put(dpos[i_], ins)
        xr0, xr1 = b_xor(Bn, 0), b_xor(Bn, 1)
        put(84, "s_waitcnt lgkmcnt(6)")
        for q in range(4): put(84 + q // 2, xr0[q]); put(86 + q // 2, xr1[q])
        for ins in ["s_mov_b32 s29, s41", "s_mov_b32 s41, s42", f"s_add_u32 s42, s42, {SB2}"]: put(83, ins)
        for ins in [f"s_cmp_eq_u32 s42, {NBUF2*SB2}", "s_cselect_b32 s42, 0, s42"]: put(85, ins)
        q = ["N0"] * 2 + ["N1"] * 2 + ["N3"] * 2
        ren = {"N0": "A0", "N1": "A1", "N3": "A3"}
        q = [ren[x] for x in q]
        pre = {}
        for k in range(88):
            if k % 8 == 0:
                need = f"A{k // 8}"
                if need in q:
                    idx = max(i_ for i_, x in enumerate(q) if x == need)
                    pre[k] = len(q) - 1 - idx
                    q = q[idx + 1:]
            if k == C - 2: q = []
            q += lds_issue.get(k, [])
        k = 0
        for rb in range(11):
            for ins in mfmas(rb, Bc):
                if k in pre and not OPT.get('k2nowait'):
                    a(f"s_waitcnt lgkmcnt({min(pre[k], 15)})")
                emit(ins)
                for s_ in side[k]: emit(s_)
                k += 1
    a("s_add_u32 s39, s39, 1")
    a("s_cmp_lt_u32 s39, 16")
    a("s_cbranch_scc1 K2B_LOOP")
    if OPT.get('stamp'):
        a("s_memtime s[56:57]")
        a("s_memrealtime s[58:59]")
    a("s_nop 7")
    a("s_nop 1")
    n = 0
    for rb in range(11):
        for i in range(4):
            if i % 2 == 0:
                a(f"s_mov_b32 s38, {(16*rb+i)*2048}")
            for cb in range(2):
                t = 8 + (n % 8); n += 1
                yr = ACC + ((rb * 2 + cb) * 2 + 0) * 4 + i
                yi = ACC + ((rb * 2 + cb) * 2 + 1) * 4 + i
                a(f"v_cvt_pk_bf16_f32 v{t}, v{yr}, v{yi}")
                a(f"buffer_store_dword v{t}, v{vY}, s[16:19], s38 offen offset:{(i&1)*2048+cb*64}{NTF('ntys')}")
    if OPT.get('stamp'):
        a("s_waitcnt vmcnt(0)")
        a("s_memtime s[60:61]")
        a("s_memrealtime s[62:63]")
        a("s_waitcnt lgkmcnt(0)")
        srd(a, 64, 4, O['ST'] + (1 << 20), 1 << 20)
        order = [48, 49, 50, 51, 56, 57, 58, 59, 60, 61, 62, 63, 52, 53, 54, 55]
        for k, sreg in enumerate(order):
            a(f"v_mov_b32 v{16+k}, s{sreg}")
        a("s_lshl_b32 s38, s2, 3")
        a("s_add_u32 s38, s38, s3")
        a("s_lshl_b32 s38, s38, 6")
        a("v_mov_b32 v40, 0")
        a("s_mov_b64 exec, 1")
        for k in range(4):
            a(f"buffer_store_dwordx4 v[{16+4*k}:{19+4*k}], v40, s[64:67], s38 offen offset:{16*k}")
    a("s_endpgm")
    for ins in slow: emit(ins)

def k2b(a, O, OPT):
    a.raw(".p2align 8")
    a.raw(".type k2_gemm_kernel,@function")
    a.lab("k2_gemm_kernel")
    a("s_cmp_ge_u32 s2, 256")
    a("s_cbranch_scc1 K2_END")
    k2b_setup(a, O, OPT)
    consumer(a, O, OPT)
    a.lab("K2_END")
    a("s_endpgm")
    return ("k2_gemm_kernel", 256, 256, LDS2, 256)
```

```python
from gen import *
import gen
from kernels3 import BOFF2, SB2, NBUF2, SYNC

PCNT = SYNC + 32
MIRROR = SYNC + 64
ONES = MIRROR + 32
DUMMY = MIRROR + 64
LDS12 = DUMMY + 64
TABX = 0
TABW = 16384
SPIN = 4096

def k12(a, O, OPT):
    WSTR = O['WSTR']
    a.raw(".p2align 8")
    a.raw(".type k12_fused_kernel,@function")
    a.lab("k12_fused_kernel")
    a("s_cmp_ge_u32 s2, 256")
    a("s_cbranch_scc1 K12_END")
    a("s_load_dwordx4 s[52:55], s[0:1], 0")
    a("s_load_dwordx4 s[56:59], s[0:1], 40")
    code_prefetch(a, "k12_fused_kernel", "K12", 0, 8, 8)
    if OPT.get('stamp'):
        a("s_memtime s[80:81]")
        a("s_memrealtime s[82:83]")
    a("v_lshrrev_b32 v1, 6, v0")
    a("v_and_b32 v2, 63, v0")
    a("v_readfirstlane_b32 s3, v1")
    a("s_waitcnt lgkmcnt(0)")
    producer(a, O, OPT)
    a.lab("K12_CONS")
    consumer(a, O, OPT)
    a.lab("K12_END")
    a("s_endpgm")
    return ("k12_fused_kernel", 256, 512, LDS12, 256)

def table_params(a, vRho, sRb, vA, vRi, tmp):
    a(f"v_and_b32 v{vA}, 3, v{vRho}")
    a(f"v_lshlrev_b32 v{vA}, 2, v{vA}")
    a(f"v_lshrrev_b32 v{tmp}, 3, v{vRho}")
    a(f"v_lshl_add_u32 v{vA}, v{tmp}, 1, v{vA}")
    a(f"s_lshl_b32 s36, s{sRb}, 4")
    a("s_add_u32 s36, s36, 1")
    a(f"v_add_u32 v{vA}, s36, v{vA}")
    a(f"v_bfe_u32 v{vRi}, v{vRho}, 2, 1")

def consumer(a, O, OPT):
    WSTR = O['WSTR']
    AF, BP, BQ, NW, ACC = 8, 40, 56, 72, 80
    vT, vL, vAr, vAi, vB, vPA, vWA = 0, 1, 2, 3, 4, 5, 7
    sc = " sc1" if OPT.get('dmasc1', 1) else ""
    a("s_and_b32 s6, s2, 7")
    a("s_lshl_b32 s6, s6, 2")
    a("s_lshr_b32 s7, s2, 6")
    a("s_add_u32 s6, s6, s7")
    a("s_lshr_b32 s7, s2, 3")
    a("s_and_b32 s7, s7, 7")
    a("s_lshr_b32 s20, s7, 2")
    a("s_and_b32 s21, s7, 3")
    a("s_lshl_b32 s22, s6, 1")
    a("s_add_u32 s22, s22, s20")
    a("s_lshl_b32 s23, s6, 2")
    a("s_add_u32 s23, s23, s21")
    a(f"s_mul_i32 s24, s22, {XFB}")
    a(f"s_mul_i32 s25, s23, {WSTR}")
    a(f"s_add_u32 s25, s25, {O['WT']}")
    a(f"s_mul_i32 s26, s22, {YFB}")
    a(f"s_add_u32 s26, s26, {O['YT']}")
    if O['XT']:
        a(f"s_add_u32 s24, s24, {O['XT']}")
    srd(a, 8, 58, "s24", XFB)
    srd(a, 12, 58, "s25", 524288)
    srd(a, 16, 58, "s26", YFB)
    a("s_add_u32 s4, s56, 128")
    a("s_addc_u32 s5, s57, 0")
    a("s_and_b32 s5, s5, 0xffff")
    a("s_cmp_eq_u32 s3, 0")
    a("s_cselect_b32 s6, 128, 0")
    a("s_mov_b32 s7, 0x00020000")
    a(f"s_mov_b32 s46, {MIRROR}")
    a(f"s_cselect_b32 s46, s46, {DUMMY}")
    a(f"s_mov_b32 s47, {MIRROR}")
    a(f"s_cselect_b32 s47, s47, {ONES}")
    a("s_cselect_b32 s45, 4, 0")
    a("s_mov_b32 s50, s45")
    a(f"v_lshrrev_b32 v2, 4, v254")
    a("v_and_b32 v8, 15, v2")
    a("v_lshrrev_b32 v9, 4, v2")
    a(f"v_lshlrev_b32 v{vL}, 4, v2")
    a("s_mul_i32 s30, s3, 5120")
    a("s_mov_b32 s36, s30")
    a("s_lshl_b32 s31, s3, 12")
    a(f"s_add_u32 s37, s31, {BOFF2}")
    a("s_lshl_b32 s33, s3, 8")
    a("s_add_u32 s33, s33, 20480")
    a("s_mov_b32 s38, s33")
    a("s_mov_b32 s44, 0xffff")
    a("s_cmp_eq_u32 s3, 3")
    a("s_cselect_b32 s44, 0xff, s44")
    a("s_mov_b32 s45, 0")
    def dma_groups(sbuf):
        g = []
        g.append([f"s_add_u32 m0, s{sbuf}, s36", "s_nop 0", f"buffer_load_dwordx4 v{vL}, s[8:11], s30 offen{sc} lds"])
        for k in range(1, 4):
            g.append([f"buffer_load_dwordx4 v{vL}, s[8:11], s30 offen offset:{1024*k}{sc} lds"])
        g.append(["s_add_u32 m0, m0, 4096", "s_add_u32 s34, s30, 4096", f"buffer_load_dwordx4 v{vL}, s[8:11], s34 offen{sc} lds"])
        g.append([f"s_add_u32 m0, s{sbuf}, s37", f"s_add_u32 s30, s30, {XBLK}", f"buffer_load_dwordx4 v{vL}, s[12:15], s31 offen{sc} lds"])
        for k in range(1, 4):
            g.append([f"buffer_load_dwordx4 v{vL}, s[12:15], s31 offen offset:{1024*k}{sc} lds"])
        g.append([f"s_add_u32 m0, s{sbuf}, s38", "s_mov_b64 exec, s[44:45]",
                  f"buffer_load_dwordx4 v{vL}, s[8:11], s33 offen{sc} lds", "s_mov_b64 exec, -1",
                  "s_add_u32 s31, s31, 16384", f"s_add_u32 s33, s33, {XBLK}"])
        return g
    def mirror_dma():
        return ["s_mov_b32 m0, s46", "s_mov_b64 exec, 0xff", f"buffer_load_dword v{vL}, s[4:7], 0 offen sc1 lds", "s_mov_b64 exec, -1"]
    a("v_lshrrev_b32 v10, 1, v8")
    a("v_xor_b32 v10, v10, v9")
    a("v_lshlrev_b32 v10, 4, v10")
    a(f"v_lshl_add_u32 v{vAr}, v8, 7, v10")
    a(f"v_xor_b32 v{vAi}, 64, v{vAr}")
    a("v_lshrrev_b32 v10, 2, v8")
    a("v_lshl_add_u32 v11, v9, 3, v10")
    a("v_lshlrev_b32 v11, 9, v11")
    a("v_and_b32 v12, 1, v9")
    a("v_lshl_or_b32 v10, v12, 2, v10")
    a("s_lshl_b32 s28, s3, 1")
    a("v_xor_b32 v10, s28, v10")
    a("v_lshl_add_u32 v11, v10, 5, v11")
    a("v_and_b32 v10, 3, v8")
    a("v_lshl_add_u32 v11, v10, 3, v11")
    a(f"v_add_u32 v{vB}, {BOFF2}, v11")
    a("v_and_b32 v10, 3, v8")
    a("v_lshlrev_b32 v10, 2, v10")
    a(f"v_add_u32 v{vPA}, {SYNC}, v10")
    a("s_lshl_b32 s28, s3, 2")
    a(f"s_add_u32 s28, s28, {SYNC}")
    a(f"v_mov_b32 v{vWA}, s28")
    for r in range(176):
        a(f"v_mov_b32 v{ACC+r}, 0")
    a("s_mov_b32 s35, 0x80008000")

    slow = []
    nlab = [0]
    def flag_wait_loop(lab, saddr, back):
        r = [f"{lab}:", f"s_mov_b32 s61, {SPIN}", "s_add_u32 s63, s63, 1", f"{lab}_L:"] + mirror_dma() + ["s_waitcnt vmcnt(0)",
             f"v_mov_b32 v{vT}, s{saddr}", f"ds_read_b32 v{vT}, v{vT}", "s_waitcnt lgkmcnt(0)",
             f"v_cmp_eq_u32 vcc, 0, v{vT}", "s_sub_u32 s61, s61, 1", "s_cmp_eq_u32 s61, 0",
             f"s_cbranch_scc1 {lab}_X", f"s_cbranch_vccz {lab}_X", f"s_sleep {OPT.get('fsleep', 2)}", f"s_branch {lab}_L", f"{lab}_X:"]
        if back: r.append(f"s_branch {back}")
        return r
    def emit(ins):
        if ins.endswith(":"): a.lab(ins[:-1])
        else: a(ins)
    def poll_slow(vP):
        n = nlab[0]; nlab[0] += 1
        slow.extend([f"K12_S{n}:", f"s_mov_b32 s61, {SPIN}", "s_add_u32 s62, s62, 1", f"K12_S{n}_L:", f"ds_read_b32 v{vP}, v{vPA}", "s_waitcnt lgkmcnt(0)",
                     f"v_cmp_gt_u32 vcc, s40, v{vP}", "s_sub_u32 s61, s61, 1", "s_cmp_eq_u32 s61, 0", f"s_cbranch_scc1 K12_Q{n}",
                     f"s_cbranch_vccz K12_Q{n}"] + ([f"s_sleep {OPT['lsleep']}"] if OPT.get('lsleep') else []) + [f"s_branch K12_S{n}_L"])
        return n
    a("s_mov_b32 s62, 0"); a("s_mov_b32 s63, 0")
    if OPT.get('noncons'):
        a("s_endpgm")
    for ins in flag_wait_loop("K12_W0", 47, None): emit(ins)
    a("s_mov_b32 s40, 1")
    a(f"v_mov_b32 v{vT}, s40")
    a(f"ds_write_b32 v{vWA}, v{vT}")
    n0 = poll_slow(BQ)
    a(f"s_branch K12_S{n0}")
    a.lab(f"K12_Q{n0}")
    if OPT.get('stamp'):
        a("s_memtime s[84:85]")
        a("s_memrealtime s[86:87]")
    a("s_mov_b32 s39, 0")
    for st in range(3):
        for grp in dma_groups(39):
            for ins in grp: a(ins)
        a(f"s_add_u32 s39, s39, {SB2}")
    for ins in mirror_dma(): a(ins)

    def a_reads(rb):
        s = AF + 8 * (rb % 4)
        return [f"ds_read_b128 v[{s}:{s+3}], v{vAr} offset:{rb*2048}",
                f"ds_read_b128 v[{s+4}:{s+7}], v{vAi} offset:{rb*2048}"]
    def b_reads(B):
        r = []
        for cb in range(2):
            for ri in range(2):
                d = B + 8 * cb + 4 * ri
                for t in range(2):
                    r.append(f"ds_read_b64_tr_b16 v[{d+2*t}:{d+2*t+1}], v{vB} offset:{ri*256+t*2048}")
            r.append(f"v_xor_b32 v{vB}, 32, v{vB}")
        return r
    def b_xor(B, cb):
        return [f"v_xor_b32 v{NW+4*cb+q}, s35, v{B+8*cb+4+q}" for q in range(4)]
    def mfmas(rb, B):
        s = AF + 8 * (rb % 4)
        Ar, Ai = s, s + 4
        def acc(cb, ri): return ACC + ((rb * 2 + cb) * 2 + ri) * 4
        def m(d, x, y): return f"v_mfma_f32_16x16x32_bf16 v[{d}:{d+3}], v[{x}:{x+3}], v[{y}:{y+3}], v[{d}:{d+3}]"
        Wr = lambda cb: B + 8 * cb
        Wi = lambda cb: B + 8 * cb + 4
        nWi = lambda cb: NW + 4 * cb
        return [m(acc(0,0), Ar, Wr(0)), m(acc(0,1), Ar, Wi(0)), m(acc(1,0), Ar, Wr(1)), m(acc(1,1), Ar, Wi(1)),
                m(acc(0,0), Ai, nWi(0)), m(acc(0,1), Ai, Wr(0)), m(acc(1,0), Ai, nWi(1)), m(acc(1,1), Ai, Wr(1))]
    a("s_mov_b32 s40, 2")
    a(f"v_mov_b32 v{vT}, s40")
    a("s_waitcnt vmcnt(21)")
    a(f"ds_write_b32 v{vWA}, v{vT}")
    n = poll_slow(BQ)
    a(f"s_branch K12_S{n}")
    a.lab(f"K12_Q{n}")
    if OPT.get('stamp'):
        a("s_memtime s[88:89]")
        a("s_memrealtime s[90:91]")
    for ins in b_reads(BP): a(ins)
    for rb in (0, 1, 3):
        for ins in a_reads(rb): a(ins)
    a("s_waitcnt lgkmcnt(6)")
    for cb in range(2):
        for ins in b_xor(BP, cb): a(ins)
    a("s_mov_b32 s41, 0")
    a(f"s_mov_b32 s42, {SB2}")
    a("s_mov_b32 s39, 0")
    a(f"s_mov_b32 s29, {3*SB2}")
    a.lab("K12_LOOP")
    for half in range(2):
        Bc, Bn = (BP, BQ) if half == 0 else (BQ, BP)
        side = {k: [] for k in range(88)}
        lds_issue = {}
        def put(k, ins, tag=None):
            side[k].append(ins)
            if tag: lds_issue.setdefault(k, []).append(tag)
        def put_a(k, rb, tag):
            r = a_reads(rb)
            put(k, r[0], tag); put(k + 1, r[1], tag)
        put_a(0, 2, "A2")
        for rb in range(4, 11):
            put_a(8 * (rb - 3), rb, f"A{rb}")
        P = OPT.get('parr', 58)
        put(P, "s_sub_u32 s43, s42, s41"); put(P, "s_add_u32 s40, s40, 1")
        put(P, f"v_add_u32 v{vAr}, s43, v{vAr}")
        put(P + 1, f"v_add_u32 v{vAi}, s43, v{vAi}"); put(P + 1, f"v_add_u32 v{vB}, s43, v{vB}")
        put(P + 1, f"v_mov_b32 v{vT}, s40")
        put(P + 2, "s_waitcnt vmcnt(21)")
        put(P + 2, f"ds_write_b32 v{vWA}, v{vT}", "W")
        pd = P + OPT.get('pdly', 5)
        put(pd, f"ds_read_b32 v{Bn}, v{vPA}", "P")
        if half == 0:
            put(2, "s_add_u32 s49, s39, 2"); put(2, "s_lshr_b32 s49, s49, 1")
            put(3, "s_mul_i32 s48, s49, s50"); put(3, "s_add_u32 s48, s48, s47")
            put(5, "s_cmp_lt_u32 s49, 8"); put(5, f"s_cselect_b32 s48, s48, {ONES}")
            put(P - 9, f"v_mov_b32 v{vT}, s48")
            put(P - 8, f"ds_read_b32 v{vT}, v{vT}", "M")
            put(P - 3, "s_waitcnt lgkmcnt(0)")
            put(P - 3, f"v_cmp_eq_u32 vcc, 0, v{vT}")
            m = nlab[0]; nlab[0] += 1
            put(P - 1, f"s_cbranch_vccnz K12_F{m}"); put(P - 1, f"K12_G{m}:")
            slow.extend(flag_wait_loop(f"K12_F{m}", 48, f"K12_G{m}"))
        C = OPT.get('pchk', 69)
        put(C - 2, "s_waitcnt lgkmcnt(0)")
        put(C - 2, f"v_cmp_gt_u32 vcc, s40, v{Bn}")
        n = poll_slow(Bn)
        put(C, f"s_cbranch_vccnz K12_S{n}"); put(C, f"K12_Q{n}:")
        br = b_reads(Bn)
        for i_, ins in enumerate(br): put(C + 1 + i_ if C + 1 + i_ < 78 else 77, ins, "B" if ins.startswith("ds_") else None)
        put_a(78, 0, "N0"); put_a(80, 1, "N1"); put_a(82, 3, "N3")
        dl = dma_groups(29)
        dpos = [4, 10, 14, 20, 26, 30, 36, 42, 46, 52]
        for i_, grp in enumerate(dl):
            for ins in grp: put(dpos[i_], ins)
        if half == 1:
            for ins in mirror_dma(): put(54, ins)
        xr0, xr1 = b_xor(Bn, 0), b_xor(Bn, 1)
        put(84, "s_waitcnt lgkmcnt(6)")
        for q in range(4): put(84 + q // 2, xr0[q]); put(86 + q // 2, xr1[q])
        for ins in ["s_mov_b32 s29, s41", "s_mov_b32 s41, s42", f"s_add_u32 s42, s42, {SB2}"]: put(83, ins)
        for ins in [f"s_cmp_eq_u32 s42, {NBUF2*SB2}", "s_cselect_b32 s42, 0, s42"]: put(85, ins)
        q = ["A0"] * 2 + ["A1"] * 2 + ["A3"] * 2
        pre = {}
        for k in range(88):
            if k % 8 == 0:
                need = f"A{k // 8}"
                if need in q:
                    idx = max(i_ for i_, x in enumerate(q) if x == need)
                    pre[k] = len(q) - 1 - idx
                    q = q[idx + 1:]
            if k == C - 2: q = []
            q += lds_issue.get(k, [])
        k = 0
        for rb in range(11):
            for ins in mfmas(rb, Bc):
                if k in pre:
                    a(f"s_waitcnt lgkmcnt({min(pre[k], 15)})")
                emit(ins)
                for s_ in side[k]: emit(s_)
                k += 1
    a("s_add_u32 s39, s39, 1")
    a("s_cmp_lt_u32 s39, 16")
    a("s_cbranch_scc1 K12_LOOP")
    if OPT.get('stamp'):
        a("s_memtime s[92:93]")
        a("s_memrealtime s[94:95]")
    a(f"v_lshrrev_b32 v8, 4, v{vL}")
    a("v_and_b32 v9, 15, v8")
    a("v_lshrrev_b32 v8, 4, v8")
    a("s_lshl_b32 s28, s21, 7")
    a("s_lshl_b32 s29, s3, 5")
    a("s_add_u32 s28, s28, s29")
    a("v_add_u32 v9, s28, v9")
    a("v_lshlrev_b32 v9, 2, v9")
    a("v_lshl_add_u32 v6, v8, 13, v9")
    a("s_nop 2")
    n = 0
    for rb in range(11):
        for i in range(4):
            if i % 2 == 0:
                a(f"s_mov_b32 s38, {(16*rb+i)*2048}")
            for cb in range(2):
                t = 8 + (n % 8); n += 1
                yr = ACC + ((rb * 2 + cb) * 2 + 0) * 4 + i
                yi = ACC + ((rb * 2 + cb) * 2 + 1) * 4 + i
                a(f"v_cvt_pk_bf16_f32 v{t}, v{yr}, v{yi}")
                a(f"buffer_store_dword v{t}, v6, s[16:19], s38 offen offset:{(i&1)*2048+cb*64}{NTF('ntys')}")
    if OPT.get('stamp'):
        a("s_waitcnt vmcnt(0)")
        a("s_memtime s[76:77]")
        a("s_memrealtime s[78:79]")
        a("s_waitcnt lgkmcnt(0)")
        srd(a, 64, 58, O['ST'] + (1 << 20), 1 << 20)
        order = [62, 63, 82, 83, 80, 81, 94, 95, 86, 87, 78, 79, 88, 89, 90, 91]
        for k, sreg in enumerate(order):
            a(f"v_mov_b32 v{16+k}, s{sreg}")
        a("s_lshl_b32 s38, s2, 3")
        a("s_add_u32 s38, s38, s3")
        a("s_lshl_b32 s38, s38, 6")
        a("v_mov_b32 v40, 0")
        a("s_mov_b64 exec, 1")
        for k in range(4):
            a(f"buffer_store_dwordx4 v[{16+4*k}:{19+4*k}], v40, s[64:67], s38 offen offset:{16*k}")
    a("s_endpgm")
    for ins in slow: emit(ins)

def producer(a, O, OPT):
    WSTR = O['WSTR']
    XR, OPS, WR, ACCW, FH, FL, FW, TMP = 0, 64, 96, 128, 160, 192, 224, 240
    vXL, vXS, vWL, vWS0, vJ1, vWS, vLA, vT = 248, 249, 250, 251, 252, 253, 254, 255
    st = " sc1" if OPT.get('stsc1', 1) else ""
    lo = OPT.get('xlo', 1)
    a("v_and_b32 v64, 15, v2")
    a("v_lshrrev_b32 v65, 4, v2")
    a(f"v_lshlrev_b32 v{vLA}, 4, v2")
    a("s_and_b32 s44, s3, 3")
    a("s_and_b32 s20, s44, 1")
    a("s_lshr_b32 s21, s44, 1")
    a("s_lshl_b32 s22, s2, 1")
    a("s_add_u32 s22, s22, s21")
    a("s_and_b32 s23, s22, 3")
    a("s_lshr_b32 s22, s22, 2")
    a("s_and_b32 s24, s2, 7")
    a("s_lshl_b32 s24, s24, 5")
    a("s_lshr_b32 s25, s2, 3")
    a("s_add_u32 s24, s24, s25")
    a("s_mul_hi_u32 s25, s2, 0x55555556")
    a("s_mul_i32 s26, s25, 3")
    a("s_sub_u32 s26, s2, s26")
    a("s_cmp_eq_u32 s26, 0")
    a("s_cselect_b32 s27, 1, 0")
    a("s_cmp_lt_u32 s25, 78")
    a("s_cselect_b32 s27, s27, 0")
    a("s_add_u32 s25, s25, 256")
    a("s_cmp_eq_u32 s21, 0")
    a("s_cselect_b32 s24, s24, s25")
    a("s_cselect_b32 s27, 1, s27")
    a(f"s_cmp_ge_u32 s24, {NT}")
    a("s_cselect_b32 s25, 1, 0")
    a(f"s_mul_i32 s26, s25, {NT}")
    a("s_sub_u32 s24, s24, s26")
    a("s_mul_i32 s26, s25, 16384000")
    srd(a, 4, 52, "s26", 16384000)
    srd(a, 8, 54, None, 31 * 524288)
    srd(a, 12, 58, O['XT'] if O['XT'] else None, XT_SIZE)
    srd(a, 16, 58, O['WT'], 128 * WSTR)
    a("s_mov_b32 s60, s56"); a("s_and_b32 s61, s57, 0xffff"); a("s_mov_b32 s62, 256"); a("s_mov_b32 s63, 0x00020000")
    a("s_mov_b32 s28, 0x05040100")
    a("s_mov_b32 s29, 0x07060302")
    if OPT.get('stamp'):
        srd(a, 64, 58, O['ST'] + (6 << 20), 1 << 20)
        a("s_lshl_b32 s73, s2, 2")
        a("s_add_u32 s73, s73, s44")
        a("s_lshl_b32 s73, s73, 7")
    a(f"v_lshlrev_b32 v{vXL}, 14, v65")
    a(f"v_lshl_add_u32 v{vXL}, v64, 4, v{vXL}")
    a(f"v_and_b32 v{vWL}, 1, v65")
    a(f"v_lshlrev_b32 v{vWL}, 23, v{vWL}")
    a(f"v_lshl_add_u32 v{vWL}, v64, 4, v{vWL}")
    a("v_lshrrev_b32 v66, 1, v65")
    a(f"s_mov_b32 s26, {2*XFB}")
    a("v_mul_lo_u32 v66, v66, s26")
    a("v_lshrrev_b32 v67, 2, v64")
    a(f"s_mov_b32 s26, {XBLK}")
    a("v_mul_lo_u32 v67, v67, s26")
    a("v_add_u32 v66, v66, v67")
    a("v_and_b32 v67, 3, v64")
    a("v_and_b32 v68, 1, v65")
    a("v_lshl_add_u32 v67, v68, 2, v67")
    a("s_lshr_b32 s26, s24, 1")
    a("s_and_b32 s26, s26, 7")
    a("v_xor_b32 v67, s26, v67")
    a(f"v_lshl_add_u32 v{vXS}, v67, 4, v66")
    a("v_lshrrev_b32 v66, 1, v65")
    a(f"s_mov_b32 s26, {4*WSTR}")
    a("v_mul_lo_u32 v66, v66, s26")
    a("v_and_b32 v67, 1, v65")
    a("v_lshl_add_u32 v66, v67, 8, v66")
    a("v_and_b32 v67, 1, v64")
    a(f"v_lshl_add_u32 v{vWS0}, v67, 4, v66")
    a(f"v_lshrrev_b32 v{vJ1}, 1, v64")
    a(f"s_mul_i32 s30, s24, {48*2048}")
    a(f"s_mul_i32 s31, s25, {XFB}")
    a("s_lshl_b32 s26, s24, 7")
    a("s_add_u32 s31, s31, s26")
    a(f"s_mul_i32 s32, s23, {WSTR}")
    a("s_lshl_b32 s33, s23, 8")
    def w_loads(sp):
        a(f"s_lshl_b32 s36, s{sp}, 7")
        a("s_add_u32 s36, s36, s22")
        a("s_lshr_b32 s37, s36, 9")
        a("s_lshl_b32 s37, s37, 19")
        a("s_and_b32 s36, s36, 511")
        a("s_lshl_b32 s36, s36, 10")
        a("s_add_u32 s36, s36, s37")
        a("s_add_u32 s36, s36, s33")
        for e in range(8):
            a(f"buffer_load_dwordx4 v[{WR+4*e}:{WR+4*e+3}], v{vWL}, s[8:11], s36 offen")
            if e < 7: a("s_add_u32 s36, s36, 0x100000")
    def x_loads(sp):
        a(f"s_lshl_b32 s36, s{sp}, 8")
        a("s_add_u32 s36, s36, s30")
        for ks in range(2):
            for e2 in range(4):
                r = XR + 32 * ks + 8 * e2
                a(f"buffer_load_dwordx4 v[{r}:{r+3}], v{vXL}, s[4:7], s36 offen")
                a(f"buffer_load_dwordx4 v[{r+4}:{r+7}], v{vXL}, s[4:7], s36 offen offset:2048")
                if not (ks == 1 and e2 == 3):
                    a(f"s_add_u32 s36, s36, {4096 if e2 < 3 else 32*2048 - 3*4096}")
    nsig = [0]
    def signal(sp):
        n = nsig[0]; nsig[0] += 1
        a("s_mov_b32 s34, -1")
        a(f"s_cmp_ge_u32 s{sp}, 8")
        a(f"s_cbranch_scc1 K12_SG{n}")
        if OPT.get('stamp'):
            a("s_memrealtime s[70:71]")
            a("s_waitcnt lgkmcnt(0)")
            a(f"s_lshl_b32 s72, s{sp}, 3")
            a("s_add_u32 s72, s72, s73")
            a("v_mov_b32 v240, s70"); a("v_mov_b32 v241, s71"); a("v_mov_b32 v242, 0")
            a("s_mov_b64 exec, 1")
            a("buffer_store_dwordx2 v[240:241], v242, s[64:67], s72 offen")
            a("s_mov_b64 exec, -1")
        a(f"s_lshl_b32 s36, s{sp}, 2")
        a(f"s_add_u32 s37, s36, {PCNT}")
        a("s_mov_b64 exec, 1")
        a(f"v_mov_b32 v{vT}, s37")
        a(f"v_mov_b32 v{TMP}, 1")
        a(f"ds_add_rtn_u32 v{TMP}, v{vT}, v{TMP}")
        a("s_waitcnt lgkmcnt(0)")
        a(f"v_readfirstlane_b32 s37, v{TMP}")
        a("s_nop 3")
        a("s_cmp_eq_u32 s37, 3")
        a(f"s_cbranch_scc0 K12_SH{n}")
        a(f"v_mov_b32 v{vT}, 1")
        a(f"v_mov_b32 v{TMP}, s36")
        a(f"buffer_atomic_add v{vT}, v{TMP}, s[60:63], 0 offen sc0 sc1")
        a(f"s_mov_b32 s34, s{sp}")
        a.lab(f"K12_SH{n}")
        a("s_mov_b64 exec, -1")
        a.lab(f"K12_SG{n}")
    def publish():
        n = nsig[0]; nsig[0] += 1
        a("s_cmp_ge_u32 s34, 8")
        a(f"s_cbranch_scc1 K12_PB{n}")
        a(f"v_readfirstlane_b32 s37, v{vT}")
        a("s_nop 3")
        a("s_cmp_eq_u32 s37, 255")
        a(f"s_cbranch_scc0 K12_PB{n}")
        a("s_lshl_b32 s36, s34, 4")
        a("s_add_u32 s36, s36, 128")
        a("s_mov_b64 exec, 1")
        a(f"v_mov_b32 v{vT}, 1")
        a(f"v_mov_b32 v{TMP}, s36")
        a(f"buffer_store_dword v{vT}, v{TMP}, s[60:63], 0 offen sc1")
        a("s_mov_b64 exec, -1")
        a.lab(f"K12_PB{n}")
    def w_compute(sp):
        a(f"s_lshl_b32 s36, s{sp}, 7")
        a("s_add_u32 s36, s36, s22")
        a("s_and_b32 s37, s36, 3")
        a("s_lshr_b32 s38, s36, 1")
        a("s_and_b32 s38, s38, 4")
        a("s_or_b32 s37, s37, s38")
        a(f"v_xor_b32 v{vWS}, s37, v{vJ1}")
        a(f"v_lshl_add_u32 v{vWS}, v{vWS}, 5, v{vWS0}")
        a("s_lshl_b32 s36, s36, 9")
        a("s_add_u32 s39, s36, s32")
        if OPT.get('plin'):
            a(f"v_mov_b32 v{vWS}, v{vLA}")
            a(f"s_lshl_b32 s39, s{sp}, 10"); a("s_lshl_b32 s36, s2, 2"); a("s_add_u32 s39, s39, s36"); a("s_add_u32 s39, s39, s3"); a("s_lshl_b32 s39, s39, 14"); a("s_and_b32 s39, s39, 0x3ffffff")
        for rb in range(4):
            for i in range(8):
                a(f"v_mfma_f32_16x16x32_bf16 v[{ACCW+4*i}:{ACCW+4*i+3}], v[{FW+4*rb}:{FW+4*rb+3}], v[{OPS+4*i}:{OPS+4*i+3}], 0")
            a("s_nop 7")
            for r in range(4):
                t = TMP + 4 * (r & 1)
                for q in range(4):
                    a(f"v_cvt_pk_bf16_f32 v{t+q}, v{ACCW+4*(2*q)+r}, v{ACCW+4*(2*q+1)+r}")
                a(f"buffer_store_dwordx4 v[{t}:{t+3}], v{vWS}, s[16:19], s39 offen{st}")
                if not (rb == 3 and r == 3):
                    a(f"s_add_u32 s39, s39, {1024 if OPT.get('plin') else 2*4*WSTR}")
    def x_compute(sp):
        ACCX = XR + 32
        a(f"s_mul_i32 s39, s{sp}, {4*XBLK}")
        a("s_add_u32 s39, s39, s31")
        if OPT.get('plin'):
            a(f"s_lshl_b32 s39, s{sp}, 9"); a("s_lshl_b32 s36, s2, 1"); a("s_add_u32 s39, s39, s36"); a("s_add_u32 s39, s39, s21"); a("s_lshl_b32 s39, s39, 14"); a("s_and_b32 s39, s39, 0x1ffffff")
        for rb in range(4):
            terms = [(FH + (rb * 2) * 4, OPS), (FH + (rb * 2 + 1) * 4, XR)]
            if lo:
                terms = [terms[0], (FL + (rb * 2) * 4, OPS), terms[1], (FL + (rb * 2 + 1) * 4, XR)]
            for ti, (F, ops) in enumerate(terms):
                for i in range(8):
                    c = "0" if ti == 0 else f"v[{ACCX+4*i}:{ACCX+4*i+3}]"
                    a(f"v_mfma_f32_16x16x32_bf16 v[{ACCX+4*i}:{ACCX+4*i+3}], v[{F}:{F+3}], v[{ops+4*i}:{ops+4*i+3}], {c}")
            a("s_nop 7")
            for r in range(4):
                t = TMP + 4 * (r & 1)
                for q in range(4):
                    a(f"v_cvt_pk_bf16_f32 v{t+q}, v{ACCX+4*(2*q)+r}, v{ACCX+4*(2*q+1)+r}")
                a(f"buffer_store_dwordx4 v[{t}:{t+3}], v{vLA if OPT.get('plin') else vXS}, s[12:15], s39 offen{st}")
                if not (rb == 3 and r == 3):
                    a(f"s_add_u32 s39, s39, {1024 if OPT.get('plin') else 2*2*XFB}")
    nst = [0]
    def ustamp(slot):
        if not OPT.get('stamp'): return
        n = nst[0]; nst[0] += 1
        a("s_and_b32 s72, s40, 6")
        a(f"s_cmp_eq_u32 s72, {OPT.get('ustph', 4)}")
        a(f"s_cbranch_scc0 K12_US{n}")
        a(f"s_memrealtime s[{74+0}:{75}]")
        a("s_waitcnt lgkmcnt(0)")
        a(f"s_add_u32 s72, s73, {(8+slot)*8}")
        a("v_mov_b32 v240, s74"); a("v_mov_b32 v241, s75"); a("v_mov_b32 v242, 0")
        a("s_mov_b64 exec, 1")
        a("buffer_store_dwordx2 v[240:241], v242, s[64:67], s72 offen")
        a("s_mov_b64 exec, -1")
        a.lab(f"K12_US{n}")
    def eager_publish():
        n = nsig[0]; nsig[0] += 1
        a("s_cmp_ge_u32 s34, 8")
        a(f"s_cbranch_scc1 K12_EP{n}")
        a("s_waitcnt vmcnt(0)")
        publish()
        a("s_mov_b32 s34, -1")
        a.lab(f"K12_EP{n}")
    def early_signal():
        if not OPT.get('early', 1): return
        n = nsig[0]; nsig[0] += 1
        a("s_cmp_eq_u32 s41, 1")
        a(f"s_cbranch_scc0 K12_ES{n}")
        a("s_waitcnt vmcnt(0)")
        signal(41)
        a("s_waitcnt vmcnt(0)")
        publish()
        a("s_mov_b32 s34, -1")
        a("s_mov_b32 s41, -1")
        a.lab(f"K12_ES{n}")
    ngate = [0]
    def gate():
        G = OPT.get('gateg', 9)
        if G <= 0: return
        n = ngate[0]; ngate[0] += 1
        a("s_cmp_lt_u32 s40, 2")
        a(f"s_cbranch_scc1 K12_GT{n}")
        a("s_lshl_b32 s36, s40, 2")
        a(f"s_sub_i32 s36, s36, {G}")
        a("s_max_i32 s36, s36, 1")
        a(f"s_mov_b32 s37, {SPIN * 8}")
        a.lab(f"K12_GL{n}")
        a(f"v_mov_b32 v{TMP}, {SYNC}")
        a(f"ds_read_b32 v{TMP}, v{TMP}")
        a("s_waitcnt lgkmcnt(0)")
        a(f"v_cmp_gt_u32 vcc, s36, v{TMP}")
        a("s_sub_u32 s37, s37, 1")
        a("s_cmp_eq_u32 s37, 0")
        a(f"s_cbranch_scc1 K12_GT{n}")
        a(f"s_cbranch_vccz K12_GT{n}")
        a("s_sleep 2")
        a(f"s_branch K12_GL{n}")
        a.lab(f"K12_GT{n}")
    def w_unit(next_loads, nnext):
        ustamp(0)
        interleave_perm(a, WR, OPS, 28, 29)
        next_loads()
        ustamp(1)
        a(f"s_waitcnt vmcnt({nnext + (1 if OPT.get('stamp') else 0)})")
        signal(41)
        eager_publish()
        gate()
        ustamp(2)
        w_compute(40)
        ustamp(3)
    def x_unit(next_loads, nnext):
        ustamp(4)
        interleave_perm(a, XR, OPS, 28, 29)
        interleave_perm(a, XR + 32, XR, 28, 29)
        next_loads()
        ustamp(5)
        a(f"s_waitcnt vmcnt({nnext + (1 if OPT.get('stamp') else 0)})")
        signal(41)
        eager_publish()
        gate()
        ustamp(6)
        x_compute(40)
        ustamp(7)

    a("s_lshr_b32 s40, s3, 2")
    a("s_xor_b32 s43, s40, s20")
    a("s_cmp_eq_u32 s43, 0")
    a("s_cbranch_scc0 K12_PL1")
    w_loads(40)
    a("s_branch K12_PL2")
    a.lab("K12_PL1")
    a("s_cmp_eq_u32 s27, 0")
    a("s_cbranch_scc1 K12_PL3")
    x_loads(40)
    a("s_branch K12_PL2")
    a.lab("K12_PL3")
    a("s_cmp_lt_u32 s3, 4")
    a("s_cbranch_scc1 K12_PL2")
    a("s_add_u32 s40, s40, 1")
    w_loads(40)
    a.lab("K12_PL2")
    if OPT.get('stamp'):
        a("s_memrealtime s[84:85]")
    table_params(a, 64, 44, 128, 129, 130)
    a("v_lshlrev_b32 v131, 3, v65")
    a("s_lshr_b32 s36, s3, 2")
    a("s_lshl_b32 s37, s36, 5")
    a("v_add_u32 v131, s37, v131")
    a("v_lshlrev_b32 v132, 5, v129")
    a("v_mad_u32_u24 v133, v128, v131, v132")
    trig(a, 128, 133, 136, 144, 148, 152)
    a("s_lshl_b32 s37, s44, 12")
    a("s_lshl_b32 s36, s36, 11")
    a("s_add_u32 s37, s37, s36")
    a(f"v_add_u32 v132, s37, v{vLA}")
    a(f"ds_write_b128 v132, v[144:147] offset:{TABX}")
    a(f"ds_write_b128 v132, v[148:151] offset:{TABX + 1024}")
    a("s_cmp_ge_u32 s3, 4")
    a("s_cbranch_scc1 K12_TB")
    a("v_and_b32 v131, 1, v65")
    a("v_lshlrev_b32 v131, 3, v131")
    a("v_mul_u32_u24 v132, 96, v129")
    a("v_mad_u32_u24 v133, v128, v131, v132")
    trig(a, 128, 133, 136, 144, 148, 152)
    a("v_cmp_lt_u32 vcc, 1, v65")
    a("s_lshl_b32 s37, s44, 10")
    a(f"v_add_u32 v132, s37, v{vLA}")
    for q in range(4):
        a(f"v_cndmask_b32 v{144+q}, v{144+q}, v{148+q}, vcc")
    a(f"ds_write_b128 v132, v[144:147] offset:{TABW}")
    a("v_mov_b32 v136, 0"); a("v_mov_b32 v137, 0"); a("v_mov_b32 v138, 0"); a("v_mov_b32 v139, 0")
    a(f"s_mul_i32 s36, s44, {SB2}")
    a(f"s_add_u32 s36, s36, {167*128}")
    a(f"v_add_u32 v132, s36, v{vLA}")
    a("ds_write_b128 v132, v[136:139]")
    a("s_mov_b64 exec, 0xff")
    a("ds_write_b128 v132, v[136:139] offset:1024")
    a("s_mov_b64 exec, -1")
    a("s_lshl_b32 s36, s44, 2")
    a(f"s_add_u32 s36, s36, {SYNC}")
    a("v_mov_b32 v132, s36")
    a("ds_write_b32 v132, v136")
    a("s_lshl_b32 s36, s44, 3")
    a(f"s_add_u32 s36, s36, {PCNT}")
    a("v_mov_b32 v132, s36")
    a("ds_write_b64 v132, v[136:137]")
    a("s_lshl_b32 s36, s44, 3")
    a(f"s_add_u32 s36, s36, {MIRROR}")
    a("v_mov_b32 v132, s36")
    a("ds_write_b64 v132, v[136:137]")
    a(f"v_mov_b32 v132, {ONES}")
    a("v_mov_b32 v133, 1")
    a("ds_write_b32 v132, v133")
    a.lab("K12_TB")
    a("s_waitcnt lgkmcnt(0)")
    a("s_barrier")
    if OPT.get('stamp'):
        a("s_memrealtime s[86:87]")
    for fr in range(8):
        a(f"ds_read_b128 v[{FH+4*fr}:{FH+4*fr+3}], v{vLA} offset:{TABX + (fr>>1)*4096 + (fr&1)*2048}")
        a(f"ds_read_b128 v[{FL+4*fr}:{FL+4*fr+3}], v{vLA} offset:{TABX + (fr>>1)*4096 + (fr&1)*2048 + 1024}")
        if fr == 3: a("s_waitcnt lgkmcnt(0)")
    for rb in range(4):
        a(f"ds_read_b128 v[{FW+4*rb}:{FW+4*rb+3}], v{vLA} offset:{TABW + rb*1024}")
    a("s_waitcnt vmcnt(0) lgkmcnt(0)")
    if OPT.get('stamp'):
        a("s_memrealtime s[88:89]")
    a("s_mov_b32 s41, -1")
    a("s_mov_b32 s34, -1")
    a("s_cmp_lt_u32 s3, 4")
    a("s_cbranch_scc0 K12_PROD")
    a("s_cmp_eq_u32 s43, 0")
    a("s_cbranch_scc0 K12_H1")
    interleave_perm(a, WR, OPS, 28, 29)
    w_compute(40)
    a("s_branch K12_H2")
    a.lab("K12_H1")
    a("s_cmp_eq_u32 s27, 0")
    a("s_cbranch_scc1 K12_H2")
    interleave_perm(a, XR, OPS, 28, 29)
    interleave_perm(a, XR + 32, XR, 28, 29)
    x_compute(40)
    a.lab("K12_H2")
    if OPT.get('stamp'):
        a("s_memrealtime s[90:91]")
    a("s_waitcnt vmcnt(0)")
    if OPT.get('stamp'):
        a("s_memrealtime s[92:93]")
        a("s_waitcnt lgkmcnt(0)")
        srd(a, 68, 58, O['ST'] + (7 << 20), 1 << 20)
        for k in range(10):
            a(f"v_mov_b32 v{128+k}, s{84+k}")
        a("v_mov_b32 v138, s82"); a("v_mov_b32 v139, s83"); a("v_mov_b32 v140, 0")
        a("s_lshl_b32 s72, s2, 2"); a("s_add_u32 s72, s72, s3"); a("s_lshl_b32 s72, s72, 6")
        a("s_mov_b64 exec, 1")
        for k in range(3):
            a(f"buffer_store_dwordx4 v[{128+4*k}:{131+4*k}], v140, s[68:71], s72 offen offset:{16*k}")
        a("s_mov_b64 exec, -1")
    a("s_mov_b32 s41, 0")
    signal(41)
    a("s_waitcnt vmcnt(0)")
    publish()
    if OPT.get('stamp'):
        a("s_memrealtime s[80:81]")
    a("s_branch K12_CONS")
    a.lab("K12_PROD")
    if OPT.get('pprio', 1):
        a(f"s_setprio {OPT.get('pprio', 1)}")
    a("s_cmp_eq_u32 s27, 0")
    a("s_cbranch_scc1 K12_NOX")
    a("s_cmp_eq_u32 s43, 0")
    a("s_cbranch_scc1 K12_WENTRY")
    a.lab("K12_XW")
    a("s_add_u32 s42, s40, 1")
    x_unit(lambda: w_loads(42), 8)
    a("s_mov_b32 s41, s40"); a("s_add_u32 s40, s40, 1")
    early_signal()
    a("s_waitcnt vmcnt(16)")
    publish()
    a("s_cmp_ge_u32 s40, 8")
    a("s_cbranch_scc1 K12_PFIN")
    a.lab("K12_WENTRY")
    a("s_add_u32 s42, s40, 1")
    w_unit(lambda: x_loads(42), 16)
    a("s_mov_b32 s41, s40"); a("s_add_u32 s40, s40, 1")
    early_signal()
    a("s_waitcnt vmcnt(16)")
    publish()
    a("s_cmp_lt_u32 s40, 8")
    a("s_cbranch_scc1 K12_XW")
    a("s_branch K12_PFIN")
    a.lab("K12_NOX")
    a("s_xor_b32 s43, s20, 1")
    a("s_cmp_eq_u32 s43, 0")
    a("s_cselect_b32 s43, 2, s43")
    a.lab("K12_NOX_S")
    signal(43)
    a("s_waitcnt vmcnt(0)")
    publish()
    a("s_add_u32 s43, s43, 2")
    a("s_cmp_lt_u32 s43, 8")
    a("s_cbranch_scc1 K12_NOX_S")
    a.lab("K12_W")
    a("s_add_u32 s42, s40, 2")
    w_unit(lambda: w_loads(42), 8)
    a("s_mov_b32 s41, s40"); a("s_add_u32 s40, s40, 2")
    early_signal()
    a("s_waitcnt vmcnt(16)")
    publish()
    a("s_cmp_lt_u32 s40, 8")
    a("s_cbranch_scc1 K12_W")
    a.lab("K12_PFIN")
    a("s_waitcnt vmcnt(0)")
    signal(41)
    a("s_waitcnt vmcnt(0)")
    publish()
    a("s_endpgm")
```

```python
import sys

NAME = "standalone__self_sup_conv_stem_wavlm__speech"

T2 = 8000
L = 7985
V = 48
NT = 167
XBLK = NT * 128
XFB = 32 * XBLK
XT_SIZE = 64 * XFB
YFB = NT * 2048
YT_SIZE = 64 * YFB

OPT = dict(wpad=0, cpw=1, xfirst=1, ntx=0, ntw=0, ntxs=0, ntws=0, ntk2=0, ntys=0, ntyl=0, nto=0)
def NTF(k): return ' nt' if OPT.get(k) else ''

class A:
    def __init__(self):
        self.l = []
    def __call__(self, s):
        self.l.append("    " + s)
    def lab(self, s):
        self.l.append(s + ":")
    def raw(self, s):
        self.l.append(s)
    def c(self, s):
        self.l.append("    ; " + s)
    def text(self):
        return "\n".join(self.l) + "\n"

def vr(a, n=1):
    return f"v{a}" if n == 1 else f"v[{a}:{a+n-1}]"
def sr(a, n=1):
    return f"s{a}" if n == 1 else f"s[{a}:{a+n-1}]"

def srd(a, s, base, off, size):
    if off is None:
        a(f"s_mov_b32 s{s}, s{base}")
        a(f"s_mov_b32 s{s+1}, s{base+1}")
    else:
        a(f"s_add_u32 s{s}, s{base}, {off}")
        a(f"s_addc_u32 s{s+1}, s{base+1}, 0")
    a(f"s_and_b32 s{s+1}, s{s+1}, 0xffff")
    a(f"s_mov_b32 s{s+2}, {size}")
    a(f"s_mov_b32 s{s+3}, 0x00020000")

def trig(a, vA, vM0, T, hi, lo, tmp, scale=None):
    if OPT.get('k1nocomp'): return
    for e in range(8):
        a(f"v_mad_u32_u24 v{T+e}, v{vA}, {e}, v{vM0}")
    trig_core(a, T, hi, lo, tmp, scale)

def trig_core(a, T, hi, lo, tmp, scale=None):
    for e in range(8):
        a(f"v_and_b32 v{T+e}, 127, v{T+e}")
    for e in range(8):
        a(f"v_cvt_f32_u32 v{T+e}, v{T+e}")
    for e in range(8):
        a(f"v_mul_f32 v{T+e}, 0x3c000000, v{T+e}")
    for e in range(8):
        a(f"v_cos_f32 v{T+e}, v{T+e}")
    a("s_nop 0")
    if scale is not None:
        for e in range(8):
            a(f"v_mul_f32 v{T+e}, {scale}, v{T+e}")
    for q in range(4):
        a(f"v_cvt_pk_bf16_f32 v{hi+q}, v{T+2*q}, v{T+2*q+1}")
    for q in range(4):
        a(f"v_lshlrev_b32 v{tmp}, 16, v{hi+q}")
        a(f"v_and_b32 v{tmp+1}, 0xffff0000, v{hi+q}")
        a(f"v_sub_f32 v{T+2*q}, v{T+2*q}, v{tmp}")
        a(f"v_sub_f32 v{T+2*q+1}, v{T+2*q+1}, v{tmp+1}")
    for q in range(4):
        a(f"v_cvt_pk_bf16_f32 v{lo+q}, v{T+2*q}, v{T+2*q+1}")

def interleave_perm(a, raw, ops, sLo, sHi):
    if OPT.get('k1nocomp'): return
    for q in range(4):
        for m in range(4):
            r0 = raw + 4 * (2 * m) + q
            r1 = raw + 4 * (2 * m + 1) + q
            a(f"v_perm_b32 v{ops+4*(2*q)+m}, v{r1}, v{r0}, s{sLo}")
            a(f"v_perm_b32 v{ops+4*(2*q+1)+m}, v{r1}, v{r0}, s{sHi}")

def stamp_begin(a):
    if OPT.get('stamp'):
        a("s_memtime s[64:65]")
        a("s_memrealtime s[66:67]")
        a("s_load_dwordx2 s[76:77], s[0:1], 48")
        a("s_lshl_b32 s78, s2, 4")

def stamp_mid(a):
    if OPT.get('stamp'):
        a("s_memrealtime s[80:81]")

def stamp_end(a, O, kidx):
    if OPT.get('stamp'):
        a("s_waitcnt vmcnt(0) lgkmcnt(0)")
        a("s_memtime s[68:69]")
        a("s_memrealtime s[70:71]")
        a("s_waitcnt lgkmcnt(0)")
        srd(a, 72, 76, O['ST'] + (2 << 20) + kidx * (1 << 20), 1 << 20)
        a("s_mov_b32 s64, s80")
        a("s_mov_b32 s65, s81")
        for k in range(8):
            a(f"v_mov_b32 v{16+k}, s{64+k}")
        a("s_add_u32 s78, s78, s3")
        a("s_lshl_b32 s78, s78, 5")
        a("v_mov_b32 v30, 0")
        a("s_mov_b64 exec, 1")
        for k in range(2):
            a(f"buffer_store_dwordx4 v[{16+4*k}:{19+4*k}], v30, s[72:75], s78 offen offset:{16*k}")

def code_prefetch(a, entry, tag, vtid=0, tmp=8, nwaves=8):
    if not OPT.get('cpf', 1): return
    a(f"s_getpc_b64 s[90:91]")
    a.lab(f"CPF_{tag}")
    a(f"s_sub_u32 s90, s90, CPF_{tag}-{entry}")
    a("s_subb_u32 s91, s91, 0")
    per = nwaves * 64 * 128
    a(f"v_lshlrev_b32 v{tmp}, 7, v{vtid}")
    a(f"v_mov_b32 v{tmp+3}, s91")
    for r in range(OPT.get('cpfn', 1)):
        a(f"v_min_u32 v{tmp+1}, TEXT_END-{entry}-4, v{tmp}")
        a(f"v_add_co_u32 v{tmp+2}, vcc, s90, v{tmp+1}")
        a(f"v_addc_co_u32 v{tmp+3}, vcc, 0, v{tmp+3}, vcc")
        a(f"global_load_dword v{tmp+1}, v[{tmp+2}:{tmp+3}], off")
        if r + 1 < OPT.get('cpfn', 1):
            a(f"v_mov_b32 v{tmp+3}, s91")
            a(f"v_add_u32 v{tmp}, {per}, v{tmp}")

def layout():
    O = {}
    O['WSTR'] = 524288 + OPT['wpad']
    O['XT'] = 0
    O['WT'] = 48 << 20
    O['YT'] = O['WT'] + ((128 * O['WSTR'] + (1 << 20) - 1) >> 20 << 20) + (1 << 20)
    O['ST'] = O['YT'] + (24 << 20)
    assert O['ST'] + (8 << 20) <= (256 << 20)
    return O

def k1(a, O):
    CPW = OPT['cpw']
    NW = 1024 // CPW
    NX = 2 * 8 * 42
    WSTR = O['WSTR']
    a.raw(".p2align 8")
    a.raw(".type k1_xform_kernel,@function")
    a.lab("k1_xform_kernel")
    a(f"s_cmp_ge_u32 s2, {NW+NX}")
    a("s_cbranch_scc1 K1_END")
    stamp_begin(a)
    a("s_load_dwordx4 s[4:7], s[0:1], 0")
    a("s_load_dwordx2 s[8:9], s[0:1], 48")
    a("v_lshrrev_b32 v120, 6, v0")
    a("v_and_b32 v121, 63, v0")
    a("v_readfirstlane_b32 s3, v120")
    a("v_and_b32 v122, 15, v121")
    a("v_lshrrev_b32 v123, 4, v121")
    a("s_mov_b32 s28, 0x05040100")
    a("s_mov_b32 s29, 0x07060302")
    a("v_and_b32 v124, 3, v122")
    a("v_lshlrev_b32 v124, 2, v124")
    a("v_lshrrev_b32 v125, 3, v122")
    a("v_lshl_add_u32 v124, v125, 1, v124")
    a("s_lshl_b32 s10, s3, 4")
    a("s_add_u32 s10, s10, 1")
    a("v_add_u32 v124, s10, v124")
    a("v_bfe_u32 v125, v122, 2, 1")
    a("v_lshlrev_b32 v121, 4, v121")
    a("s_waitcnt lgkmcnt(0)")
    if OPT.get('xfirst'):
        a(f"s_add_u32 s10, s2, {NW}")
        a(f"s_sub_u32 s11, s2, {NX}")
        a(f"s_cmp_lt_u32 s2, {NX}")
        a("s_cselect_b32 s2, s10, s11")
    a(f"s_cmp_lt_u32 s2, {NW}")
    if OPT.get('skipw'):
        a("s_cbranch_scc1 K1_END")
    else:
        a("s_cbranch_scc1 K1_W")
    if OPT.get('skipx'):
        a("s_endpgm")

    a.c("x-type workgroup: 4 consecutive tiles, one 128-channel group")
    a(f"s_sub_u32 s11, s2, {NW}")
    a("s_and_b32 s12, s11, 7")
    a("s_lshr_b32 s11, s11, 3")
    a("s_cmp_ge_u32 s11, 42")
    a("s_cselect_b32 s13, 1, 0")
    a("s_mul_i32 s14, s13, 42")
    a("s_sub_u32 s11, s11, s14")
    a("s_lshl_b32 s11, s11, 2")
    a("s_add_u32 s11, s11, s3")
    a("s_mul_i32 s14, s13, 16384000")
    srd(a, 16, 4, "s14", 16384000)
    srd(a, 20, 8, O['XT'] if O['XT'] else None, XT_SIZE)
    a("v_lshlrev_b32 v126, 14, v123")
    a("v_lshl_add_u32 v126, v122, 4, v126")
    a(f"s_mul_i32 s15, s11, {48*2048}")
    a("s_lshl_b32 s24, s12, 8")
    a("s_add_u32 s15, s15, s24")
    for ks in range(2):
        for e2 in range(4):
            e = 2 * e2
            r = 32 * ks + 4 * e
            if not OPT.get('k1nold'):
                a(f"buffer_load_dwordx4 v[{r}:{r+3}], v126, s[16:19], s15 offen{NTF('ntx')}")
                a(f"buffer_load_dwordx4 v[{r+4}:{r+7}], v126, s[16:19], s15 offen offset:2048{NTF('ntx')}")
            if not (ks == 1 and e2 == 3):
                a(f"s_add_u32 s15, s15, {4096 if e2 < 3 else 32*2048 - 3*4096}")
    a("v_lshlrev_b32 v127, 3, v123")
    for ks in range(2):
        if ks == 1:
            a("v_add_u32 v127, 32, v127")
        a("v_lshlrev_b32 v112, 5, v125")
        a("v_mad_u32_u24 v113, v124, v127, v112")
        trig(a, 124, 113, 64, 72, 76, 80)
        a(f"s_lshl_b32 s24, s3, 12")
        a(f"v_add_u32 v114, s24, v121")
        a(f"ds_write_b128 v114, v[72:75] offset:{ks*2048}")
        a(f"ds_write_b128 v114, v[76:79] offset:{ks*2048+1024}")
    a("v_lshrrev_b32 v112, 1, v123")
    a(f"s_mov_b32 s24, {2*XFB}")
    a("v_mul_lo_u32 v112, v112, s24")
    a("v_lshrrev_b32 v113, 2, v122")
    a(f"s_mov_b32 s24, {XBLK}")
    a("v_mul_lo_u32 v113, v113, s24")
    a("v_add_u32 v112, v112, v113")
    a("v_and_b32 v113, 3, v122")
    a("v_and_b32 v114, 1, v123")
    a("v_lshl_add_u32 v113, v114, 2, v113")
    a("s_lshr_b32 s24, s11, 1")
    a("s_and_b32 s24, s24, 7")
    a("v_xor_b32 v113, s24, v113")
    a("v_lshl_add_u32 v120, v113, 4, v112")
    a(f"s_mul_i32 s25, s13, {XFB}")
    a(f"s_mul_i32 s24, s12, {4*XBLK}")
    a("s_add_u32 s25, s25, s24")
    a("s_lshl_b32 s24, s11, 7")
    a("s_add_u32 s25, s25, s24")
    if OPT.get('k1lin'):
        a("v_mov_b32 v120, v121")
        a(f"s_sub_u32 s25, s2, {NW}")
        a("s_lshl_b32 s25, s25, 2")
        a("s_add_u32 s25, s25, s3")
        a("s_lshl_b32 s25, s25, 14")
    a("s_waitcnt lgkmcnt(0)")
    a("s_barrier")
    a(f"s_cmp_ge_u32 s11, {NT}")
    a("s_cbranch_scc1 K1_END")
    a("s_waitcnt vmcnt(8)")
    interleave_perm(a, 0, 64, 28, 29)
    a("s_waitcnt vmcnt(0)")
    stamp_mid(a)
    interleave_perm(a, 32, 0, 28, 29)
    for rb in range(4):
        for fr in range(4):
            a(f"ds_read_b128 v[{96+4*fr}:{99+4*fr}], v121 offset:{rb*4096+fr*1024}")
        for term in range(4):
            a(f"s_waitcnt lgkmcnt({3-term})")
            ops = 64 if term < 2 else 0
            for i in range(8 if not OPT.get('k1nocomp') else 0):
                c = "0" if term == 0 else f"v[{32+4*i}:{35+4*i}]"
                a(f"v_mfma_f32_16x16x32_bf16 v[{32+4*i}:{35+4*i}], v[{96+4*term}:{99+4*term}], v[{ops+4*i}:{ops+4*i+3}], {c}")
        a("s_nop 7")
        for r in range(4):
            t = 112 + 4 * (r & 1)
            for q in range(4 if not OPT.get('k1nocomp') else 1):
                a(f"v_cvt_pk_bf16_f32 v{t+q}, v{32+4*(2*q)+r}, v{32+4*(2*q+1)+r}")
            if not OPT.get('k1nost'):
                a(f"buffer_store_dwordx4 v[{t}:{t+3}], v120, s[20:23], s25 offen{NTF('ntxs')}")
            if not (rb == 3 and r == 3):
                a(f"s_add_u32 s25, s25, {1024 if OPT.get('k1lin') else 2*2*XFB}")
    stamp_end(a, O, 0)
    a("s_endpgm")

    a.lab("K1_W")
    a.c("w-type workgroup: CPW consecutive input channels c', wave = column quarter nq")
    srd(a, 16, 6, None, 31 * 524288)
    srd(a, 20, 8, O['WT'], 128 * WSTR)
    a(f"s_mul_i32 s11, s2, {CPW}")
    a("s_lshr_b32 s12, s11, 9")
    a("s_and_b32 s13, s11, 511")
    a("s_lshl_b32 s14, s12, 19")
    a("s_lshl_b32 s15, s13, 10")
    a("s_add_u32 s14, s14, s15")
    a("s_lshl_b32 s15, s3, 8")
    a("s_add_u32 s14, s14, s15")
    a("v_and_b32 v126, 1, v123")
    a("v_lshlrev_b32 v126, 23, v126")
    a("v_lshl_add_u32 v126, v122, 4, v126")
    def wloads():
        a("s_mov_b32 s15, s14")
        for e in range(8):
            if not OPT.get('k1nold'):
                a(f"buffer_load_dwordx4 v[{4*e}:{4*e+3}], v126, s[16:19], s15 offen{NTF('ntw')}")
            if e < 7:
                a("s_add_u32 s15, s15, 0x100000")
    wloads()
    a("v_and_b32 v127, 1, v123")
    a("v_lshlrev_b32 v127, 3, v127")
    a("v_mul_u32_u24 v112, 96, v125")
    a("v_mad_u32_u24 v113, v124, v127, v112")
    trig(a, 124, 113, 64, 72, 76, 80)
    a("v_cmp_lt_u32 vcc, 1, v123")
    a("s_lshl_b32 s24, s3, 10")
    a("v_add_u32 v114, s24, v121")
    for q in range(4):
        a(f"v_cndmask_b32 v{72+q}, v{72+q}, v{76+q}, vcc")
    a("ds_write_b128 v114, v[72:75]")
    a("v_lshrrev_b32 v112, 1, v123")
    a(f"s_mov_b32 s24, {4*WSTR}")
    a("v_mul_lo_u32 v112, v112, s24")
    a("v_and_b32 v113, 1, v123")
    a("v_lshl_add_u32 v112, v113, 8, v112")
    a("v_and_b32 v113, 1, v122")
    a("v_lshl_add_u32 v124, v113, 4, v112")
    a("v_lshrrev_b32 v125, 1, v122")
    a(f"s_mul_i32 s26, s3, {WSTR}")
    a("s_lshl_b32 s24, s11, 9")
    a("s_add_u32 s26, s26, s24")
    a("s_waitcnt lgkmcnt(0)")
    a("s_barrier")
    for rb in range(4):
        a(f"ds_read_b128 v[{96+4*rb}:{99+4*rb}], v121 offset:{rb*1024}")
    a("s_mov_b32 s27, 0")
    a("s_waitcnt vmcnt(0) lgkmcnt(0)")
    stamp_mid(a)
    a.lab("K1_W_LOOP")
    a("s_add_u32 s24, s11, s27")
    a("s_and_b32 s30, s24, 3")
    a("s_lshr_b32 s24, s24, 1")
    a("s_and_b32 s24, s24, 4")
    a("s_or_b32 s30, s30, s24")
    a("v_xor_b32 v112, s30, v125")
    a("v_lshl_add_u32 v120, v112, 5, v124")
    a("s_lshl_b32 s25, s27, 9")
    a("s_add_u32 s25, s25, s26")
    if OPT.get('k1lin'):
        a("v_mov_b32 v120, v121")
        a(f"s_add_u32 s25, s11, s27")
        a("s_lshl_b32 s25, s25, 2")
        a("s_add_u32 s25, s25, s3")
        a("s_lshl_b32 s25, s25, 14")
    interleave_perm(a, 0, 32, 28, 29)
    a("s_add_u32 s27, s27, 1")
    a("s_add_u32 s14, s14, 1024")
    a(f"s_cmp_ge_u32 s27, {CPW}")
    a("s_cbranch_scc1 K1_W_NOLOAD")
    wloads()
    a.lab("K1_W_NOLOAD")
    for rb in range(4):
        for i in range(8 if not OPT.get('k1nocomp') else 0):
            a(f"v_mfma_f32_16x16x32_bf16 v[{64+4*i}:{67+4*i}], v[{96+4*rb}:{99+4*rb}], v[{32+4*i}:{35+4*i}], 0")
        a("s_nop 7")
        for r in range(4):
            t = 112 + 4 * (r & 1)
            for q in range(4 if not OPT.get('k1nocomp') else 1):
                a(f"v_cvt_pk_bf16_f32 v{t+q}, v{64+4*(2*q)+r}, v{64+4*(2*q+1)+r}")
            if not OPT.get('k1nost'):
                a(f"buffer_store_dwordx4 v[{t}:{t+3}], v120, s[20:23], s25 offen{NTF('ntws')}")
            if not (rb == 3 and r == 3):
                a(f"s_add_u32 s25, s25, {1024 if OPT.get('k1lin') else 2*4*WSTR}")
    a("s_waitcnt vmcnt(16)")
    a(f"s_cmp_lt_u32 s27, {CPW}")
    a("s_cbranch_scc1 K1_W_LOOP")
    stamp_end(a, O, 0)
    a.lab("K1_END")
    a("s_endpgm")
    return NW + NX

def descriptor(a, name, vgpr, sgpr=96):
    a.raw(".p2align 6")
    a.raw(f".amdhsa_kernel {name}")
    a.raw(f"  .amdhsa_next_free_vgpr {vgpr}")
    a.raw(f"  .amdhsa_next_free_sgpr {sgpr}")
    a.raw(f"  .amdhsa_accum_offset {min(256, (vgpr+3)//4*4)}")
    a.raw("  .amdhsa_group_segment_fixed_size 0")
    a.raw("  .amdhsa_kernarg_size 56")
    a.raw("  .amdhsa_user_sgpr_count 2")
    a.raw("  .amdhsa_user_sgpr_kernarg_segment_ptr 1")
    a.raw("  .amdhsa_system_sgpr_workgroup_id_x 1")
    a.raw(".end_amdhsa_kernel")

HEADER = """; Kernarg layout for this problem (56 bytes, ptrs only, base s[0:1]):
; Generated by gen.py (hand-written generator).  Algorithm: exact FFT (negacyclic, N=64) convolution:
"""

def main():
    out = NAME + ".s"
    for arg in sys.argv[1:]:
        if "=" in arg:
            k, v = arg.split("=")
            OPT[k] = int(v)
        else:
            out = arg
    O = layout()
    import kernels2
    a = A()
    body = A()
    launches = []
    if OPT.get('fused'):
        sys.modules['gen'].OPT.update(OPT) if 'gen' in sys.modules else None
        import kernels4
        import gen as _g
        _g.OPT.update(OPT)
        launches.append(kernels4.k12(body, O, OPT))
        launches += kernels2.emit(body, O, OPT)
    else:
        g1 = k1(body, O)
        launches.append(("k1_xform_kernel", g1, 256, OPT.get('k1lds', 16384), 128))
        launches += kernels2.emit(body, O, OPT)
    only = OPT.get('only', 0)
    a.raw(HEADER.rstrip("\n"))
    for (n, g, b, lds, v) in launches:
        a.raw(f"; @launch kernel={n} grid=({g},1,1) block=({b},1,1) lds={lds}")
    a.raw('.amdgcn_target "amdgcn-amd-amdhsa--gfx950"')
    a.raw(".text")
    for (n, g, b, lds, v) in launches:
        a.raw(f".globl {n}")
    body.lab("TEXT_END")
    txt = a.text() + body.text()
    d = A()
    d.raw('.section .rodata,"a"')
    for (n, g, b, lds, v) in launches:
        descriptor(d, n, v)
    txt += d.text()
    open(out, "w").write(txt)
    print("wrote", out, len(txt), "bytes;", {k: hex(v) for k, v in O.items()})

if __name__ == "__main__":
    main()
```

```python
from gen import *
import gen

SB = 37888
BOFF = 21504
NBUF = 4

def k2(a, O, OPT):
    WSTR = O['WSTR']
    a.raw(".p2align 8")
    a.raw(".type k2_gemm_kernel,@function")
    a.lab("k2_gemm_kernel")
    a("s_cmp_ge_u32 s2, 256")
    a("s_cbranch_scc1 K2_END")
    a("s_load_dwordx2 s[4:5], s[0:1], 48")
    if OPT.get('stamp'):
        a("s_memtime s[48:49]")
        a("s_memrealtime s[50:51]")
    a("v_lshrrev_b32 v1, 6, v0")
    a("v_and_b32 v2, 63, v0")
    a("v_readfirstlane_b32 s3, v1")
    a("s_and_b32 s6, s2, 7")
    a("s_lshl_b32 s6, s6, 2")
    a("s_lshr_b32 s7, s2, 6")
    a("s_add_u32 s6, s6, s7")
    a("s_lshr_b32 s7, s2, 3")
    a("s_and_b32 s7, s7, 7")
    a("s_lshr_b32 s20, s7, 2")
    a("s_and_b32 s21, s7, 3")
    a("s_lshl_b32 s22, s6, 1")
    a("s_add_u32 s22, s22, s20")
    a("s_lshl_b32 s23, s6, 2")
    a("s_add_u32 s23, s23, s21")
    a(f"s_mul_i32 s24, s22, {XFB}")
    a(f"s_mul_i32 s25, s23, {WSTR}")
    a(f"s_add_u32 s25, s25, {O['WT']}")
    a(f"s_mul_i32 s26, s22, {YFB}")
    a(f"s_add_u32 s26, s26, {O['YT']}")
    if O['XT']:
        a(f"s_add_u32 s24, s24, {O['XT']}")
    a("s_waitcnt lgkmcnt(0)")
    srd(a, 8, 4, "s24", XFB)
    srd(a, 12, 4, "s25", 524288)
    srd(a, 16, 4, "s26", YFB)
    a("v_and_b32 v3, 15, v2")
    a("v_lshrrev_b32 v4, 4, v2")
    a("v_lshlrev_b32 v1, 4, v2")
    a("v_lshrrev_b32 v5, 1, v3")
    a("v_xor_b32 v5, v5, v4")
    a("v_lshlrev_b32 v5, 4, v5")
    a("v_lshl_add_u32 v8, v3, 7, v5")
    a("v_lshrrev_b32 v5, 2, v3")
    a("v_lshl_add_u32 v6, v4, 3, v5")
    a("v_lshlrev_b32 v6, 9, v6")
    a("v_and_b32 v7, 1, v4")
    a("v_lshl_or_b32 v5, v7, 2, v5")
    a("s_and_b32 s27, s3, 3")
    a("s_lshl_b32 s28, s27, 1")
    a("v_xor_b32 v5, s28, v5")
    a("v_lshl_add_u32 v6, v5, 5, v6")
    a("v_and_b32 v5, 3, v3")
    a("v_lshl_add_u32 v6, v5, 3, v6")
    a(f"v_add_u32 v9, {BOFF}, v6")
    a("s_lshl_b32 s28, s21, 7")
    a("s_lshl_b32 s29, s27, 5")
    a("s_add_u32 s28, s28, s29")
    a("v_add_u32 v5, s28, v3")
    a("v_lshlrev_b32 v5, 2, v5")
    a("v_lshl_add_u32 v10, v4, 13, v5")
    ACC = 128
    for r in range(96):
        a(f"v_mov_b32 v{ACC+r}, 0")
    a("s_cmp_ge_u32 s3, 4")
    a("s_cbranch_scc1 K2_MH1")
    k2_wave(a, 0, O, OPT)
    a.lab("K2_MH1")
    k2_wave(a, 1, O, OPT)
    a.lab("K2_END")
    a("s_endpgm")

def k2_wave(a, mh, O, OPT):
    nrb = 6 if mh == 0 else 5
    p = 3 if mh == 0 else 2
    rb0 = 0 if mh == 0 else 6
    ACC = 128
    AF = 16
    BS = [64, 88]
    vAr, vAi, vB0, vB1 = 11, 12, 13, 14
    tag = f"K2M{mh}"
    if mh == 0:
        a("s_lshl_b32 s30, s27, 12")
        a(f"s_add_u32 s32, s30, {BOFF}")
        a("s_lshl_b32 s31, s27, 8")
        a("s_add_u32 s31, s31, 20480")
        a("s_mov_b32 s33, s31")
        strA, strB = 16384, XBLK
    else:
        a("s_mul_i32 s30, s27, 5120")
        a("s_mov_b32 s32, s30")
        a("s_add_u32 s31, s30, 4096")
        a("s_mov_b32 s33, s31")
        strA, strB = XBLK, XBLK
    srdM = "s[12:15]" if mh == 0 else "s[8:11]"

    def dma_list(sbuf):
        g = []
        g.append([f"s_add_u32 m0, s{sbuf}, s32", "s_nop 0", f"buffer_load_dwordx4 v1, {srdM}, s30 offen{NTF('ntk2')} lds"])
        for k in range(1, 4):
            g.append([f"buffer_load_dwordx4 v1, {srdM}, s30 offen offset:{1024*k}{NTF('ntk2')} lds"])
        if mh == 0:
            g.append([f"s_add_u32 m0, s{sbuf}, s33", "s_mov_b64 exec, 0xffff",
                      f"buffer_load_dwordx4 v1, s[8:11], s31 offen{NTF('ntk2')} lds", "s_mov_b64 exec, -1"])
        else:
            g.append([f"s_add_u32 m0, s{sbuf}, s33", "s_nop 0",
                      f"buffer_load_dwordx4 v1, s[8:11], s31 offen{NTF('ntk2')} lds"])
        g.append([f"s_add_u32 s30, s30, {strA}", f"s_add_u32 s31, s31, {strB}"])
        return g

    def a_reads(rb):
        off = (rb0 + rb) * 2048
        return [f"ds_read_b128 v[{AF+8*rb}:{AF+8*rb+3}], v{vAr} offset:{off}",
                f"ds_read_b128 v[{AF+8*rb+4}:{AF+8*rb+7}], v{vAi} offset:{off}"]
    def b_reads(B):
        r = []
        for cb, vb in ((0, vB0), (1, vB1)):
            for ri in range(2):
                d = B + 12 * cb + 4 * ri
                for t in range(2):
                    r.append(f"ds_read_b64_tr_b16 v[{d+2*t}:{d+2*t+1}], v{vb} offset:{ri*256+t*2048}")
        return r
    def b_xor(B):
        return [f"v_xor_b32 v{B+12*cb+8+q}, s34, v{B+12*cb+4+q}" for cb in range(2) for q in range(4)]
    def addr_upd(sbuf):
        return [f"v_add_u32 v{vAr}, s{sbuf}, v8", f"v_add_u32 v{vB0}, s{sbuf}, v9",
                f"v_xor_b32 v{vAi}, 64, v{vAr}", f"v_xor_b32 v{vB1}, 32, v{vB0}"]
    def mfmas(rb, B):
        Ar, Ai = AF + 8 * rb, AF + 8 * rb + 4
        def acc(cb, ri): return ACC + ((rb * 2 + cb) * 2 + ri) * 4
        def m(d, x, y):
            if OPT.get('k2swap'): x, y = y, x
            return f"v_mfma_f32_16x16x32_bf16 v[{d}:{d+3}], v[{x}:{x+3}], v[{y}:{y+3}], v[{d}:{d+3}]"
        Wr = lambda cb: B + 12 * cb
        Wi = lambda cb: B + 12 * cb + 4
        nWi = lambda cb: B + 12 * cb + 8
        if OPT.get('k2ord') == 1:
            return [m(acc(0,0), Ar, Wr(0)), m(acc(0,1), Ai, Wr(0)), m(acc(1,0), Ar, Wr(1)), m(acc(1,1), Ai, Wr(1)),
                    m(acc(0,1), Ar, Wi(0)), m(acc(0,0), Ai, nWi(0)), m(acc(1,1), Ar, Wi(1)), m(acc(1,0), Ai, nWi(1))]
        if OPT.get('k2ord') == 2:
            return [m(acc(0,0), Ar, Wr(0)), m(acc(1,0), Ar, Wr(1)), m(acc(0,1), Ar, Wi(0)), m(acc(1,1), Ar, Wi(1)),
                    m(acc(0,1), Ai, Wr(0)), m(acc(1,1), Ai, Wr(1)), m(acc(0,0), Ai, nWi(0)), m(acc(1,0), Ai, nWi(1))]
        return [m(acc(0,0), Ar, Wr(0)), m(acc(0,1), Ar, Wi(0)), m(acc(1,0), Ar, Wr(1)), m(acc(1,1), Ar, Wi(1)),
                m(acc(0,0), Ai, nWi(0)), m(acc(0,1), Ai, Wr(0)), m(acc(1,0), Ai, nWi(1)), m(acc(1,1), Ai, Wr(1))]

    a("s_mov_b32 s34, 0x80008000")
    a("s_mov_b32 s35, 0")
    for st in range(NBUF):
        for grp in dma_list(35):
            for ins in grp: a(ins)
        a(f"s_add_u32 s35, s35, {SB}")
    a("s_mov_b32 s35, 0")
    a(f"s_mov_b32 s36, {SB}")
    a("s_mov_b32 s37, 0")
    for ins in addr_upd(35): a(ins)
    a("s_waitcnt vmcnt(15)")
    a("s_barrier")
    if OPT.get('stamp'):
        a("s_memtime s[44:45]")
        a("s_memrealtime s[46:47]")
    for ins in b_reads(BS[0]): a(ins)
    for rb in range(nrb - 1):
        for ins in a_reads(rb): a(ins)
        if rb == 1:
            a("s_waitcnt lgkmcnt(4)")
            for ins in b_xor(BS[0]): a(ins)
    a.lab(f"{tag}_LOOP")
    for half in range(2):
        Bc, Bn = BS[half], BS[1 - half]
        a(f"s_waitcnt lgkmcnt({(nrb-1-p)*2})")
        side = {0: [a_reads(nrb-1)[0]], 1: [a_reads(nrb-1)[1]]}
        k = 0
        for rb in range(p):
            for ins in mfmas(rb, Bc):
                a(ins)
                for s_ in side.get(k, []):
                    if OPT.get('k2nolds') and s_.startswith('ds_read'): continue
                    a(s_)
                k += 1
        if OPT.get('k2nodma'):
            a("s_waitcnt lgkmcnt(0)")
        else:
            a("s_waitcnt vmcnt(10) lgkmcnt(0)")
        if not OPT.get('k2nobar'):
            a("s_barrier")
        nslot = (nrb - p) * 8
        side = {i: [] for i in range(nslot)}
        au = addr_upd(36)
        side[0] += au[:2]; side[1] += au[2:]
        br = b_reads(Bn)
        for i in range(8): side[2 + i // 2].append(br[i])
        slot = 6
        for rb in range(p):
            side[slot] += a_reads(rb); slot += 1
        slot = max(slot, 8)
        side[slot] += a_reads(p); nA_after_B = 2 * (p + 1)
        slot += 1
        dl = dma_list(35)
        if OPT.get('k2nodma'):
            dl = []
        dslot = slot
        for grp in dl:
            side[min(dslot, nslot - 1)] += grp
            dslot += 1
        xs = max(16, dslot - 1) if nslot > 16 else nslot - 5
        xs = 16
        side[xs].append(f"s_waitcnt lgkmcnt({nA_after_B})")
        xr = b_xor(Bn)
        for i in range(8): side[xs + i // 2].append(xr[i])
        for rb in range(p + 1, nrb - 1):
            sl = (rb - p + 1) * 8
            side[max(sl, xs + 4)] += a_reads(rb)
        side[nslot - 1] += ["s_mov_b32 s35, s36", f"s_add_u32 s36, s36, {SB}",
                            f"s_cmp_eq_u32 s36, {NBUF*SB}", "s_cselect_b32 s36, 0, s36"]
        k = 0
        for rb in range(p, nrb):
            for ins in mfmas(rb, Bc):
                a(ins)
                for s_ in side[k]:
                    if OPT.get('k2nolds') and s_.startswith('ds_read'): continue
                    a(s_)
                k += 1
    a("s_add_u32 s37, s37, 1")
    a("s_cmp_lt_u32 s37, 16")
    a(f"s_cbranch_scc1 {tag}_LOOP")
    if OPT.get('stamp'):
        a("s_memtime s[52:53]")
        a("s_memrealtime s[54:55]")
    a("s_nop 7")
    a("s_nop 1")
    n = 0
    for rb in range(nrb):
        for i in range(4):
            if i % 2 == 0:
                a(f"s_mov_b32 s38, {(16*(rb0+rb)+i)*2048}")
            for cb in range(2):
                t = 16 + (n % 8); n += 1
                yr = ACC + ((rb * 2 + cb) * 2 + 0) * 4 + i
                yi = ACC + ((rb * 2 + cb) * 2 + 1) * 4 + i
                a(f"v_cvt_pk_bf16_f32 v{t}, v{yr}, v{yi}")
                a(f"buffer_store_dword v{t}, v10, s[16:19], s38 offen offset:{(i&1)*2048+cb*64}{NTF('ntys')}")
    if OPT.get('stamp'):
        a("s_waitcnt vmcnt(0)")
        a("s_memtime s[56:57]")
        a("s_memrealtime s[58:59]")
        a("s_waitcnt lgkmcnt(0)")
        srd(a, 60, 4, O['ST'] + (1 << 20), 1 << 20)
        for k in range(12):
            a(f"v_mov_b32 v{16+k}, s{48+k}")
        for k in range(4):
            a(f"v_mov_b32 v{28+k}, s{44+k}")
        a("s_lshl_b32 s38, s2, 3")
        a("s_add_u32 s38, s38, s3")
        a("s_lshl_b32 s38, s38, 6")
        a("v_mov_b32 v40, 0")
        a("s_mov_b64 exec, 1")
        for k in range(4):
            a(f"buffer_store_dwordx4 v[{16+4*k}:{19+4*k}], v40, s[60:63], s38 offen offset:{16*k}")
    a("s_endpgm")

def k34(a, O, OPT, final):
    name = "k4_out_kernel" if final else "k3_stats_kernel"
    tag = "K4" if final else "K3"
    a.raw(".p2align 8")
    a.raw(f".type {name},@function")
    a.lab(name)
    a("s_cmp_ge_u32 s2, 256")
    a(f"s_cbranch_scc1 {tag}_END")
    stamp_begin(a)
    a("s_load_dwordx2 s[4:5], s[0:1], 48")
    if final:
        a("s_load_dwordx4 s[40:43], s[0:1], 16")
        a("s_load_dwordx2 s[44:45], s[0:1], 32")
    a("v_lshrrev_b32 v1, 6, v0")
    a("v_and_b32 v2, 63, v0")
    a("v_readfirstlane_b32 s3, v1")
    a("s_and_b32 s6, s2, 15")
    a("s_lshr_b32 s7, s2, 4")
    a("s_lshr_b32 s20, s6, 3")
    a("s_and_b32 s21, s6, 7")
    a("s_mul_i32 s22, s7, 11")
    a("s_mul_i32 s23, s7, 10")
    a("s_add_u32 s23, s23, 7")
    a("s_cmp_lt_u32 s7, 7")
    a("s_cselect_b32 s22, s22, s23")
    a("s_cselect_b32 s23, 11, 10")
    a("s_add_u32 s22, s22, s3")
    a("v_and_b32 v3, 15, v2")
    a("v_lshrrev_b32 v4, 4, v2")
    a("v_lshlrev_b32 v5, 4, v2")
    LB = 16
    GF = 48
    ACC = 96
    AB = 144
    T = 152
    a(f"s_mov_b32 s24, {4*2*YFB}")
    a("v_mul_lo_u32 v6, v4, s24")
    a("v_lshl_add_u32 v6, v3, 4, v6")
    a(f"s_mul_i32 s25, s20, {NT}")
    a("s_add_u32 s25, s25, s22")
    a("s_lshl_b32 s25, s25, 11")
    a("s_lshl_b32 s24, s21, 8")
    a("s_add_u32 s25, s25, s24")
    a("s_waitcnt lgkmcnt(0)")
    srd(a, 8, 4, O['YT'], YT_SIZE)
    srd(a, 12, 4, O['ST'], 256 * 512)
    a("s_cmp_lt_u32 s3, s23")
    a(f"s_cbranch_scc0 {tag}_NOLOAD")
    for ks in range(2):
        for r in range(4):
            d = LB + (ks * 4 + r) * 4
            a(f"buffer_load_dwordx4 v[{d}:{d+3}], v6, s[8:11], s25 offen{NTF('ntyl')}")
            if not (ks == 1 and r == 3):
                a(f"s_add_u32 s25, s25, {2*YFB if r < 3 else (16-3)*2*YFB}")
    a.lab(f"{tag}_NOLOAD")
    SL = 12288
    t0 = 1 if final else 0
    if final:
        a("s_cmp_lg_u32 s3, 0")
        a(f"s_cbranch_scc1 {tag}_TAB")
        srd(a, 16, 40, None, 1024)
        srd(a, 28, 42, None, 1024)
        a("v_lshlrev_b32 v7, 2, v2")
        a("s_lshl_b32 s24, s6, 13")
        for gg in range(16):
            a(f"buffer_load_dword v{ACC+gg}, v7, s[12:15], s24 offen offset:{(gg&7)*512}")
            a(f"buffer_load_dword v{ACC+16+gg}, v7, s[12:15], s24 offen offset:{(gg&7)*512+256}")
            if gg == 7:
                a("s_add_u32 s24, s24, 4096")
        a("s_lshl_b32 s24, s21, 7")
        a("v_lshlrev_b32 v8, 1, v2")
        a("buffer_load_ushort v9, v8, s[16:19], s24 offen")
        a("buffer_load_ushort v10, v8, s[28:31], s24 offen")
        a("s_waitcnt vmcnt(0)")
        for st in (8, 4, 2, 1):
            for i in range(st):
                a(f"v_add_f32 v{ACC+i}, v{ACC+i}, v{ACC+st+i}")
                a(f"v_add_f32 v{ACC+16+i}, v{ACC+16+i}, v{ACC+16+st+i}")
        a(f"v_mul_f32 v11, {hexf(1.0/L)}, v{ACC}")
        a(f"v_mul_f32 v12, {hexf(1.0/L)}, v{ACC+16}")
        a("v_fma_f32 v12, -v11, v11, v12")
        a("v_max_f32 v12, 0, v12")
        a(f"v_add_f32 v12, {hexf(1e-5)}, v12")
        a("v_sqrt_f32 v12, v12")
        a("v_lshlrev_b32 v9, 16, v9")
        a("v_rcp_f32 v12, v12")
        a("v_lshlrev_b32 v10, 16, v10")
        a("v_mul_f32 v9, v9, v12")
        a("v_fma_f32 v10, -v11, v9, v10")
        a(f"ds_write_b32 v7, v9 offset:{SL}")
        a(f"ds_write_b32 v7, v10 offset:{SL+256}")
        a(f"s_branch {tag}_TABDONE")
        a.lab(f"{tag}_TAB")
    a(f"s_cmp_ge_u32 s3, {t0+6}")
    a(f"s_cbranch_scc1 {tag}_TABDONE")
    a(f"s_sub_u32 s27, s3, {t0}")
    a("s_lshr_b32 s28, s27, 1")
    a("s_and_b32 s29, s27, 1")
    a("s_lshl_b32 s30, s28, 4")
    a("v_add_u32 v8, s30, v3")
    a("s_lshl_b32 s30, s29, 5")
    a("s_add_u32 s30, s30, 1")
    a("v_lshlrev_b32 v9, 3, v4")
    a("v_add_u32 v9, s30, v9")
    a("v_mul_u32_u24 v9, v8, v9")
    a("v_lshlrev_b32 v8, 1, v8")
    for e in range(8):
        a(f"v_mad_u32_u24 v{GF+e}, v8, {e>>1}, v9")
        if e & 1:
            a(f"v_add_u32 v{GF+e}, 32, v{GF+e}")
    trig_core(a, GF, GF + 8, GF + 12, GF + 16, scale="0x3d000000")
    a("s_lshl_b32 s30, s27, 11")
    a("v_add_u32 v10, s30, v5")
    a(f"ds_write_b128 v10, v[{GF+8}:{GF+11}]")
    a(f"ds_write_b128 v10, v[{GF+12}:{GF+15}] offset:1024")
    a.lab(f"{tag}_TABDONE")
    a("s_waitcnt lgkmcnt(0)")
    a("s_barrier")
    a("s_cmp_lt_u32 s3, s23")
    if final:
        a(f"s_cbranch_scc0 {tag}_END")
    else:
        a(f"s_cbranch_scc0 {tag}_IDLE")
    for fr in range(12):
        a(f"ds_read_b128 v[{GF+4*fr}:{GF+4*fr+3}], v5 offset:{fr*1024}")
    if final:
        a("v_lshlrev_b32 v7, 4, v3")
        a(f"ds_read_b128 v[{AB}:{AB+3}], v7 offset:{SL}")
        a(f"ds_read_b128 v[{AB+4}:{AB+7}], v7 offset:{SL+256}")
    a("s_waitcnt vmcnt(0)")
    stamp_mid(a)
    for blk in range(2):
        b0 = LB + blk * 16
        for r in range(4):
            for i in range(r + 1, 4):
                a(f"v_swap_b32 v{b0+4*r+i}, v{b0+4*i+r}")
    a("s_waitcnt lgkmcnt(0)")
    if not final:
        a(f"s_mul_i32 s24, s22, {V}")
        a(f"s_sub_u32 s24, {L}, s24")
        a(f"s_cmp_ge_u32 s24, {V}")
        a(f"s_cbranch_scc1 {tag}_FULL")
        for rb in range(3):
            a(f"v_add_u32 v7, {16*rb}, v3")
            a("v_cmp_gt_u32 vcc, s24, v7")
            a("s_nop 1")
            for q in range(16):
                r = GF + rb * 16 + q
                a(f"v_cndmask_b32 v{r}, 0, v{r}, vcc")
        a.lab(f"{tag}_FULL")
    a("s_nop 1")
    for rb in range(3):
        for ks in range(2):
            for hl in range(2):
                G = GF + ((rb * 2 + ks) * 2 + hl) * 4
                for i in range(4):
                    d = ACC + (rb * 4 + i) * 4
                    Bq = LB + (ks * 4 + i) * 4
                    c = "0" if (ks == 0 and hl == 0) else f"v[{d}:{d+3}]"
                    a(f"v_mfma_f32_16x16x32_bf16 v[{d}:{d+3}], v[{G}:{G+3}], v[{Bq}:{Bq+3}], {c}")
    if not final:
        a("s_nop 7")
        for i in range(4):
            x = ACC + i * 4
            a(f"v_mov_b32 v{16+i}, v{x}")
            a(f"v_mul_f32 v{20+i}, v{x}, v{x}")
        for rb in range(3):
            for r in range(4):
                if rb == 0 and r == 0: continue
                for i in range(4):
                    x = ACC + (rb * 4 + i) * 4 + r
                    a(f"v_add_f32 v{16+i}, v{16+i}, v{x}")
                    a(f"v_fmac_f32 v{20+i}, v{x}, v{x}")
        for sw in ("v_permlane32_swap_b32", "v_permlane16_swap_b32"):
            for i in range(8):
                a(f"v_mov_b32 v{24+i}, v{16+i}")
            a("s_nop 0")
            for i in range(8):
                a(f"{sw} v{16+i}, v{24+i}")
            for i in range(8):
                a(f"v_add_f32 v{16+i}, v{16+i}, v{24+i}")
        a(f"s_branch {tag}_WR")
        a.lab(f"{tag}_IDLE")
        for r in range(8):
            a(f"v_mov_b32 v{16+r}, 0")
        a.lab(f"{tag}_WR")
        a("s_lshl_b32 s24, s3, 9")
        a("v_lshlrev_b32 v7, 4, v3")
        a("v_add_u32 v7, s24, v7")
        a(f"ds_write_b128 v7, v[16:19] offset:{SL}")
        a(f"ds_write_b128 v7, v[20:23] offset:{SL+256}")
        a("s_waitcnt lgkmcnt(0)")
        a("s_barrier")
        a("s_cmp_ge_u32 s3, 2")
        a(f"s_cbranch_scc1 {tag}_END")
        a("v_lshlrev_b32 v7, 2, v0")
        for k in range(12):
            a(f"ds_read_b32 v{32+k}, v7 offset:{SL+k*512}")
        a("s_waitcnt lgkmcnt(0)")
        for k in range(1, 12):
            a(f"v_add_f32 v32, v32, v{32+k}")
        a("s_lshl_b32 s24, s6, 4")
        a("s_add_u32 s24, s24, s7")
        a("s_lshl_b32 s24, s24, 9")
        a("buffer_store_dword v32, v7, s[12:15], s24 offen")
        stamp_end(a, O, 2)
    else:
        a(f"s_mul_i32 s24, s20, {L*1024}")
        srd(a, 16, 44, "s24", L * 1024)
        a("v_lshlrev_b32 v7, 12, v4")
        a("v_lshl_add_u32 v7, v3, 3, v7")
        a("s_lshl_b32 s24, s21, 7")
        a("v_add_u32 v7, s24, v7")
        a(f"s_mul_i32 s25, s22, {V*1024}")
        a(f"s_mov_b32 s30, {hexf(-2.302208198)}")
        a(f"s_mov_b32 s31, {hexf(-2.302208198*0.044715)}")
        a("v_mov_b32 v15, s30")
        a("s_nop 3")
        n = 0
        for rb in range(3):
            for rp in range(2):
                t = 16 + (n % 2) * 20; n += 1
                vals = [(r, i) for r in (2 * rp, 2 * rp + 1) for i in range(4)]
                for k, (r, i) in enumerate(vals):
                    x = ACC + (rb * 4 + i) * 4 + r
                    a(f"v_fma_f32 v{t+k}, v{x}, v{AB+i}, v{AB+4+i}")
                for k in range(8):
                    a(f"v_mul_f32 v{t+8+k}, v{t+k}, v{t+k}")
                for k in range(8):
                    a(f"v_fma_f32 v{t+8+k}, v{t+8+k}, s31, v15")
                for k in range(8):
                    a(f"v_mul_f32 v{t+8+k}, v{t+8+k}, v{t+k}")
                for k in range(8):
                    a(f"v_exp_f32 v{t+8+k}, v{t+8+k}")
                for k in range(8):
                    a(f"v_add_f32 v{t+8+k}, 1.0, v{t+8+k}")
                for k in range(8):
                    a(f"v_rcp_f32 v{t+8+k}, v{t+8+k}")
                for k in range(8):
                    a(f"v_mul_f32 v{t+k}, v{t+k}, v{t+8+k}")
                for h in range(2):
                    a(f"v_cvt_pk_bf16_f32 v{t+16+2*h}, v{t+4*h}, v{t+4*h+1}")
                    a(f"v_cvt_pk_bf16_f32 v{t+17+2*h}, v{t+4*h+2}, v{t+4*h+3}")
                    a(f"buffer_store_dwordx2 v[{t+16+2*h}:{t+17+2*h}], v7, s[16:19], s25 offen offset:{h*1024}{NTF('nto')}")
                a("s_add_u32 s25, s25, 2048")
            a(f"s_add_u32 s25, s25, {12*1024}")
        stamp_end(a, O, 3)
    a.lab(f"{tag}_END")
    a("s_endpgm")

def k34f(a, O, OPT):
    name = "k34_out_kernel"; tag = "K34"
    a.raw(".p2align 8")
    a.raw(f".type {name},@function")
    a.lab(name)
    a("s_cmp_ge_u32 s2, 256")
    a(f"s_cbranch_scc1 {tag}_END")
    stamp_begin(a)
    a("s_load_dwordx2 s[4:5], s[0:1], 48")
    a("s_load_dwordx4 s[40:43], s[0:1], 16")
    a("s_load_dwordx2 s[44:45], s[0:1], 32")
    if OPT.get('cpf4'):
        code_prefetch(a, "k34_out_kernel", "K34", 0, 8, 12, dest=160)
    a("v_lshrrev_b32 v1, 6, v0")
    a("v_and_b32 v2, 63, v0")
    a("v_readfirstlane_b32 s3, v1")
    a("s_and_b32 s6, s2, 15")
    a("s_lshr_b32 s7, s2, 4")
    a("s_lshr_b32 s20, s6, 3")
    a("s_and_b32 s21, s6, 7")
    a("s_mul_i32 s22, s7, 11")
    a("s_mul_i32 s23, s7, 10")
    a("s_add_u32 s23, s23, 7")
    a("s_cmp_lt_u32 s7, 7")
    a("s_cselect_b32 s22, s22, s23")
    a("s_cselect_b32 s23, 11, 10")
    a("s_add_u32 s22, s22, s3")
    a("v_and_b32 v3, 15, v2")
    a("v_lshrrev_b32 v4, 4, v2")
    a("v_lshlrev_b32 v5, 4, v2")
    LB, GF, ACC, AB = 16, 48, 96, 144
    a(f"s_mov_b32 s24, {4*2*YFB}")
    a("v_mul_lo_u32 v6, v4, s24")
    a("v_lshl_add_u32 v6, v3, 4, v6")
    a(f"s_mul_i32 s25, s20, {NT}")
    a("s_add_u32 s25, s25, s22")
    a("s_lshl_b32 s25, s25, 11")
    a("s_lshl_b32 s24, s21, 8")
    a("s_add_u32 s25, s25, s24")
    a("s_waitcnt lgkmcnt(0)")
    srd(a, 8, 4, O['YT'], YT_SIZE)
    srd(a, 12, 4, O['PART'], 256 * 512)
    a("s_cmp_lt_u32 s3, s23")
    a(f"s_cbranch_scc0 {tag}_NOLOAD")
    for ks in range(2):
        for r in range(4):
            d = LB + (ks * 4 + r) * 4
            a(f"buffer_load_dwordx4 v[{d}:{d+3}], v6, s[8:11], s25 offen{NTF('ntyl')}")
            if not (ks == 1 and r == 3):
                a(f"s_add_u32 s25, s25, {2*YFB if r < 3 else (16-3)*2*YFB}")
    a.lab(f"{tag}_NOLOAD")
    SL = 12288
    SA = SL + 6144
    a("s_cmp_lg_u32 s3, 0")
    a(f"s_cbranch_scc1 {tag}_TAB")
    srd(a, 16, 40, None, 1024)
    srd(a, 28, 42, None, 1024)
    a("s_lshl_b32 s24, s21, 7")
    a("v_lshlrev_b32 v8, 1, v2")
    a("buffer_load_ushort v152, v8, s[16:19], s24 offen")
    a("buffer_load_ushort v153, v8, s[28:31], s24 offen")
    a(f"s_branch {tag}_TABDONE")
    a.lab(f"{tag}_TAB")
    a("s_cmp_ge_u32 s3, 7")
    a(f"s_cbranch_scc1 {tag}_TABDONE")
    a("s_sub_u32 s27, s3, 1")
    a("s_lshr_b32 s28, s27, 1")
    a("s_and_b32 s29, s27, 1")
    a("s_lshl_b32 s30, s28, 4")
    a("v_add_u32 v8, s30, v3")
    a("s_lshl_b32 s30, s29, 5")
    a("s_add_u32 s30, s30, 1")
    a("v_lshlrev_b32 v9, 3, v4")
    a("v_add_u32 v9, s30, v9")
    a("v_mul_u32_u24 v9, v8, v9")
    a("v_lshlrev_b32 v8, 1, v8")
    for e in range(8):
        a(f"v_mad_u32_u24 v{GF+e}, v8, {e>>1}, v9")
        if e & 1:
            a(f"v_add_u32 v{GF+e}, 32, v{GF+e}")
    trig_core(a, GF, GF + 8, GF + 12, GF + 16, scale="0x3d000000")
    a("s_lshl_b32 s30, s27, 11")
    a("v_add_u32 v10, s30, v5")
    a(f"ds_write_b128 v10, v[{GF+8}:{GF+11}]")
    a(f"ds_write_b128 v10, v[{GF+12}:{GF+15}] offset:1024")
    a.lab(f"{tag}_TABDONE")
    a("s_waitcnt lgkmcnt(0)")
    a("s_barrier")
    a("s_cmp_lt_u32 s3, s23")
    a(f"s_cbranch_scc0 {tag}_IDLE")
    for fr in range(12):
        if fr & 1 and not OPT.get('glo', 1): continue
        a(f"ds_read_b128 v[{GF+4*fr}:{GF+4*fr+3}], v5 offset:{fr*1024}")
    a("s_waitcnt vmcnt(0)")
    stamp_mid(a)
    for blk in range(2):
        b0 = LB + blk * 16
        for r in range(4):
            for i in range(r + 1, 4):
                a(f"v_swap_b32 v{b0+4*r+i}, v{b0+4*i+r}")
    a("s_waitcnt lgkmcnt(0)")
    a(f"s_mul_i32 s24, s22, {V}")
    a(f"s_sub_u32 s24, {L}, s24")
    a(f"s_cmp_ge_u32 s24, {V}")
    a(f"s_cbranch_scc1 {tag}_FULL")
    for rb in range(3):
        a(f"v_add_u32 v7, {16*rb}, v3")
        a("v_cmp_gt_u32 vcc, s24, v7")
        a("s_nop 1")
        for q in range(16):
            r = GF + rb * 16 + q
            a(f"v_cndmask_b32 v{r}, 0, v{r}, vcc")
    a.lab(f"{tag}_FULL")
    a("s_nop 1")
    for rb in range(3):
        for ks in range(2):
            for hl in range(2 if OPT.get('glo', 1) else 1):
                G = GF + ((rb * 2 + ks) * 2 + hl) * 4
                for i in range(4):
                    d = ACC + (rb * 4 + i) * 4
                    Bq = LB + (ks * 4 + i) * 4
                    c = "0" if (ks == 0 and hl == 0) else f"v[{d}:{d+3}]"
                    a(f"v_mfma_f32_16x16x32_bf16 v[{d}:{d+3}], v[{G}:{G+3}], v[{Bq}:{Bq+3}], {c}")
    a("s_nop 7")
    for i in range(4):
        x = ACC + i * 4
        a(f"v_mov_b32 v{16+i}, v{x}")
        a(f"v_mul_f32 v{20+i}, v{x}, v{x}")
    for rb in range(3):
        for r in range(4):
            if rb == 0 and r == 0: continue
            for i in range(4):
                x = ACC + (rb * 4 + i) * 4 + r
                a(f"v_add_f32 v{16+i}, v{16+i}, v{x}")
                a(f"v_fmac_f32 v{20+i}, v{x}, v{x}")
    for sw in ("v_permlane32_swap_b32", "v_permlane16_swap_b32"):
        for i in range(8):
            a(f"v_mov_b32 v{24+i}, v{16+i}")
        a("s_nop 0")
        for i in range(8):
            a(f"{sw} v{16+i}, v{24+i}")
        for i in range(8):
            a(f"v_add_f32 v{16+i}, v{16+i}, v{24+i}")
    a(f"s_branch {tag}_WR")
    a.lab(f"{tag}_IDLE")
    for r in range(8):
        a(f"v_mov_b32 v{16+r}, 0")
    a.lab(f"{tag}_WR")
    a("s_lshl_b32 s24, s3, 9")
    a("v_lshlrev_b32 v7, 4, v3")
    a("v_add_u32 v7, s24, v7")
    a(f"ds_write_b128 v7, v[16:19] offset:{SL}")
    a(f"ds_write_b128 v7, v[20:23] offset:{SL+256}")
    a("s_waitcnt lgkmcnt(0)")
    a("s_barrier")
    if gen.OPT.get('stamp'): a("s_memrealtime s[84:85]")
    a("s_cmp_lg_u32 s3, 0")
    a(f"s_cbranch_scc1 {tag}_WAIT")
    a("v_lshlrev_b32 v7, 2, v2")
    for k in range(12):
        a(f"ds_read_b32 v{16+k}, v7 offset:{SL+k*512}")
    a("s_waitcnt lgkmcnt(0)")
    for k in range(12):
        a(f"ds_read_b32 v{32+k}, v7 offset:{SL+k*512+256}")
    for k in range(1, 12):
        a(f"v_add_f32 v16, v16, v{16+k}")
    a("s_waitcnt lgkmcnt(0)")
    for k in range(1, 12):
        a(f"v_add_f32 v32, v32, v{32+k}")
    a("s_lshl_b32 s24, s6, 4")
    a("s_add_u32 s24, s24, s7")
    a("s_lshl_b32 s24, s24, 9")
    a("buffer_store_dword v16, v7, s[12:15], s24 offen sc1")
    a("buffer_store_dword v32, v7, s[12:15], s24 offen offset:256 sc1")
    a("s_mov_b32 s26, 20000")
    a.lab(f"{tag}_POLL")
    a("s_lshl_b32 s24, s6, 13")
    for gg in range(16):
        a(f"buffer_load_dword v{16+gg}, v7, s[12:15], s24 offen offset:{(gg&7)*512} sc1")
        a(f"buffer_load_dword v{32+gg}, v7, s[12:15], s24 offen offset:{(gg&7)*512+256} sc1")
        if gg == 7:
            a("s_add_u32 s24, s24, 4096")
    a("s_waitcnt vmcnt(0)")
    a("v_max3_u32 v48, v16, v17, v18")
    for k in range(19, 47, 2):
        a(f"v_max3_u32 v48, v48, v{k}, v{k+1}")
    a("v_max_u32 v48, v48, v47")
    a("v_cmp_eq_u32 vcc, -1, v48")
    a("s_sub_u32 s26, s26, 1")
    a("s_cmp_eq_u32 s26, 0")
    a(f"s_cbranch_scc1 {tag}_GOT")
    a(f"s_cbranch_vccz {tag}_GOT")
    a("s_sleep 1")
    a(f"s_branch {tag}_POLL")
    a.lab(f"{tag}_GOT")
    for st in (8, 4, 2, 1):
        for i in range(st):
            a(f"v_add_f32 v{16+i}, v{16+i}, v{16+st+i}")
            a(f"v_add_f32 v{32+i}, v{32+i}, v{32+st+i}")
    a(f"v_mul_f32 v11, {hexf(1.0/L)}, v16")
    a(f"v_mul_f32 v12, {hexf(1.0/L)}, v32")
    a("v_fma_f32 v12, -v11, v11, v12")
    a("v_max_f32 v12, 0, v12")
    a(f"v_add_f32 v12, {hexf(1e-5)}, v12")
    a("v_sqrt_f32 v12, v12")
    a("v_lshlrev_b32 v9, 16, v152")
    a("v_rcp_f32 v12, v12")
    a("v_lshlrev_b32 v10, 16, v153")
    a("v_mul_f32 v9, v9, v12")
    a("v_fma_f32 v10, -v11, v9, v10")
    a(f"ds_write_b32 v7, v9 offset:{SA}")
    a(f"ds_write_b32 v7, v10 offset:{SA+256}")
    a("s_waitcnt lgkmcnt(0)")
    a.lab(f"{tag}_WAIT")
    a("s_barrier")
    if gen.OPT.get('stamp'): a("s_memrealtime s[86:87]")
    a("s_cmp_lt_u32 s3, s23")
    a(f"s_cbranch_scc0 {tag}_END")
    a("v_lshlrev_b32 v7, 4, v3")
    a(f"ds_read_b128 v[{AB}:{AB+3}], v7 offset:{SA}")
    a(f"ds_read_b128 v[{AB+4}:{AB+7}], v7 offset:{SA+256}")
    a(f"s_mul_i32 s24, s20, {L*1024}")
    srd(a, 16, 44, "s24", L * 1024)
    a("v_lshlrev_b32 v7, 12, v4")
    a("v_lshl_add_u32 v7, v3, 3, v7")
    a("s_lshl_b32 s24, s21, 7")
    a("v_add_u32 v7, s24, v7")
    a(f"s_mul_i32 s25, s22, {V*1024}")
    a(f"s_mov_b32 s30, {hexf(-2.302208198)}")
    a(f"s_mov_b32 s31, {hexf(-2.302208198*0.044715)}")
    a("v_mov_b32 v15, s30")
    a("s_waitcnt lgkmcnt(0)")
    n = 0
    for rb in range(3):
        for rp in range(2):
            t = 16 + (n % 2) * 20; n += 1
            vals = [(r, i) for r in (2 * rp, 2 * rp + 1) for i in range(4)]
            for k, (r, i) in enumerate(vals):
                x = ACC + (rb * 4 + i) * 4 + r
                a(f"v_fma_f32 v{t+k}, v{x}, v{AB+i}, v{AB+4+i}")
            for k in range(8):
                a(f"v_mul_f32 v{t+8+k}, v{t+k}, v{t+k}")
            for k in range(8):
                a(f"v_fma_f32 v{t+8+k}, v{t+8+k}, s31, v15")
            for k in range(8):
                a(f"v_mul_f32 v{t+8+k}, v{t+8+k}, v{t+k}")
            for k in range(8):
                a(f"v_exp_f32 v{t+8+k}, v{t+8+k}")
            for k in range(8):
                a(f"v_add_f32 v{t+8+k}, 1.0, v{t+8+k}")
            for k in range(8):
                a(f"v_rcp_f32 v{t+8+k}, v{t+8+k}")
            for k in range(8):
                a(f"v_mul_f32 v{t+k}, v{t+k}, v{t+8+k}")
            for h in range(2):
                a(f"v_cvt_pk_bf16_f32 v{t+16+2*h}, v{t+4*h}, v{t+4*h+1}")
                a(f"v_cvt_pk_bf16_f32 v{t+17+2*h}, v{t+4*h+2}, v{t+4*h+3}")
                a(f"buffer_store_dwordx2 v[{t+16+2*h}:{t+17+2*h}], v7, s[16:19], s25 offen offset:{h*1024}{NTF('nto')}")
            a("s_add_u32 s25, s25, 2048")
        a(f"s_add_u32 s25, s25, {12*1024}")
    if gen.OPT.get('stamp'):
        a("s_waitcnt vmcnt(0) lgkmcnt(0)")
        a("s_memrealtime s[70:71]")
        a("s_waitcnt lgkmcnt(0)")
        srd(a, 72, 76, O['ST'] + (2 << 20) + 3 * (1 << 20), 1 << 20)
        for k, sreg in enumerate([66, 67, 80, 81, 84, 85, 86, 87, 70, 71]):
            a(f"v_mov_b32 v{16+k}, s{sreg}")
        a("s_add_u32 s78, s78, s3")
        a("s_lshl_b32 s78, s78, 6")
        a("v_mov_b32 v30, 0")
        a("s_mov_b64 exec, 1")
        for k in range(3):
            a(f"buffer_store_dwordx4 v[{16+4*k}:{19+4*k}], v30, s[72:75], s78 offen offset:{16*k}")
    a.lab(f"{tag}_END")
    a("s_endpgm")

import struct
def hexf(x):
    return "0x%08x" % struct.unpack("<I", struct.pack("<f", x))[0]

def emit(a, O, OPT):
    gen.OPT.update(OPT)
    if OPT.get('fused'):
        l2 = None
    elif OPT.get('k2b'):
        import kernels3
        l2 = kernels3.k2b(a, O, OPT)
    else:
        k2(a, O, OPT)
        l2 = ("k2_gemm_kernel", 256, 512, NBUF * SB, 256)
    if OPT.get('k34'):
        k34f(a, O, OPT)
        return ([l2] if l2 else []) + [("k34_out_kernel", 256, 768, 12288 + 6144 + 512, 168)]
    k34(a, O, OPT, False)
    k34(a, O, OPT, True)
    return ([l2] if l2 else []) + [
            ("k3_stats_kernel", 256, 768, 12288 + 6144, 168),
            ("k4_out_kernel", 256, 768, 12288 + 512, 168)]
```

```python
from gen import *
import gen
from kernels3 import BOFF2, SB2, NBUF2, SYNC

PCNT = SYNC + 32
ISSUED = SYNC + 16
MIRROR = SYNC + 64
ONES = MIRROR + 32
DUMMY = MIRROR + 64
LDS12 = DUMMY + 64
TABX = 0
TABW = 16384
SPIN = 4096

def k12(a, O, OPT):
    global TABX, TABW
    WSTR = O['WSTR']
    if OPT.get('kpre'):
        TABX = 3 * SB2
        TABW = TABX + 16384
    a.raw(".p2align 8")
    a.raw(".type k12_fused_kernel,@function")
    a.lab("k12_fused_kernel")
    a("s_cmp_ge_u32 s2, 256")
    a("s_cbranch_scc1 K12_END")
    a("s_load_dwordx4 s[52:55], s[0:1], 0")
    a("s_load_dwordx4 s[56:59], s[0:1], 40")
    code_prefetch(a, "k12_fused_kernel", "K12", 0, 8, 8)
    if OPT.get('stamp'):
        a("s_memtime s[80:81]")
        a("s_memrealtime s[82:83]")
    a("v_lshrrev_b32 v1, 6, v0")
    a("v_and_b32 v2, 63, v0")
    a("v_readfirstlane_b32 s3, v1")
    a("s_waitcnt lgkmcnt(0)")
    if OPT.get('kpre'):
        a("s_cmp_lt_u32 s3, 4")
        a("s_cbranch_scc1 K12_CONS")
    producer(a, O, OPT)
    a.lab("K12_CONS")
    consumer(a, O, OPT)
    a.lab("K12_END")
    a("s_endpgm")
    return ("k12_fused_kernel", 256, 512, LDS12, 256)

def PLF(OPT):
    return {0: "", 1: " sc1", 2: " nt", 3: " sc1 nt", 4: " sc0 sc1"}[OPT.get('plf', 0)]

def table_params(a, vRho, sRb, vA, vRi, tmp, st=36):
    a(f"v_and_b32 v{vA}, 3, v{vRho}")
    a(f"v_lshlrev_b32 v{vA}, 2, v{vA}")
    a(f"v_lshrrev_b32 v{tmp}, 3, v{vRho}")
    a(f"v_lshl_add_u32 v{vA}, v{tmp}, 1, v{vA}")
    a(f"s_lshl_b32 s{st}, s{sRb}, 4")
    a(f"s_add_u32 s{st}, s{st}, 1")
    a(f"v_add_u32 v{vA}, s{st}, v{vA}")
    a(f"v_bfe_u32 v{vRi}, v{vRho}, 2, 1")

def lds_init(a, sw, vLane16, z):
    for k in range(4): a(f"v_mov_b32 v{z+k}, 0")
    a(f"s_mul_i32 s28, s{sw}, {SB2}")
    a(f"s_add_u32 s28, s28, {167*128}")
    a(f"v_add_u32 v{z+4}, s28, v{vLane16}")
    a(f"ds_write_b128 v{z+4}, v[{z}:{z+3}]")
    a("s_mov_b64 exec, 0xff")
    a(f"ds_write_b128 v{z+4}, v[{z}:{z+3}] offset:1024")
    a("s_mov_b64 exec, -1")
    for base, sh, wide in ((SYNC, 2, False), (PCNT, 3, True), (MIRROR, 3, True)):
        a(f"s_lshl_b32 s28, s{sw}, {sh}")
        a(f"s_add_u32 s28, s28, {base}")
        a(f"v_mov_b32 v{z+4}, s28")
        a(f"ds_write_b64 v{z+4}, v[{z}:{z+1}]" if wide else f"ds_write_b32 v{z+4}, v{z}")
    a(f"v_mov_b32 v{z+4}, {ISSUED}")
    a(f"ds_write_b32 v{z+4}, v{z}")
    a(f"v_mov_b32 v{z+4}, {ONES}")
    a(f"v_mov_b32 v{z+5}, 1")
    a(f"ds_write_b32 v{z+4}, v{z+5}")

def consumer(a, O, OPT):
    WSTR = O['WSTR']
    AF, BP, BQ, NW, ACC = 8, 40, 56, 72, 80
    vT, vL, vAr, vAi, vB, vPA, vWA = 0, 1, 2, 3, 4, 5, 7
    sc = " sc1" if OPT.get('dmasc1', 1) else ""
    a("s_and_b32 s6, s2, 7")
    a("s_lshl_b32 s6, s6, 2")
    a("s_lshr_b32 s7, s2, 6")
    a("s_add_u32 s6, s6, s7")
    a("s_lshr_b32 s7, s2, 3")
    a("s_and_b32 s7, s7, 7")
    a("s_lshr_b32 s20, s7, 2")
    a("s_and_b32 s21, s7, 3")
    a("s_lshl_b32 s22, s6, 1")
    a("s_add_u32 s22, s22, s20")
    a("s_lshl_b32 s23, s6, 2")
    a("s_add_u32 s23, s23, s21")
    a(f"s_mul_i32 s24, s22, {XFB}")
    a(f"s_mul_i32 s25, s23, {WSTR}")
    a(f"s_add_u32 s25, s25, {O['WT']}")
    a(f"s_mul_i32 s26, s22, {YFB}")
    a(f"s_add_u32 s26, s26, {O['YT']}")
    if O['XT']:
        a(f"s_add_u32 s24, s24, {O['XT']}")
    srd(a, 8, 58, "s24", XFB)
    srd(a, 12, 58, "s25", 524288)
    srd(a, 16, 58, "s26", YFB)
    if OPT.get('kpre'):
        a(f"s_add_u32 s4, s58, {O['SY'] + 16384}")
        a("s_addc_u32 s5, s59, 0")
    else:
        a("s_add_u32 s4, s56, 128")
        a("s_addc_u32 s5, s57, 0")
    a("s_and_b32 s5, s5, 0xffff")
    a("s_cmp_eq_u32 s3, 0")
    a("s_cselect_b32 s6, 128, 0")
    a("s_mov_b32 s7, 0x00020000")
    a(f"s_mov_b32 s46, {MIRROR}")
    a(f"s_cselect_b32 s46, s46, {DUMMY}")
    a(f"s_mov_b32 s47, {MIRROR}")
    a(f"s_cselect_b32 s47, s47, {ONES}")
    a("s_cselect_b32 s45, 4, 0")
    a("s_mov_b32 s50, s45")
    KP = OPT.get('kpre', 0)
    if not KP:
        a(f"v_lshrrev_b32 v2, 4, v254")
    a("v_and_b32 v8, 15, v2")
    a("v_lshrrev_b32 v9, 4, v2")
    a(f"v_lshlrev_b32 v{vL}, 4, v2")
    a("s_mul_i32 s30, s3, 5120")
    a("s_mov_b32 s36, s30")
    a("s_lshl_b32 s31, s3, 12")
    a(f"s_add_u32 s37, s31, {BOFF2}")
    a("s_lshl_b32 s33, s3, 8")
    a("s_add_u32 s33, s33, 20480")
    a("s_mov_b32 s38, s33")
    a("s_mov_b32 s44, 0xffff")
    a("s_cmp_eq_u32 s3, 3")
    a("s_cselect_b32 s44, 0xff, s44")
    a("s_mov_b32 s45, 0")
    def dma_groups(sbuf):
        g = []
        g.append([f"s_add_u32 m0, s{sbuf}, s36", "s_nop 0", f"buffer_load_dwordx4 v{vL}, s[8:11], s30 offen{sc} lds"])
        for k in range(1, 4):
            g.append([f"buffer_load_dwordx4 v{vL}, s[8:11], s30 offen offset:{1024*k}{sc} lds"])
        g.append(["s_add_u32 m0, m0, 4096", "s_add_u32 s34, s30, 4096", f"buffer_load_dwordx4 v{vL}, s[8:11], s34 offen{sc} lds"])
        g.append([f"s_add_u32 m0, s{sbuf}, s37", f"s_add_u32 s30, s30, {XBLK}", f"buffer_load_dwordx4 v{vL}, s[12:15], s31 offen{sc} lds"])
        for k in range(1, 4):
            g.append([f"buffer_load_dwordx4 v{vL}, s[12:15], s31 offen offset:{1024*k}{sc} lds"])
        g.append([f"s_add_u32 m0, s{sbuf}, s38", "s_mov_b64 exec, s[44:45]",
                  f"buffer_load_dwordx4 v{vL}, s[8:11], s33 offen{sc} lds", "s_mov_b64 exec, -1",
                  "s_add_u32 s31, s31, 16384", f"s_add_u32 s33, s33, {XBLK}"])
        return g
    def mirror_dma():
        return ["s_mov_b32 m0, s46", "s_mov_b64 exec, 0xff", f"buffer_load_dword v{vL}, s[4:7], 0 offen sc1 lds", "s_mov_b64 exec, -1"]
    a("v_lshrrev_b32 v10, 1, v8")
    a("v_xor_b32 v10, v10, v9")
    a("v_lshlrev_b32 v10, 4, v10")
    a(f"v_lshl_add_u32 v{vAr}, v8, 7, v10")
    a(f"v_xor_b32 v{vAi}, 64, v{vAr}")
    a("v_lshrrev_b32 v10, 2, v8")
    a("v_lshl_add_u32 v11, v9, 3, v10")
    a("v_lshlrev_b32 v11, 9, v11")
    a("v_and_b32 v12, 1, v9")
    a("v_lshl_or_b32 v10, v12, 2, v10")
    a("s_lshl_b32 s28, s3, 1")
    a("v_xor_b32 v10, s28, v10")
    a("v_lshl_add_u32 v11, v10, 5, v11")
    a("v_and_b32 v10, 3, v8")
    a("v_lshl_add_u32 v11, v10, 3, v11")
    a(f"v_add_u32 v{vB}, {BOFF2}, v11")
    a("v_and_b32 v10, 3, v8")
    a("v_lshlrev_b32 v10, 2, v10")
    a(f"v_add_u32 v{vPA}, {SYNC}, v10")
    a("s_lshl_b32 s28, s3, 2")
    a(f"s_add_u32 s28, s28, {SYNC}")
    a(f"v_mov_b32 v{vWA}, s28")
    a("s_mov_b32 s35, 0x80008000")

    slow = []
    nlab = [0]
    def flag_wait_loop(lab, saddr, back):
        r = [f"{lab}:", f"s_mov_b32 s61, {SPIN}", "s_add_u32 s63, s63, 1", f"{lab}_L:"] + mirror_dma() + ["s_waitcnt vmcnt(0)",
             f"v_mov_b32 v{vT}, s{saddr}", f"ds_read_b32 v{vT}, v{vT}", "s_waitcnt lgkmcnt(0)",
             f"v_cmp_eq_u32 vcc, 0, v{vT}", "s_sub_u32 s61, s61, 1", "s_cmp_eq_u32 s61, 0",
             f"s_cbranch_scc1 {lab}_X", f"s_cbranch_vccz {lab}_X", f"s_sleep {OPT.get('fsleep', 2)}", f"s_branch {lab}_L", f"{lab}_X:"]
        if back: r.append(f"s_branch {back}")
        return r
    def emit(ins):
        if ins.endswith(":"): a.lab(ins[:-1])
        else: a(ins)
    def poll_slow(vP, sv=40):
        n = nlab[0]; nlab[0] += 1
        slow.extend([f"K12_S{n}:", f"s_mov_b32 s61, {SPIN}", "s_add_u32 s62, s62, 1", f"K12_S{n}_L:", f"ds_read_b32 v{vP}, v{vPA}", "s_waitcnt lgkmcnt(0)",
                     f"v_cmp_gt_u32 vcc, s{sv}, v{vP}", "s_sub_u32 s61, s61, 1", "s_cmp_eq_u32 s61, 0", f"s_cbranch_scc1 K12_Q{n}",
                     f"s_cbranch_vccz K12_Q{n}"] + ([f"s_sleep {OPT['lsleep']}"] if OPT.get('lsleep') else []) + [f"s_branch K12_S{n}_L"])
        return n
    a("s_mov_b32 s62, 0"); a("s_mov_b32 s63, 0")
    if OPT.get('noncons'):
        a("s_endpgm")
    if KP:
        pre_prologue = True
    else:
      for r in range(176):
        a(f"v_mov_b32 v{ACC+r}, 0")
      for ins in flag_wait_loop("K12_W0", 47, None): emit(ins)
    if not KP:
        a("s_mov_b32 s40, 1")
        a(f"v_mov_b32 v{vT}, s40")
        a(f"ds_write_b32 v{vWA}, v{vT}")
        n0 = poll_slow(BQ)
        a(f"s_branch K12_S{n0}")
        a.lab(f"K12_Q{n0}")
    if OPT.get('stamp'):
        a("s_memtime s[84:85]")
        a("s_memrealtime s[86:87]")
    a("s_mov_b32 s39, 0")
    for st in range(3):
        for grp in dma_groups(39):
            for ins in grp: a(ins)
        a(f"s_add_u32 s39, s39, {SB2}")
    for ins in mirror_dma(): a(ins)
    if KP:
        a(f"v_lshrrev_b32 v9, 4, v{vL}"); a("v_and_b32 v8, 15, v9"); a("v_lshrrev_b32 v9, 4, v9")
        table_params(a, 8, 3, 10, 11, 12, st=28)
        a("v_and_b32 v13, 1, v9")
        a("v_lshlrev_b32 v13, 3, v13")
        a("v_mul_u32_u24 v14, 96, v11")
        a("v_mad_u32_u24 v15, v10, v13, v14")
        trig(a, 10, 15, 16, 24, 28, 32)
        a("v_cmp_lt_u32 vcc, 1, v9")
        a("s_lshl_b32 s28, s3, 10")
        a(f"s_add_u32 s28, s28, {TABW}")
        a(f"v_add_u32 v14, s28, v{vL}")
        for q in range(4):
            a(f"v_cndmask_b32 v{24+q}, v{24+q}, v{28+q}, vcc")
        a("ds_write_b128 v14, v[24:27]")
        lds_init(a, 3, vL, 12)
        a("s_waitcnt lgkmcnt(0)")
        a("s_barrier")
        for r in range(176):
            a(f"v_mov_b32 v{ACC+r}, 0")
        a("s_barrier")

    def a_reads(rb):
        s = AF + 8 * (rb % 4)
        return [f"ds_read_b128 v[{s}:{s+3}], v{vAr} offset:{rb*2048}",
                f"ds_read_b128 v[{s+4}:{s+7}], v{vAi} offset:{rb*2048}"]
    def b_reads(B):
        r = []
        for cb in range(2):
            for ri in range(2):
                d = B + 8 * cb + 4 * ri
                for t in range(2):
                    r.append(f"ds_read_b64_tr_b16 v[{d+2*t}:{d+2*t+1}], v{vB} offset:{ri*256+t*2048}")
            r.append(f"v_xor_b32 v{vB}, 32, v{vB}")
        return r
    def b_xor(B, cb):
        return [f"v_xor_b32 v{NW+4*cb+q}, s35, v{B+8*cb+4+q}" for q in range(4)]
    def mfmas(rb, B):
        s = AF + 8 * (rb % 4)
        Ar, Ai = s, s + 4
        def acc(cb, ri): return ACC + ((rb * 2 + cb) * 2 + ri) * 4
        def m(d, x, y): return f"v_mfma_f32_16x16x32_bf16 v[{d}:{d+3}], v[{x}:{x+3}], v[{y}:{y+3}], v[{d}:{d+3}]"
        Wr = lambda cb: B + 8 * cb
        Wi = lambda cb: B + 8 * cb + 4
        nWi = lambda cb: NW + 4 * cb
        return [m(acc(0,0), Ar, Wr(0)), m(acc(0,1), Ar, Wi(0)), m(acc(1,0), Ar, Wr(1)), m(acc(1,1), Ar, Wi(1)),
                m(acc(0,0), Ai, nWi(0)), m(acc(0,1), Ai, Wr(0)), m(acc(1,0), Ai, nWi(1)), m(acc(1,1), Ai, Wr(1))]
    a("s_mov_b32 s40, 2")
    a(f"v_mov_b32 v{vT}, s40")
    a("s_waitcnt vmcnt(21)")
    a(f"ds_write_b32 v{vWA}, v{vT}")
    n = poll_slow(BQ)
    a(f"s_branch K12_S{n}")
    a.lab(f"K12_Q{n}")
    if OPT.get('stamp'):
        a("s_memtime s[88:89]")
        a("s_memrealtime s[90:91]")
    for ins in b_reads(BP): a(ins)
    for rb in (0, 1, 3):
        for ins in a_reads(rb): a(ins)
    a(f"ds_read_b32 v{BQ+4}, v{vPA}")
    a("s_waitcnt lgkmcnt(7)")
    for cb in range(2):
        for ins in b_xor(BP, cb): a(ins)
    a("s_mov_b32 s41, 0")
    a(f"s_mov_b32 s42, {SB2}")
    a("s_mov_b32 s39, 0")
    a(f"s_mov_b32 s29, {3*SB2}")
    def emit_stage(half, last=False):
        nslow = len(slow)
        Bc, Bn = (BP, BQ) if half == 0 else (BQ, BP)
        side = {k: [] for k in range(88)}
        lds_issue = {}
        def put(k, ins, tag=None):
            side[k].append(ins)
            if tag: lds_issue.setdefault(k, []).append(tag)
        def put_a(k, rb, tag):
            r = a_reads(rb)
            put(k, r[0], tag); put(k + 1, r[1], tag)
        put_a(0, 2, "A2")
        for rb in range(4, 11):
            put_a(8 * (rb - 3), rb, f"A{rb}")
        P = OPT.get('parr', 58)
        K1 = OPT.get('parr1', 44)
        put(2, "s_waitcnt lgkmcnt(2)")
        put(2, f"v_cmp_gt_u32 vcc, s40, v{Bn+4}")
        n2 = poll_slow(Bn + 4, 40)
        put(3, f"s_cbranch_vccnz K12_S{n2}"); put(3, f"K12_Q{n2}:")
        put(K1 - 1, "s_add_u32 s40, s40, 1"); put(K1 - 1, "s_mov_b32 s51, s40")
        put(K1 - 1, f"v_mov_b32 v{vT}, s40") if half == 1 or True else None
        put(K1, "s_waitcnt vmcnt(19)")
        put(K1, f"ds_write_b32 v{vWA}, v{vT}", "W")
        put(P, "s_sub_u32 s43, s42, s41"); put(P, "s_add_u32 s40, s40, 1")
        put(P, f"v_add_u32 v{vAr}, s43, v{vAr}")
        put(P + 1, f"v_add_u32 v{vAi}, s43, v{vAi}"); put(P + 1, f"v_add_u32 v{vB}, s43, v{vB}")
        put(P + 1, f"v_mov_b32 v{vT}, s40")
        put(P + 2, f"ds_write_b32 v{vWA}, v{vT}", "W")
        pd = P + OPT.get('pdly', 5)
        put(pd, f"ds_read_b32 v{Bn}, v{vPA}", "P")
        if half == 0:
            put(2, "s_add_u32 s49, s39, 2"); put(2, "s_lshr_b32 s49, s49, 1")
            put(3, "s_mul_i32 s48, s49, s50"); put(3, "s_add_u32 s48, s48, s47")
            put(5, f"s_cmp_lt_u32 s49, {8 if not OPT.get('noprod') else 0}"); put(5, f"s_cselect_b32 s48, s48, {ONES}")
            if KP > 1:
                put(6, f"s_cmp_ge_u32 s49, {KP}"); put(6, f"s_cselect_b32 s48, s48, {ONES}")
            put(P - 9, f"v_mov_b32 v{vT}, s48")
            put(P - 8, f"ds_read_b32 v{vT}, v{vT}", "M")
            put(P - 3, "s_waitcnt lgkmcnt(0)")
            put(P - 3, f"v_cmp_eq_u32 vcc, 0, v{vT}")
            m = nlab[0]; nlab[0] += 1
            put(P - 1, f"s_cbranch_vccnz K12_F{m}"); put(P - 1, f"K12_G{m}:")
            slow.extend(flag_wait_loop(f"K12_F{m}", 48, f"K12_G{m}"))
        C = OPT.get('pchk', 69)
        put(C - 2, "s_waitcnt lgkmcnt(0)")
        put(C - 2, f"v_cmp_gt_u32 vcc, s51, v{Bn}")
        n = poll_slow(Bn, 51)
        put(C, f"s_cbranch_vccnz K12_S{n}"); put(C, f"K12_Q{n}:")
        br = b_reads(Bn)
        for i_, ins in enumerate(br): put(C + 1 + i_ if C + 1 + i_ < 78 else 77, ins, "B" if ins.startswith("ds_") else None)
        put_a(78, 0, "N0"); put_a(80, 1, "N1"); put_a(82, 3, "N3")
        put(83, f"ds_read_b32 v{Bc+4}, v{vPA}", "Q")
        dl = dma_groups(29)
        dpos = [4, 10, 14, 20, 26, 30, 36, 42, 46, 52]
        for i_, grp in enumerate(dl):
            for ins in grp: put(dpos[i_], ins)
        if half == 1:
            for ins in mirror_dma(): put(54, ins)
        xr0, xr1 = b_xor(Bn, 0), b_xor(Bn, 1)
        put(84, "s_waitcnt lgkmcnt(7)")
        for q in range(4): put(84 + q // 2, xr0[q]); put(86 + q // 2, xr1[q])
        for ins in ["s_mov_b32 s29, s41", "s_mov_b32 s41, s42", f"s_add_u32 s42, s42, {SB2}"]: put(83, ins)
        for ins in [f"s_cmp_eq_u32 s42, {NBUF2*SB2}", "s_cselect_b32 s42, 0, s42"]: put(85, ins)
        q = ["A0"] * 2 + ["A1"] * 2 + ["A3"] * 2 + ["Q"]
        pre = {}
        for k in range(88):
            if k % 8 == 0:
                need = f"A{k // 8}"
                if need in q:
                    idx = max(i_ for i_, x in enumerate(q) if x == need)
                    pre[k] = len(q) - 1 - idx
                    q = q[idx + 1:]
            q += lds_issue.get(k, [])
            if k == 2: q = q[-2:]
            if k == C - 2 or (half == 0 and k == P - 3): q = []
        if last:
            del slow[nslow:]
            side = {k: [x for x in side[k] if x.startswith("ds_read_b128") and k < 58] for k in range(88)}
            q = ["A0"] * 2 + ["A1"] * 2 + ["A3"] * 2 + ["Q"]
            pre = {}
            for k in range(88):
                if k % 8 == 0:
                    need = f"A{k // 8}"
                    if need in q:
                        idx = max(i_ for i_, x in enumerate(q) if x == need)
                        pre[k] = len(q) - 1 - idx
                        q = q[idx + 1:]
                q += [t for t in lds_issue.get(k, []) if t.startswith("A")]
            st_setup = [f"v_lshrrev_b32 v{vT}, 4, v{vL}", f"v_and_b32 v{vPA}, 15, v{vT}", f"v_lshrrev_b32 v{vT}, 4, v{vT}",
                        "s_lshl_b32 s28, s21, 7", "s_lshl_b32 s29, s3, 5", "s_add_u32 s28, s28, s29",
                        f"v_add_u32 v{vPA}, s28, v{vPA}", f"v_lshlrev_b32 v{vPA}, 2, v{vPA}", f"v_lshl_add_u32 v{vPA}, v{vT}, 13, v{vPA}"]
            for i_, ins in enumerate(st_setup): side[2 + i_ // 2].append(ins)
            tmps = [Bn + ((x + 8) & 15) for x in range(16)]
            n_ = 0
            for rb in range(10):
                k0 = 8 * (rb + 1) + 3
                seq = []
                for i in range(4):
                    for cb in range(2):
                        t = tmps[n_ % 16]; n_ += 1
                        yr = ACC + ((rb * 2 + cb) * 2 + 0) * 4 + i
                        yi = ACC + ((rb * 2 + cb) * 2 + 1) * 4 + i
                        so = (16 * rb + (i & 2)) * 2048
                        pre_ = [f"s_mov_b32 s38, {so}"] if (cb == 0 and i % 2 == 0) else []
                        seq.append(pre_ + [f"v_cvt_pk_bf16_f32 v{t}, v{yr}, v{yi}",
                                           f"buffer_store_dword v{t}, v{vPA}, s[16:19], s38 offen offset:{(i&1)*2048+cb*64}{NTF('ntys')}"])
                for e_, grp in enumerate(seq):
                    kk = min(k0 + e_ * 3 // 4, 87)
                    side[kk] += grp
        k = 0
        for rb in range(11):
            for ins in mfmas(rb, Bc):
                if k in pre:
                    a(f"s_waitcnt lgkmcnt({min(pre[k], 15)})")
                emit(ins)
                for s_ in side[k]: emit(s_)
                k += 1
    ovl = OPT.get('epiovl', 1)
    a.lab("K12_LOOP")
    emit_stage(0); emit_stage(1)
    a("s_add_u32 s39, s39, 1")
    a(f"s_cmp_lt_u32 s39, {15 if ovl else 16}")
    a("s_cbranch_scc1 K12_LOOP")
    if ovl:
        emit_stage(0); emit_stage(1, last=True)
    if OPT.get('stamp'):
        a("s_memtime s[92:93]")
        a("s_memrealtime s[94:95]")
    if not ovl:
        a(f"v_lshrrev_b32 v8, 4, v{vL}")
        a("v_and_b32 v9, 15, v8")
        a("v_lshrrev_b32 v8, 4, v8")
        a("s_lshl_b32 s28, s21, 7")
        a("s_lshl_b32 s29, s3, 5")
        a("s_add_u32 s28, s28, s29")
        a("v_add_u32 v9, s28, v9")
        a("v_lshlrev_b32 v9, 2, v9")
        a(f"v_lshl_add_u32 v{vPA}, v8, 13, v9")
    a("s_nop 7")
    n = 0
    for rb in range(10 if ovl else 0, 11):
        for i in range(4):
            if i % 2 == 0:
                a(f"s_mov_b32 s38, {(16*rb+i)*2048}")
            for cb in range(2):
                t = 8 + (n % 8); n += 1
                yr = ACC + ((rb * 2 + cb) * 2 + 0) * 4 + i
                yi = ACC + ((rb * 2 + cb) * 2 + 1) * 4 + i
                a(f"v_cvt_pk_bf16_f32 v{t}, v{yr}, v{yi}")
                a(f"buffer_store_dword v{t}, v{vPA}, s[16:19], s38 offen offset:{(i&1)*2048+cb*64}{NTF('ntys')}")
    if OPT.get('stamp'):
        a("s_waitcnt vmcnt(0)")
        a("s_memtime s[76:77]")
        a("s_memrealtime s[78:79]")
        a("s_waitcnt lgkmcnt(0)")
        srd(a, 64, 58, O['ST'] + (1 << 20), 1 << 20)
        order = [62, 63, 82, 83] + ([92, 93] if OPT.get('kpre') else [80, 81]) + [94, 95, 86, 87, 78, 79, 88, 89, 90, 91]
        for k, sreg in enumerate(order):
            a(f"v_mov_b32 v{16+k}, s{sreg}")
        a("s_lshl_b32 s38, s2, 3")
        a("s_add_u32 s38, s38, s3")
        a("s_lshl_b32 s38, s38, 6")
        a("v_mov_b32 v40, 0")
        a("s_mov_b64 exec, 1")
        for k in range(4):
            a(f"buffer_store_dwordx4 v[{16+4*k}:{19+4*k}], v40, s[64:67], s38 offen offset:{16*k}")
    a("s_endpgm")
    for ins in slow: emit(ins)

def producer(a, O, OPT):
    WSTR = O['WSTR']
    XR, OPS, WR, ACCW, FH, FL, FW, TMP = 0, 64, 96, 128, 160, 192, 224, 240
    vXL, vXS, vWL, vWS0, vXS0, vWS, vLA, vT = 248, 249, 250, 251, 252, 253, 254, 255
    st = " sc1" if OPT.get('stsc1', 1) else ""
    lo = OPT.get('xlo', 1)
    a("v_and_b32 v64, 15, v2")
    a("v_lshrrev_b32 v65, 4, v2")
    a(f"v_lshlrev_b32 v{vLA}, 4, v2")
    a("s_and_b32 s44, s3, 3")
    a("s_and_b32 s20, s44, 1")
    a("s_lshr_b32 s21, s44, 1")
    a("s_lshl_b32 s22, s2, 1")
    a("s_add_u32 s22, s22, s21")
    a("s_and_b32 s23, s22, 3")
    a("s_lshr_b32 s22, s22, 2")
    a("s_and_b32 s24, s2, 7")
    a("s_lshl_b32 s24, s24, 5")
    a("s_lshr_b32 s25, s2, 3")
    a("s_add_u32 s24, s24, s25")
    a(f"s_cmp_ge_u32 s24, {NT}")
    a("s_cselect_b32 s25, 1, 0")
    a(f"s_mul_i32 s26, s25, {NT}")
    a("s_sub_u32 s24, s24, s26")
    a("s_cmp_eq_u32 s21, 0")
    a("s_cselect_b32 s25, s25, 1")
    a("s_mul_i32 s26, s25, 16384000")
    srd(a, 4, 52, "s26", 16384000)
    srd(a, 8, 54, None, 31 * 524288)
    srd(a, 12, 58, O['XT'] if O['XT'] else None, XT_SIZE)
    srd(a, 16, 58, O['WT'], 128 * WSTR)
    if OPT.get('kpre'):
        srd(a, 60, 58, O['SY'], 32768)
    else:
        a("s_mov_b32 s60, s56"); a("s_and_b32 s61, s57, 0xffff"); a("s_mov_b32 s62, 256"); a("s_mov_b32 s63, 0x00020000")
    a("s_mov_b32 s28, 0x05040100")
    a("s_mov_b32 s29, 0x07060302")
    if OPT.get('stamp'):
        srd(a, 64, 58, O['ST'] + (6 << 20), 1 << 20)
        a("s_lshl_b32 s73, s2, 2")
        a("s_add_u32 s73, s73, s44")
        a("s_lshl_b32 s73, s73, 7")
    a(f"v_lshlrev_b32 v{vXL}, 14, v65")
    a(f"v_lshl_add_u32 v{vXL}, v64, 4, v{vXL}")
    a(f"v_and_b32 v{vWL}, 1, v65")
    a(f"v_lshlrev_b32 v{vWL}, 23, v{vWL}")
    a(f"v_lshl_add_u32 v{vWL}, v64, 4, v{vWL}")
    a("v_lshrrev_b32 v66, 1, v65")
    a(f"s_mov_b32 s26, {2*XFB}")
    a("v_mul_lo_u32 v66, v66, s26")
    a("v_lshrrev_b32 v67, 2, v64")
    a(f"s_mov_b32 s26, {XBLK}")
    a("v_mul_lo_u32 v67, v67, s26")
    a("v_add_u32 v66, v66, v67")
    a(f"v_mov_b32 v{vXS0}, v66")
    a("v_lshrrev_b32 v66, 1, v65")
    a(f"s_mov_b32 s26, {4*WSTR}")
    a("v_mul_lo_u32 v66, v66, s26")
    a("v_and_b32 v67, 1, v65")
    a("v_lshl_add_u32 v66, v67, 8, v66")
    a("v_and_b32 v67, 1, v64")
    a(f"v_lshl_add_u32 v{vWS0}, v67, 4, v66")
    a(f"s_mul_i32 s31, s25, {XFB}")
    a(f"s_mul_i32 s32, s23, {WSTR}")
    a("s_lshl_b32 s33, s23, 8")
    def tile_of(sp):
        a(f"s_mul_i32 s36, s{sp}, 85")
        a("s_add_u32 s36, s36, s2")
        a("s_and_b32 s36, s36, 255")
        a("s_mul_hi_u32 s37, s36, 0x55555556")
        a("s_mul_i32 s38, s37, 3")
        a("s_cmp_eq_u32 s38, s36")
        a("s_cselect_b32 s27, 1, 0")
        a("s_cmp_lt_u32 s37, 78")
        a("s_cselect_b32 s27, s27, 0")
        a(f"s_add_u32 s37, s37, {256 - NT}")
        a("s_cmp_eq_u32 s21, 0")
        a("s_cselect_b32 s30, s24, s37")
        a("s_cselect_b32 s27, 1, s27")
    def w_loads(sp):
        a(f"s_lshl_b32 s36, s{sp}, 7")
        a("s_add_u32 s36, s36, s22")
        a("s_lshr_b32 s37, s36, 9")
        a("s_lshl_b32 s37, s37, 19")
        a("s_and_b32 s36, s36, 511")
        a("s_lshl_b32 s36, s36, 10")
        a("s_add_u32 s36, s36, s37")
        a("s_add_u32 s36, s36, s33")
        if OPT.get('pldsame'): a("s_mov_b32 s36, s33")
        for e in range(8 if not OPT.get('pnold') else 0):
            a(f"buffer_load_dwordx4 v[{WR+4*e}:{WR+4*e+3}], v{vWL}, s[8:11], s36 offen{PLF(OPT)}")
            if e < 7: a("s_add_u32 s36, s36, 0x100000")
    def x_loads(sp):
        a(f"s_lshl_b32 s36, s{sp}, 8")
        a(f"s_mul_i32 s37, s30, {48*2048}")
        a("s_add_u32 s36, s36, s37")
        if OPT.get('pldsame'): a("s_mov_b32 s36, 0")
        for ks in range(2 if not OPT.get('pnold') else 0):
            for e2 in range(4):
                r = XR + 32 * ks + 8 * e2
                a(f"buffer_load_dwordx4 v[{r}:{r+3}], v{vXL}, s[4:7], s36 offen{PLF(OPT)}")
                a(f"buffer_load_dwordx4 v[{r+4}:{r+7}], v{vXL}, s[4:7], s36 offen offset:2048{PLF(OPT)}")
                if not (ks == 1 and e2 == 3):
                    a(f"s_add_u32 s36, s36, {4096 if e2 < 3 else 32*2048 - 3*4096}")
    nsig = [0]
    def signal(sp):
        n = nsig[0]; nsig[0] += 1
        a("s_mov_b32 s34, -1")
        a(f"s_cmp_ge_u32 s{sp}, 8")
        a(f"s_cbranch_scc1 K12_SG{n}")
        if OPT.get('stamp'):
            a("s_memrealtime s[70:71]")
            a("s_waitcnt lgkmcnt(0)")
            a(f"s_lshl_b32 s72, s{sp}, 3")
            a("s_add_u32 s72, s72, s73")
            a("v_mov_b32 v240, s70"); a("v_mov_b32 v241, s71"); a("v_mov_b32 v242, 0")
            a("s_mov_b64 exec, 1")
            a("buffer_store_dwordx2 v[240:241], v242, s[64:67], s72 offen")
            a("s_mov_b64 exec, -1")
        a(f"s_lshl_b32 s36, s{sp}, 2")
        a(f"s_add_u32 s37, s36, {PCNT}")
        a("s_mov_b64 exec, 1")
        a(f"v_mov_b32 v{vT}, s37")
        a(f"v_mov_b32 v{TMP}, 1")
        a(f"ds_add_rtn_u32 v{TMP}, v{vT}, v{TMP}")
        a("s_waitcnt lgkmcnt(0)")
        a(f"v_readfirstlane_b32 s37, v{TMP}")
        a("s_nop 3")
        a("s_cmp_eq_u32 s37, 3")
        a(f"s_cbranch_scc0 K12_SH{n}")
        if OPT.get('kpre'):
            a("s_lshl_b32 s36, s36, 8")
        a(f"v_mov_b32 v{vT}, 1")
        a(f"v_mov_b32 v{TMP}, s36")
        a(f"buffer_atomic_add v{vT}, v{TMP}, s[60:63], 0 offen sc0 sc1")
        a(f"s_mov_b32 s34, s{sp}")
        a.lab(f"K12_SH{n}")
        a("s_mov_b64 exec, -1")
        a.lab(f"K12_SG{n}")
    def publish():
        n = nsig[0]; nsig[0] += 1
        a("s_cmp_ge_u32 s34, 8")
        a(f"s_cbranch_scc1 K12_PB{n}")
        a(f"v_readfirstlane_b32 s37, v{vT}")
        a("s_nop 3")
        a("s_cmp_eq_u32 s37, 255")
        a(f"s_cbranch_scc0 K12_PB{n}")
        a("s_lshl_b32 s36, s34, 4")
        a(f"s_add_u32 s36, s36, {16384 if OPT.get('kpre') else 128}")
        a("s_mov_b64 exec, 1")
        a(f"v_mov_b32 v{vT}, 1")
        a(f"v_mov_b32 v{TMP}, s36")
        a(f"buffer_store_dword v{vT}, v{TMP}, s[60:63], 0 offen sc1")
        a("s_mov_b64 exec, -1")
        a.lab(f"K12_PB{n}")
    nsub = [0]
    def subgate(rb):
        if not OPT.get('subg', 1) or rb == 0: return
        G = OPT.get('gateg', 17)
        n = nsub[0]; nsub[0] += 1
        a(f"s_cmp_lt_u32 s40, {max(OPT.get('gatep', 3), OPT.get('kpre', 0) + OPT.get('subskip', 1))}")
        a(f"s_cbranch_scc1 K12_UT{n}")
        a("s_lshl_b32 s36, s40, 3")
        a(f"s_sub_i32 s36, s36, {2 * (G - rb * OPT.get('substep', 1)) + 2}")
        a("s_max_i32 s36, s36, 1")
        a(f"s_mov_b32 s37, {SPIN * 8}")
        a.lab(f"K12_UL{n}")
        a(f"v_mov_b32 v{vT}, {SYNC}")
        a(f"ds_read_b32 v{vT}, v{vT}")
        a("s_waitcnt lgkmcnt(0)")
        a(f"v_cmp_gt_u32 vcc, s36, v{vT}")
        a("s_sub_u32 s37, s37, 1")
        a("s_cmp_eq_u32 s37, 0")
        a(f"s_cbranch_scc1 K12_UT{n}")
        a(f"s_cbranch_vccz K12_UT{n}")
        a(f"s_sleep {OPT.get('gsleep', 2)}")
        a(f"s_branch K12_UL{n}")
        a.lab(f"K12_UT{n}")
    def w_compute(sp):
        a(f"s_lshl_b32 s36, s{sp}, 7")
        a("s_add_u32 s36, s36, s22")
        a("s_and_b32 s37, s36, 3")
        a("s_lshr_b32 s38, s36, 1")
        a("s_and_b32 s38, s38, 4")
        a("s_or_b32 s37, s37, s38")
        a(f"v_bfe_u32 v{vWS}, v{vLA}, 5, 3")
        a(f"v_xor_b32 v{vWS}, s37, v{vWS}")
        a(f"v_lshl_add_u32 v{vWS}, v{vWS}, 5, v{vWS0}")
        a("s_lshl_b32 s36, s36, 9")
        a("s_add_u32 s39, s36, s32")
        if OPT.get('plin'):
            a(f"v_mov_b32 v{vWS}, v{vLA}")
            a(f"s_lshl_b32 s39, s{sp}, 10"); a("s_lshl_b32 s36, s2, 2"); a("s_add_u32 s39, s39, s36"); a("s_add_u32 s39, s39, s3"); a("s_lshl_b32 s39, s39, 14"); a("s_and_b32 s39, s39, 0x3ffffff")
        for rb in range(4):
            subgate(rb)
            for i in range(8 if not OPT.get('pnocomp') else 0):
                a(f"v_mfma_f32_16x16x32_bf16 v[{ACCW+4*i}:{ACCW+4*i+3}], v[{FW+4*rb}:{FW+4*rb+3}], v[{OPS+4*i}:{OPS+4*i+3}], 0")
            a("s_nop 7")
            for r in range(4):
                t = TMP + 4 * (r & 1)
                for q in range(4 if not OPT.get('pnocomp') else 0):
                    a(f"v_cvt_pk_bf16_f32 v{t+q}, v{ACCW+4*(2*q)+r}, v{ACCW+4*(2*q+1)+r}")
                if not OPT.get('pnost'): a(f"buffer_store_dwordx4 v[{t}:{t+3}], v{vWS}, s[16:19], s39 offen{st}")
                if not (rb == 3 and r == 3):
                    a(f"s_add_u32 s39, s39, {1024 if OPT.get('plin') else 2*4*WSTR}")
    def x_compute(sp):
        ACCX = XR + 32
        a(f"s_mul_i32 s39, s{sp}, {4*XBLK}")
        a("s_add_u32 s39, s39, s31")
        a("s_lshl_b32 s36, s30, 7")
        a("s_add_u32 s39, s39, s36")
        a(f"v_bfe_u32 v{vXS}, v{vLA}, 4, 2")
        a(f"v_bfe_u32 v{TMP}, v{vLA}, 8, 1")
        a(f"v_lshl_add_u32 v{vXS}, v{TMP}, 2, v{vXS}")
        a("s_lshr_b32 s36, s30, 1")
        a("s_and_b32 s36, s36, 7")
        a(f"v_xor_b32 v{vXS}, s36, v{vXS}")
        a(f"v_lshl_add_u32 v{vXS}, v{vXS}, 4, v{vXS0}")
        if OPT.get('plin'):
            a(f"s_lshl_b32 s39, s{sp}, 9"); a("s_lshl_b32 s36, s2, 1"); a("s_add_u32 s39, s39, s36"); a("s_add_u32 s39, s39, s21"); a("s_lshl_b32 s39, s39, 14"); a("s_and_b32 s39, s39, 0x1ffffff")
        for rb in range(4):
            subgate(rb)
            terms = [(FH + (rb * 2) * 4, OPS), (FH + (rb * 2 + 1) * 4, XR)]
            if lo:
                terms = [terms[0], (FL + (rb * 2) * 4, OPS), terms[1], (FL + (rb * 2 + 1) * 4, XR)]
            for ti, (F, ops) in enumerate(terms if not OPT.get('pnocomp') else []):
                for i in range(8):
                    c = "0" if ti == 0 else f"v[{ACCX+4*i}:{ACCX+4*i+3}]"
                    a(f"v_mfma_f32_16x16x32_bf16 v[{ACCX+4*i}:{ACCX+4*i+3}], v[{F}:{F+3}], v[{ops+4*i}:{ops+4*i+3}], {c}")
            a("s_nop 7")
            for r in range(4):
                t = TMP + 4 * (r & 1)
                for q in range(4 if not OPT.get('pnocomp') else 0):
                    a(f"v_cvt_pk_bf16_f32 v{t+q}, v{ACCX+4*(2*q)+r}, v{ACCX+4*(2*q+1)+r}")
                if not OPT.get('pnost'): a(f"buffer_store_dwordx4 v[{t}:{t+3}], v{vLA if OPT.get('plin') else vXS}, s[12:15], s39 offen{st}")
                if not (rb == 3 and r == 3):
                    a(f"s_add_u32 s39, s39, {1024 if OPT.get('plin') else 2*2*XFB}")
    nst = [0]
    def ustamp(slot):
        if not OPT.get('stamp'): return
        n = nst[0]; nst[0] += 1
        a("s_and_b32 s72, s40, 6")
        a(f"s_cmp_eq_u32 s72, {OPT.get('ustph', 4)}")
        a(f"s_cbranch_scc0 K12_US{n}")
        a(f"s_memrealtime s[{74+0}:{75}]")
        a("s_waitcnt lgkmcnt(0)")
        a(f"s_add_u32 s72, s73, {(8+slot)*8}")
        a("v_mov_b32 v240, s74"); a("v_mov_b32 v241, s75"); a("v_mov_b32 v242, 0")
        a("s_mov_b64 exec, 1")
        a("buffer_store_dwordx2 v[240:241], v242, s[64:67], s72 offen")
        a("s_mov_b64 exec, -1")
        a.lab(f"K12_US{n}")
    def eager_publish():
        n = nsig[0]; nsig[0] += 1
        a("s_cmp_ge_u32 s34, 8")
        a(f"s_cbranch_scc1 K12_EP{n}")
        a("s_waitcnt vmcnt(0)")
        publish()
        a("s_mov_b32 s34, -1")
        a.lab(f"K12_EP{n}")
    def early_signal():
        if not OPT.get('early', 1): return
        n = nsig[0]; nsig[0] += 1
        a(f"s_cmp_eq_u32 s41, {OPT.get('kpre', 0) or 1}")
        a(f"s_cbranch_scc0 K12_ES{n}")
        a("s_waitcnt vmcnt(0)")
        signal(41)
        a("s_waitcnt vmcnt(0)")
        publish()
        a("s_mov_b32 s34, -1")
        a("s_mov_b32 s41, -1")
        a.lab(f"K12_ES{n}")
    ngate = [0]
    def gate():
        G = OPT.get('gateg', 17); GP = OPT.get('gatep', 3)
        n = ngate[0]; ngate[0] += 1
        a("s_lshl_b32 s36, s40, 3")
        a(f"s_sub_i32 s36, s36, {2 * G + 2}")
        a("s_max_i32 s36, s36, 1")
        a(f"s_mov_b32 s38, {SYNC}")
        a(f"s_cmp_eq_u32 s40, {1 if not OPT.get('kpre') else 99}")
        a(f"s_cselect_b32 s36, {4 if OPT.get('ord1', 1) else 0}, s36")
        a(f"s_cselect_b32 s38, {ISSUED}, s38")
        a(f"s_cbranch_scc1 K12_GS{n}")
        a(f"s_cmp_lt_u32 s40, {GP}")
        a(f"s_cbranch_scc1 K12_GT{n}")
        a.lab(f"K12_GS{n}")
        a(f"s_mov_b32 s37, {SPIN * 8}")
        a.lab(f"K12_GL{n}")
        a(f"v_mov_b32 v{TMP}, s38")
        a(f"ds_read_b32 v{TMP}, v{TMP}")
        a("s_waitcnt lgkmcnt(0)")
        a(f"v_cmp_gt_u32 vcc, s36, v{TMP}")
        a("s_sub_u32 s37, s37, 1")
        a("s_cmp_eq_u32 s37, 0")
        a(f"s_cbranch_scc1 K12_GT{n}")
        a(f"s_cbranch_vccz K12_GT{n}")
        a(f"s_sleep {OPT.get('gsleep', 2)}")
        a(f"s_branch K12_GL{n}")
        a.lab(f"K12_GT{n}")
    xs = 1 if OPT.get('stamp') else 0
    def advance():
        a("s_mov_b32 s41, s40"); a("s_add_u32 s40, s40, 1")
        early_signal()
    def gate_at(thr_expr_G, tagn):
        n = ngate[0]; ngate[0] += 1
        a("s_lshl_b32 s36, s40, 3")
        a(f"s_sub_i32 s36, s36, {thr_expr_G}")
        a("s_max_i32 s36, s36, 1")
        a(f"s_mov_b32 s37, {SPIN * 8}")
        a.lab(f"K12_GL{n}")
        a(f"v_mov_b32 v{TMP}, {SYNC}")
        a(f"ds_read_b32 v{TMP}, v{TMP}")
        a("s_waitcnt lgkmcnt(0)")
        a(f"v_cmp_gt_u32 vcc, s36, v{TMP}")
        a("s_sub_u32 s37, s37, 1")
        a("s_cmp_eq_u32 s37, 0")
        a(f"s_cbranch_scc1 K12_GT{n}")
        a(f"s_cbranch_vccz K12_GT{n}")
        a(f"s_sleep {OPT.get('gsleep', 2)}")
        a(f"s_branch K12_GL{n}")
        a.lab(f"K12_GT{n}")
    LG = OPT.get('lgate', 0)
    def w_phase(tag):
        ustamp(0)
        if LG:
            a("s_waitcnt vmcnt(0)")
            signal(41); eager_publish()
        interleave_perm(a, WR, OPS, 28, 29, OPT.get('pnocomp'))
        if LG: gate_at(2 * OPT.get('gateg', 13) + 2, tag)
        a("s_add_u32 s42, s40, 1")
        tile_of(42)
        a("s_cmp_eq_u32 s27, 0")
        a(f"s_cbranch_scc1 {tag}_N")
        x_loads(42)
        ustamp(1)
        if not LG: a(f"s_waitcnt vmcnt({16 + xs})")
        a(f"s_branch {tag}_M")
        a.lab(f"{tag}_N")
        if not LG: a("s_waitcnt vmcnt(0)")
        a.lab(f"{tag}_M")
        if not LG:
            signal(41)
            eager_publish()
            gate()
        ustamp(2)
        w_compute(40)
        ustamp(3)
        advance()
        a("s_waitcnt vmcnt(16)")
        publish()
    def x_phase(tag):
        ustamp(4)
        if LG:
            a("s_waitcnt vmcnt(0)")
            signal(41); eager_publish()
        a("s_cmp_eq_u32 s27, 0")
        a(f"s_cbranch_scc1 {tag}_N")
        interleave_perm(a, XR, OPS, 28, 29, OPT.get('pnocomp'))
        interleave_perm(a, XR + 32, XR, 28, 29, OPT.get('pnocomp'))
        a.lab(f"{tag}_N")
        if LG: gate_at(2 * OPT.get('gateg', 13) + 2, tag)
        a("s_add_u32 s42, s40, 1")
        w_loads(42)
        ustamp(5)
        if not LG:
            a(f"s_waitcnt vmcnt({8 + xs})")
            signal(41)
            eager_publish()
        a("s_cmp_eq_u32 s27, 0")
        a(f"s_cbranch_scc1 {tag}_E")
        if not LG: gate()
        ustamp(6)
        x_compute(40)
        ustamp(7)
        advance()
        a("s_waitcnt vmcnt(16)")
        a(f"s_branch {tag}_F")
        a.lab(f"{tag}_E")
        advance()
        a("s_waitcnt vmcnt(0)")
        a.lab(f"{tag}_F")
        publish()

    KP = OPT.get('kpre', 0)
    if KP:
        a(f"s_mov_b32 s40, {KP}")
    else:
        a("s_lshr_b32 s40, s3, 2")
    a("s_xor_b32 s43, s40, s20")
    a("s_and_b32 s43, s43, 1")
    tile_of(40)
    a("s_cmp_eq_u32 s43, 0")
    a("s_cbranch_scc0 K12_PL1")
    w_loads(40)
    a("s_branch K12_PL2")
    a.lab("K12_PL1")
    a("s_cmp_eq_u32 s27, 0")
    a("s_cbranch_scc1 K12_PL2")
    x_loads(40)
    a.lab("K12_PL2")
    if KP and OPT.get('touch', 1):
        a(f"v_lshrrev_b32 v128, 4, v{vLA}")
        a("v_lshlrev_b32 v129, 11, v128")
        a("v_lshrrev_b32 v130, 1, v128")
        a("v_lshlrev_b32 v130, 20, v130")
        a("v_and_b32 v131, 1, v128")
        a("v_lshl_add_u32 v130, v131, 7, v130")
        a("s_mov_b32 s45, s27"); a("s_mov_b32 s46, s30")
        a("s_add_u32 s47, s40, 1")
        a.lab("K12_TCH")
        a("s_xor_b32 s48, s47, s20")
        a("s_and_b32 s48, s48, 1")
        a("s_cmp_eq_u32 s48, 0")
        a("s_cbranch_scc1 K12_TCHW")
        tile_of(47)
        a("s_cmp_eq_u32 s27, 0")
        a("s_cbranch_scc1 K12_TCHN")
        a("s_lshl_b32 s36, s47, 8")
        a(f"s_mul_i32 s37, s30, {48*2048}")
        a("s_add_u32 s36, s36, s37")
        a("buffer_load_dword v244, v129, s[4:7], s36 offen")
        a("buffer_load_dword v245, v129, s[4:7], s36 offen offset:128")
        a("s_branch K12_TCHN")
        a.lab("K12_TCHW")
        a("s_lshl_b32 s36, s47, 7")
        a("s_add_u32 s36, s36, s22")
        a("s_lshr_b32 s37, s36, 9")
        a("s_lshl_b32 s37, s37, 19")
        a("s_and_b32 s36, s36, 511")
        a("s_lshl_b32 s36, s36, 10")
        a("s_add_u32 s36, s36, s37")
        a("s_add_u32 s36, s36, s33")
        a("s_mov_b64 exec, 0xffffffff")
        a("buffer_load_dword v246, v130, s[8:11], s36 offen")
        a("s_mov_b64 exec, -1")
        a.lab("K12_TCHN")
        a("s_add_u32 s47, s47, 1")
        a("s_cmp_lt_u32 s47, 8")
        a("s_cbranch_scc1 K12_TCH")
        a("s_mov_b32 s27, s45"); a("s_mov_b32 s30, s46")
    if OPT.get('stamp'):
        a("s_memrealtime s[84:85]")
    if KP:
        table_params(a, 64, 44, 128, 129, 130)
        a("v_lshlrev_b32 v131, 3, v65")
        for ks in range(2):
            if ks: a("v_add_u32 v131, 32, v131")
            a("v_lshlrev_b32 v132, 5, v129")
            a("v_mad_u32_u24 v133, v128, v131, v132")
            trig(a, 128, 133, 136, 144, 148, 152)
            a("s_lshl_b32 s37, s44, 12")
            a(f"s_add_u32 s37, s37, {TABX + ks*2048}")
            a(f"v_add_u32 v132, s37, v{vLA}")
            a("ds_write_b128 v132, v[144:147]")
            a("ds_write_b128 v132, v[148:151] offset:1024")
    else:
        table_params(a, 64, 44, 128, 129, 130)
        a("v_lshlrev_b32 v131, 3, v65")
        a("s_lshr_b32 s36, s3, 2")
        a("s_lshl_b32 s37, s36, 5")
        a("v_add_u32 v131, s37, v131")
        a("v_lshlrev_b32 v132, 5, v129")
        a("v_mad_u32_u24 v133, v128, v131, v132")
        trig(a, 128, 133, 136, 144, 148, 152)
        a("s_lshl_b32 s37, s44, 12")
        a("s_lshl_b32 s36, s36, 11")
        a("s_add_u32 s37, s37, s36")
        a(f"v_add_u32 v132, s37, v{vLA}")
        a(f"ds_write_b128 v132, v[144:147] offset:{TABX}")
        a(f"ds_write_b128 v132, v[148:151] offset:{TABX + 1024}")
        a("s_cmp_ge_u32 s3, 4")
        a("s_cbranch_scc1 K12_TB")
        a("v_and_b32 v131, 1, v65")
        a("v_lshlrev_b32 v131, 3, v131")
        a("v_mul_u32_u24 v132, 96, v129")
        a("v_mad_u32_u24 v133, v128, v131, v132")
        trig(a, 128, 133, 136, 144, 148, 152)
        a("v_cmp_lt_u32 vcc, 1, v65")
        a("s_lshl_b32 s37, s44, 10")
        a(f"v_add_u32 v132, s37, v{vLA}")
        for q in range(4):
            a(f"v_cndmask_b32 v{144+q}, v{144+q}, v{148+q}, vcc")
        a(f"ds_write_b128 v132, v[144:147] offset:{TABW}")
        a("v_mov_b32 v136, 0"); a("v_mov_b32 v137, 0"); a("v_mov_b32 v138, 0"); a("v_mov_b32 v139, 0")
        a(f"s_mul_i32 s36, s44, {SB2}")
        a(f"s_add_u32 s36, s36, {167*128}")
        a(f"v_add_u32 v132, s36, v{vLA}")
        a("ds_write_b128 v132, v[136:139]")
        a("s_mov_b64 exec, 0xff")
        a("ds_write_b128 v132, v[136:139] offset:1024")
        a("s_mov_b64 exec, -1")
        a("s_lshl_b32 s36, s44, 2")
        a(f"s_add_u32 s36, s36, {SYNC}")
        a("v_mov_b32 v132, s36")
        a("ds_write_b32 v132, v136")
        a("s_lshl_b32 s36, s44, 3")
        a(f"s_add_u32 s36, s36, {PCNT}")
        a("v_mov_b32 v132, s36")
        a("ds_write_b64 v132, v[136:137]")
        a("s_lshl_b32 s36, s44, 3")
        a(f"s_add_u32 s36, s36, {MIRROR}")
        a("v_mov_b32 v132, s36")
        a("ds_write_b64 v132, v[136:137]")
        a(f"v_mov_b32 v132, {ISSUED}")
        a("ds_write_b32 v132, v136")
        a(f"v_mov_b32 v132, {ONES}")
        a("v_mov_b32 v133, 1")
        a("ds_write_b32 v132, v133")
    a.lab("K12_TB")
    a("s_waitcnt lgkmcnt(0)")
    a("s_barrier")
    if OPT.get('stamp'):
        a("s_memrealtime s[86:87]")
    a(f"v_add_u32 v{vT}, {TABX}, v{vLA}")
    for fr in range(8):
        a(f"ds_read_b128 v[{FH+4*fr}:{FH+4*fr+3}], v{vT} offset:{(fr>>1)*4096 + (fr&1)*2048}")
        a(f"ds_read_b128 v[{FL+4*fr}:{FL+4*fr+3}], v{vT} offset:{(fr>>1)*4096 + (fr&1)*2048 + 1024}")
        if fr == 3: a("s_waitcnt lgkmcnt(0)")
    for rb in range(4):
        a(f"ds_read_b128 v[{FW+4*rb}:{FW+4*rb+3}], v{vT} offset:{16384 + rb*1024}")
    if KP:
        a("s_waitcnt lgkmcnt(0)")
        a("s_barrier")
    a("s_waitcnt vmcnt(0) lgkmcnt(0)")
    if OPT.get('stamp'):
        a("s_memrealtime s[88:89]")
    a("s_mov_b32 s41, -1")
    a("s_mov_b32 s34, -1")
    if KP:
        a("s_branch K12_PROD")
    a("s_cmp_lt_u32 s3, 4")
    a("s_cbranch_scc0 K12_PROD")
    a("s_cmp_eq_u32 s43, 0")
    a("s_cbranch_scc0 K12_H1")
    interleave_perm(a, WR, OPS, 28, 29, OPT.get('pnocomp'))
    w_compute(40)
    a("s_branch K12_H2")
    a.lab("K12_H1")
    a("s_cmp_eq_u32 s27, 0")
    a("s_cbranch_scc1 K12_H2")
    interleave_perm(a, XR, OPS, 28, 29, OPT.get('pnocomp'))
    interleave_perm(a, XR + 32, XR, 28, 29, OPT.get('pnocomp'))
    x_compute(40)
    a.lab("K12_H2")
    a("s_mov_b64 exec, 1")
    a(f"v_mov_b32 v{vT}, {ISSUED}")
    a(f"v_mov_b32 v{OPS}, 1")
    a(f"ds_add_u32 v{vT}, v{OPS}")
    a("s_mov_b64 exec, -1")
    if OPT.get('stamp'):
        a("s_memrealtime s[90:91]")
    a("s_waitcnt vmcnt(0)")
    if OPT.get('stamp'):
        a("s_memrealtime s[92:93]")
        a("s_waitcnt lgkmcnt(0)")
        srd(a, 68, 58, O['ST'] + (7 << 20), 1 << 20)
        for k in range(10):
            a(f"v_mov_b32 v{128+k}, s{84+k}")
        a("v_mov_b32 v138, s82"); a("v_mov_b32 v139, s83"); a("v_mov_b32 v140, 0")
        a("s_lshl_b32 s72, s2, 2"); a("s_add_u32 s72, s72, s3"); a("s_lshl_b32 s72, s72, 6")
        a("s_mov_b64 exec, 1")
        for k in range(3):
            a(f"buffer_store_dwordx4 v[{128+4*k}:{131+4*k}], v140, s[68:71], s72 offen offset:{16*k}")
        a("s_mov_b64 exec, -1")
    a("s_mov_b32 s41, 0")
    signal(41)
    a("s_waitcnt vmcnt(0)")
    publish()
    if OPT.get('stamp'):
        a("s_memrealtime s[80:81]")
    a("s_branch K12_CONS")
    a.lab("K12_PROD")
    if OPT.get('noprod') == 1:
        a("s_endpgm")
    if OPT.get('noprod') == 2:
        a("s_mov_b32 s37, 4000")
        a.lab("K12_IDLE")
        a("s_sleep 64")
        a(f"v_mov_b32 v{TMP}, {SYNC}")
        a(f"ds_read_b32 v{TMP}, v{TMP}")
        a("s_waitcnt lgkmcnt(0)")
        a(f"v_cmp_gt_u32 vcc, 34, v{TMP}")
        a("s_sub_u32 s37, s37, 1")
        a("s_cmp_eq_u32 s37, 0")
        a("s_cbranch_scc1 K12_IDLE_X")
        a("s_cbranch_vccnz K12_IDLE")
        a.lab("K12_IDLE_X")
        a("s_endpgm")
    if OPT.get('pprio', 1):
        a(f"s_setprio {OPT.get('pprio', 1)}")
    a("s_cmp_eq_u32 s43, 0")
    a("s_cbranch_scc1 K12_WENTRY")
    a.lab("K12_XW")
    x_phase("K12_XP")
    a("s_cmp_ge_u32 s40, 8")
    a("s_cbranch_scc1 K12_PFIN")
    a.lab("K12_WENTRY")
    w_phase("K12_WP")
    a("s_cmp_lt_u32 s40, 8")
    a("s_cbranch_scc1 K12_XW")
    a.lab("K12_PFIN")
    a("s_waitcnt vmcnt(0)")
    signal(41)
    a("s_waitcnt vmcnt(0)")
    publish()
    a("s_endpgm")
```

```python
import sys

NAME = "standalone__self_sup_conv_stem_wavlm__speech"

T2 = 8000
L = 7985
V = 48
NT = 167
XBLK = NT * 128
XFB = 32 * XBLK
XT_SIZE = 64 * XFB
YFB = NT * 2048
YT_SIZE = 64 * YFB

OPT = dict(fused=1, kpre=3, subg=0, gateg=13, k34=1, wpad=0, cpw=1, xfirst=1, ntx=0, ntw=0, ntxs=0, ntws=0, ntk2=0, ntys=0, ntyl=0, nto=0)
def NTF(k): return ' nt' if OPT.get(k) else ''

class A:
    def __init__(self):
        self.l = []
    def __call__(self, s):
        self.l.append("    " + s)
    def lab(self, s):
        self.l.append(s + ":")
    def raw(self, s):
        self.l.append(s)
    def c(self, s):
        self.l.append("    ; " + s)
    def text(self):
        return "\n".join(self.l) + "\n"

def vr(a, n=1):
    return f"v{a}" if n == 1 else f"v[{a}:{a+n-1}]"
def sr(a, n=1):
    return f"s{a}" if n == 1 else f"s[{a}:{a+n-1}]"

def srd(a, s, base, off, size):
    if off is None:
        a(f"s_mov_b32 s{s}, s{base}")
        a(f"s_mov_b32 s{s+1}, s{base+1}")
    else:
        a(f"s_add_u32 s{s}, s{base}, {off}")
        a(f"s_addc_u32 s{s+1}, s{base+1}, 0")
    a(f"s_and_b32 s{s+1}, s{s+1}, 0xffff")
    a(f"s_mov_b32 s{s+2}, {size}")
    a(f"s_mov_b32 s{s+3}, 0x00020000")

def trig(a, vA, vM0, T, hi, lo, tmp, scale=None):
    if OPT.get('k1nocomp'): return
    for e in range(8):
        a(f"v_mad_u32_u24 v{T+e}, v{vA}, {e}, v{vM0}")
    trig_core(a, T, hi, lo, tmp, scale)

def trig_core(a, T, hi, lo, tmp, scale=None):
    for e in range(8):
        a(f"v_and_b32 v{T+e}, 127, v{T+e}")
    for e in range(8):
        a(f"v_cvt_f32_u32 v{T+e}, v{T+e}")
    for e in range(8):
        a(f"v_mul_f32 v{T+e}, 0x3c000000, v{T+e}")
    for e in range(8):
        a(f"v_cos_f32 v{T+e}, v{T+e}")
    a("s_nop 0")
    if scale is not None:
        for e in range(8):
            a(f"v_mul_f32 v{T+e}, {scale}, v{T+e}")
    for q in range(4):
        a(f"v_cvt_pk_bf16_f32 v{hi+q}, v{T+2*q}, v{T+2*q+1}")
    for q in range(4):
        a(f"v_lshlrev_b32 v{tmp}, 16, v{hi+q}")
        a(f"v_and_b32 v{tmp+1}, 0xffff0000, v{hi+q}")
        a(f"v_sub_f32 v{T+2*q}, v{T+2*q}, v{tmp}")
        a(f"v_sub_f32 v{T+2*q+1}, v{T+2*q+1}, v{tmp+1}")
    for q in range(4):
        a(f"v_cvt_pk_bf16_f32 v{lo+q}, v{T+2*q}, v{T+2*q+1}")

def interleave_perm(a, raw, ops, sLo, sHi, skip=False):
    if OPT.get('k1nocomp') or skip: return
    for q in range(4):
        for m in range(4):
            r0 = raw + 4 * (2 * m) + q
            r1 = raw + 4 * (2 * m + 1) + q
            a(f"v_perm_b32 v{ops+4*(2*q)+m}, v{r1}, v{r0}, s{sLo}")
            a(f"v_perm_b32 v{ops+4*(2*q+1)+m}, v{r1}, v{r0}, s{sHi}")

def stamp_begin(a):
    if OPT.get('stamp'):
        a("s_memtime s[64:65]")
        a("s_memrealtime s[66:67]")
        a("s_load_dwordx2 s[76:77], s[0:1], 48")
        a("s_lshl_b32 s78, s2, 4")

def stamp_mid(a):
    if OPT.get('stamp'):
        a("s_memrealtime s[80:81]")

def stamp_end(a, O, kidx):
    if OPT.get('stamp'):
        a("s_waitcnt vmcnt(0) lgkmcnt(0)")
        a("s_memtime s[68:69]")
        a("s_memrealtime s[70:71]")
        a("s_waitcnt lgkmcnt(0)")
        srd(a, 72, 76, O['ST'] + (2 << 20) + kidx * (1 << 20), 1 << 20)
        a("s_mov_b32 s64, s80")
        a("s_mov_b32 s65, s81")
        for k in range(8):
            a(f"v_mov_b32 v{16+k}, s{64+k}")
        a("s_add_u32 s78, s78, s3")
        a("s_lshl_b32 s78, s78, 5")
        a("v_mov_b32 v30, 0")
        a("s_mov_b64 exec, 1")
        for k in range(2):
            a(f"buffer_store_dwordx4 v[{16+4*k}:{19+4*k}], v30, s[72:75], s78 offen offset:{16*k}")

def code_prefetch(a, entry, tag, vtid=0, tmp=8, nwaves=8, dest=63):
    if not OPT.get('cpf', 1): return
    a(f"s_getpc_b64 s[90:91]")
    a.lab(f"CPF_{tag}")
    a(f"s_sub_u32 s90, s90, CPF_{tag}-{entry}")
    a("s_subb_u32 s91, s91, 0")
    per = nwaves * 64 * 128
    a(f"v_lshlrev_b32 v{tmp}, 7, v{vtid}")
    a(f"v_mov_b32 v{tmp+3}, s91")
    for r in range(OPT.get('cpfn', 1)):
        a(f"v_min_u32 v{tmp+1}, TEXT_END-{entry}-4, v{tmp}")
        a(f"v_add_co_u32 v{tmp+2}, vcc, s90, v{tmp+1}")
        a(f"v_addc_co_u32 v{tmp+3}, vcc, 0, v{tmp+3}, vcc")
        a(f"global_load_dword v{dest}, v[{tmp+2}:{tmp+3}], off")
        if r + 1 < OPT.get('cpfn', 1):
            a(f"v_mov_b32 v{tmp+3}, s91")
            a(f"v_add_u32 v{tmp}, {per}, v{tmp}")

def layout():
    O = {}
    O['WSTR'] = 524288 + OPT['wpad']
    O['XT'] = 0
    O['WT'] = 48 << 20
    O['YT'] = O['WT'] + ((128 * O['WSTR'] + (1 << 20) - 1) >> 20 << 20) + (1 << 20)
    O['ST'] = O['YT'] + (24 << 20)
    O['PART'] = O['ST'] + (9 << 20) + (1 << 19)
    O['SY'] = O['ST'] + (9 << 20)
    assert O['ST'] + (10 << 20) <= (256 << 20)
    return O

def k1(a, O):
    CPW = OPT['cpw']
    KP = OPT.get('kpre', 0) or 8
    NW = 128 * KP // CPW
    NX = 2 * KP * 42
    WSTR = O['WSTR']
    a.raw(".p2align 8")
    a.raw(".type k1_xform_kernel,@function")
    a.lab("k1_xform_kernel")
    a(f"s_cmp_ge_u32 s2, {NW+NX}")
    a("s_cbranch_scc1 K1_END")
    stamp_begin(a)
    a("s_load_dwordx4 s[4:7], s[0:1], 0")
    a("s_load_dwordx2 s[8:9], s[0:1], 48")
    a("v_lshrrev_b32 v120, 6, v0")
    a("v_and_b32 v121, 63, v0")
    a("v_readfirstlane_b32 s3, v120")
    a("v_and_b32 v122, 15, v121")
    a("v_lshrrev_b32 v123, 4, v121")
    a("s_mov_b32 s28, 0x05040100")
    a("s_mov_b32 s29, 0x07060302")
    a("v_and_b32 v124, 3, v122")
    a("v_lshlrev_b32 v124, 2, v124")
    a("v_lshrrev_b32 v125, 3, v122")
    a("v_lshl_add_u32 v124, v125, 1, v124")
    a("s_lshl_b32 s10, s3, 4")
    a("s_add_u32 s10, s10, 1")
    a("v_add_u32 v124, s10, v124")
    a("v_bfe_u32 v125, v122, 2, 1")
    a("v_lshlrev_b32 v121, 4, v121")
    a("s_waitcnt lgkmcnt(0)")
    if OPT.get('fused') and OPT.get('kpre'):
        a("s_or_b32 s10, s2, s3")
        a("s_cmp_eq_u32 s10, 0")
        a("s_cbranch_scc0 K1_NOCLR")
        srd(a, 12, 8, O['SY'], 32768)
        a("v_lshrrev_b32 v118, 4, v121")
        a("v_lshlrev_b32 v119, 10, v118")
        a("v_mov_b32 v117, 0")
        a("s_mov_b64 exec, 0xffff")
        a("buffer_store_dword v117, v119, s[12:15], 0 offen")
        a("v_lshlrev_b32 v119, 4, v118")
        a("v_add_u32 v119, 16384, v119")
        a("buffer_store_dword v117, v119, s[12:15], 0 offen")
        a("s_mov_b64 exec, -1")
        a.lab("K1_NOCLR")
    if OPT.get('k34'):
        a("s_cmp_lt_u32 s2, 32")
        a("s_cbranch_scc0 K1_NOFILL")
        srd(a, 12, 8, O['PART'], 256 * 512)
        a("s_lshl_b32 s10, s2, 2")
        a("s_add_u32 s10, s10, s3")
        a("s_lshl_b32 s10, s10, 10")
        for k in range(4): a(f"v_mov_b32 v{112+k}, -1")
        a("buffer_store_dwordx4 v[112:115], v121, s[12:15], s10 offen")
        a.lab("K1_NOFILL")
    if OPT.get('xfirst'):
        a(f"s_add_u32 s10, s2, {NW}")
        a(f"s_sub_u32 s11, s2, {NX}")
        a(f"s_cmp_lt_u32 s2, {NX}")
        a("s_cselect_b32 s2, s10, s11")
    a(f"s_cmp_lt_u32 s2, {NW}")
    if OPT.get('skipw'):
        a("s_cbranch_scc1 K1_END")
    else:
        a("s_cbranch_scc1 K1_W")
    if OPT.get('skipx'):
        a("s_endpgm")

    a.c("x-type workgroup: 4 consecutive tiles, one 128-channel group")
    a(f"s_sub_u32 s11, s2, {NW}")
    if KP & (KP - 1) == 0:
        a(f"s_and_b32 s12, s11, {KP - 1}")
        a(f"s_lshr_b32 s11, s11, {KP.bit_length() - 1}")
    else:
        a(f"s_mul_hi_u32 s13, s11, {(2**32 + KP - 1) // KP}")
        a(f"s_mul_i32 s12, s13, {KP}")
        a("s_sub_u32 s12, s11, s12")
        a("s_mov_b32 s11, s13")
    a("s_cmp_ge_u32 s11, 42")
    a("s_cselect_b32 s13, 1, 0")
    a("s_mul_i32 s14, s13, 42")
    a("s_sub_u32 s11, s11, s14")
    a("s_lshl_b32 s11, s11, 2")
    a("s_add_u32 s11, s11, s3")
    a("s_mul_i32 s14, s13, 16384000")
    srd(a, 16, 4, "s14", 16384000)
    srd(a, 20, 8, O['XT'] if O['XT'] else None, XT_SIZE)
    a("v_lshlrev_b32 v126, 14, v123")
    a("v_lshl_add_u32 v126, v122, 4, v126")
    a(f"s_mul_i32 s15, s11, {48*2048}")
    a("s_lshl_b32 s24, s12, 8")
    a("s_add_u32 s15, s15, s24")
    for ks in range(2):
        for e2 in range(4):
            e = 2 * e2
            r = 32 * ks + 4 * e
            if not OPT.get('k1nold'):
                a(f"buffer_load_dwordx4 v[{r}:{r+3}], v126, s[16:19], s15 offen{NTF('ntx')}")
                a(f"buffer_load_dwordx4 v[{r+4}:{r+7}], v126, s[16:19], s15 offen offset:2048{NTF('ntx')}")
            if not (ks == 1 and e2 == 3):
                a(f"s_add_u32 s15, s15, {4096 if e2 < 3 else 32*2048 - 3*4096}")
    a("v_lshlrev_b32 v127, 3, v123")
    for ks in range(2):
        if ks == 1:
            a("v_add_u32 v127, 32, v127")
        a("v_lshlrev_b32 v112, 5, v125")
        a("v_mad_u32_u24 v113, v124, v127, v112")
        trig(a, 124, 113, 64, 72, 76, 80)
        a(f"s_lshl_b32 s24, s3, 12")
        a(f"v_add_u32 v114, s24, v121")
        a(f"ds_write_b128 v114, v[72:75] offset:{ks*2048}")
        a(f"ds_write_b128 v114, v[76:79] offset:{ks*2048+1024}")
    a("v_lshrrev_b32 v112, 1, v123")
    a(f"s_mov_b32 s24, {2*XFB}")
    a("v_mul_lo_u32 v112, v112, s24")
    a("v_lshrrev_b32 v113, 2, v122")
    a(f"s_mov_b32 s24, {XBLK}")
    a("v_mul_lo_u32 v113, v113, s24")
    a("v_add_u32 v112, v112, v113")
    a("v_and_b32 v113, 3, v122")
    a("v_and_b32 v114, 1, v123")
    a("v_lshl_add_u32 v113, v114, 2, v113")
    a("s_lshr_b32 s24, s11, 1")
    a("s_and_b32 s24, s24, 7")
    a("v_xor_b32 v113, s24, v113")
    a("v_lshl_add_u32 v120, v113, 4, v112")
    a(f"s_mul_i32 s25, s13, {XFB}")
    a(f"s_mul_i32 s24, s12, {4*XBLK}")
    a("s_add_u32 s25, s25, s24")
    a("s_lshl_b32 s24, s11, 7")
    a("s_add_u32 s25, s25, s24")
    if OPT.get('k1lin'):
        a("v_mov_b32 v120, v121")
        a(f"s_sub_u32 s25, s2, {NW}")
        a("s_lshl_b32 s25, s25, 2")
        a("s_add_u32 s25, s25, s3")
        a("s_lshl_b32 s25, s25, 14")
    a("s_waitcnt lgkmcnt(0)")
    a("s_barrier")
    a(f"s_cmp_ge_u32 s11, {NT}")
    a("s_cbranch_scc1 K1_END")
    a("s_waitcnt vmcnt(8)")
    interleave_perm(a, 0, 64, 28, 29)
    a("s_waitcnt vmcnt(0)")
    stamp_mid(a)
    interleave_perm(a, 32, 0, 28, 29)
    for rb in range(4):
        for fr in range(4):
            a(f"ds_read_b128 v[{96+4*fr}:{99+4*fr}], v121 offset:{rb*4096+fr*1024}")
        for term in range(4):
            a(f"s_waitcnt lgkmcnt({3-term})")
            ops = 64 if term < 2 else 0
            for i in range(8 if not OPT.get('k1nocomp') else 0):
                c = "0" if term == 0 else f"v[{32+4*i}:{35+4*i}]"
                a(f"v_mfma_f32_16x16x32_bf16 v[{32+4*i}:{35+4*i}], v[{96+4*term}:{99+4*term}], v[{ops+4*i}:{ops+4*i+3}], {c}")
        a("s_nop 7")
        for r in range(4):
            t = 112 + 4 * (r & 1)
            for q in range(4 if not OPT.get('k1nocomp') else 1):
                a(f"v_cvt_pk_bf16_f32 v{t+q}, v{32+4*(2*q)+r}, v{32+4*(2*q+1)+r}")
            if not OPT.get('k1nost'):
                a(f"buffer_store_dwordx4 v[{t}:{t+3}], v120, s[20:23], s25 offen{NTF('ntxs')}")
            if not (rb == 3 and r == 3):
                a(f"s_add_u32 s25, s25, {1024 if OPT.get('k1lin') else 2*2*XFB}")
    stamp_end(a, O, 0)
    a("s_endpgm")

    a.lab("K1_W")
    a.c("w-type workgroup: CPW consecutive input channels c', wave = column quarter nq")
    srd(a, 16, 6, None, 31 * 524288)
    srd(a, 20, 8, O['WT'], 128 * WSTR)
    a(f"s_mul_i32 s11, s2, {CPW}")
    a("s_lshr_b32 s12, s11, 9")
    a("s_and_b32 s13, s11, 511")
    a("s_lshl_b32 s14, s12, 19")
    a("s_lshl_b32 s15, s13, 10")
    a("s_add_u32 s14, s14, s15")
    a("s_lshl_b32 s15, s3, 8")
    a("s_add_u32 s14, s14, s15")
    a("v_and_b32 v126, 1, v123")
    a("v_lshlrev_b32 v126, 23, v126")
    a("v_lshl_add_u32 v126, v122, 4, v126")
    def wloads():
        a("s_mov_b32 s15, s14")
        for e in range(8):
            if not OPT.get('k1nold'):
                a(f"buffer_load_dwordx4 v[{4*e}:{4*e+3}], v126, s[16:19], s15 offen{NTF('ntw')}")
            if e < 7:
                a("s_add_u32 s15, s15, 0x100000")
    wloads()
    a("v_and_b32 v127, 1, v123")
    a("v_lshlrev_b32 v127, 3, v127")
    a("v_mul_u32_u24 v112, 96, v125")
    a("v_mad_u32_u24 v113, v124, v127, v112")
    trig(a, 124, 113, 64, 72, 76, 80)
    a("v_cmp_lt_u32 vcc, 1, v123")
    a("s_lshl_b32 s24, s3, 10")
    a("v_add_u32 v114, s24, v121")
    for q in range(4):
        a(f"v_cndmask_b32 v{72+q}, v{72+q}, v{76+q}, vcc")
    a("ds_write_b128 v114, v[72:75]")
    a("v_lshrrev_b32 v112, 1, v123")
    a(f"s_mov_b32 s24, {4*WSTR}")
    a("v_mul_lo_u32 v112, v112, s24")
    a("v_and_b32 v113, 1, v123")
    a("v_lshl_add_u32 v112, v113, 8, v112")
    a("v_and_b32 v113, 1, v122")
    a("v_lshl_add_u32 v124, v113, 4, v112")
    a("v_lshrrev_b32 v125, 1, v122")
    a(f"s_mul_i32 s26, s3, {WSTR}")
    a("s_lshl_b32 s24, s11, 9")
    a("s_add_u32 s26, s26, s24")
    a("s_waitcnt lgkmcnt(0)")
    a("s_barrier")
    for rb in range(4):
        a(f"ds_read_b128 v[{96+4*rb}:{99+4*rb}], v121 offset:{rb*1024}")
    a("s_mov_b32 s27, 0")
    a("s_waitcnt vmcnt(0) lgkmcnt(0)")
    stamp_mid(a)
    a.lab("K1_W_LOOP")
    a("s_add_u32 s24, s11, s27")
    a("s_and_b32 s30, s24, 3")
    a("s_lshr_b32 s24, s24, 1")
    a("s_and_b32 s24, s24, 4")
    a("s_or_b32 s30, s30, s24")
    a("v_xor_b32 v112, s30, v125")
    a("v_lshl_add_u32 v120, v112, 5, v124")
    a("s_lshl_b32 s25, s27, 9")
    a("s_add_u32 s25, s25, s26")
    if OPT.get('k1lin'):
        a("v_mov_b32 v120, v121")
        a(f"s_add_u32 s25, s11, s27")
        a("s_lshl_b32 s25, s25, 2")
        a("s_add_u32 s25, s25, s3")
        a("s_lshl_b32 s25, s25, 14")
    interleave_perm(a, 0, 32, 28, 29)
    a("s_add_u32 s27, s27, 1")
    a("s_add_u32 s14, s14, 1024")
    a(f"s_cmp_ge_u32 s27, {CPW}")
    a("s_cbranch_scc1 K1_W_NOLOAD")
    wloads()
    a.lab("K1_W_NOLOAD")
    for rb in range(4):
        for i in range(8 if not OPT.get('k1nocomp') else 0):
            a(f"v_mfma_f32_16x16x32_bf16 v[{64+4*i}:{67+4*i}], v[{96+4*rb}:{99+4*rb}], v[{32+4*i}:{35+4*i}], 0")
        a("s_nop 7")
        for r in range(4):
            t = 112 + 4 * (r & 1)
            for q in range(4 if not OPT.get('k1nocomp') else 1):
                a(f"v_cvt_pk_bf16_f32 v{t+q}, v{64+4*(2*q)+r}, v{64+4*(2*q+1)+r}")
            if not OPT.get('k1nost'):
                a(f"buffer_store_dwordx4 v[{t}:{t+3}], v120, s[20:23], s25 offen{NTF('ntws')}")
            if not (rb == 3 and r == 3):
                a(f"s_add_u32 s25, s25, {1024 if OPT.get('k1lin') else 2*4*WSTR}")
    a("s_waitcnt vmcnt(16)")
    a(f"s_cmp_lt_u32 s27, {CPW}")
    a("s_cbranch_scc1 K1_W_LOOP")
    stamp_end(a, O, 0)
    a.lab("K1_END")
    a("s_endpgm")
    return NW + NX

def descriptor(a, name, vgpr, sgpr=96):
    a.raw(".p2align 6")
    a.raw(f".amdhsa_kernel {name}")
    a.raw(f"  .amdhsa_next_free_vgpr {vgpr}")
    a.raw(f"  .amdhsa_next_free_sgpr {sgpr}")
    a.raw(f"  .amdhsa_accum_offset {min(256, (vgpr+3)//4*4)}")
    a.raw("  .amdhsa_group_segment_fixed_size 0")
    a.raw("  .amdhsa_kernarg_size 56")
    a.raw("  .amdhsa_user_sgpr_count 2")
    a.raw("  .amdhsa_user_sgpr_kernarg_segment_ptr 1")
    a.raw("  .amdhsa_system_sgpr_workgroup_id_x 1")
    a.raw(".end_amdhsa_kernel")

HEADER = """; Kernarg layout for this problem (56 bytes, ptrs only, base s[0:1]):
"""

def main():
    out = NAME + ".s"
    for arg in sys.argv[1:]:
        if "=" in arg:
            k, v = arg.split("=")
            OPT[k] = int(v)
        else:
            out = arg
    O = layout()
    import kernels2
    a = A()
    body = A()
    launches = []
    if OPT.get('fused'):
        import kernels4
        import gen as _g
        _g.OPT.update(OPT)
        if OPT.get('kpre'):
            g1 = k1(body, O)
            launches.append(("k1_xform_kernel", g1, 256, OPT.get('k1lds', 16384), 128))
        launches.append(kernels4.k12(body, O, OPT))
        launches += kernels2.emit(body, O, OPT)
    else:
        g1 = k1(body, O)
        launches.append(("k1_xform_kernel", g1, 256, OPT.get('k1lds', 16384), 128))
        launches += kernels2.emit(body, O, OPT)
    only = OPT.get('only', 0)
    a.raw(HEADER.rstrip("\n"))
    for (n, g, b, lds, v) in launches:
        a.raw(f"; @launch kernel={n} grid=({g},1,1) block=({b},1,1) lds={lds}")
    a.raw('.amdgcn_target "amdgcn-amd-amdhsa--gfx950"')
    a.raw(".text")
    for (n, g, b, lds, v) in launches:
        a.raw(f".globl {n}")
    body.lab("TEXT_END")
    txt = a.text() + body.text()
    d = A()
    d.raw('.section .rodata,"a"')
    for (n, g, b, lds, v) in launches:
        descriptor(d, n, v)
    txt += d.text()
    open(out, "w").write(txt)
    print("wrote", out, len(txt), "bytes;", {k: hex(v) for k, v in O.items()})

if __name__ == "__main__":
    main()
```

```python
from gen import *
import gen
from kernels3 import BOFF2, SB2, NBUF2, SYNC

PCNT = SYNC + 32
ISSUED = SYNC + 16
MIRROR = SYNC + 64
ONES = MIRROR + 32
DUMMY = MIRROR + 64
LDS12 = DUMMY + 64
TABX = 0
TABW = 16384
SPIN = 4096

def k12(a, O, OPT):
    global TABX, TABW
    WSTR = O['WSTR']
    if OPT.get('kpre'):
        TABX = 3 * SB2
        TABW = TABX + 16384
    a.raw(".p2align 8")
    a.raw(".type k12_fused_kernel,@function")
    a.lab("k12_fused_kernel")
    a("s_cmp_ge_u32 s2, 256")
    a("s_cbranch_scc1 K12_END")
    a("s_load_dwordx4 s[52:55], s[0:1], 0")
    a("s_load_dwordx4 s[56:59], s[0:1], 40")
    code_prefetch(a, "k12_fused_kernel", "K12", 0, 8, 8)
    if OPT.get('stamp'):
        a("s_memtime s[80:81]")
        a("s_memrealtime s[82:83]")
    a("v_lshrrev_b32 v1, 6, v0")
    a("v_and_b32 v2, 63, v0")
    a("v_readfirstlane_b32 s3, v1")
    a("s_waitcnt lgkmcnt(0)")
    if OPT.get('kpre'):
        a("s_cmp_lt_u32 s3, 4")
        a("s_cbranch_scc1 K12_CONS")
    producer(a, O, OPT)
    a.lab("K12_CONS")
    consumer(a, O, OPT)
    a.lab("K12_END")
    a("s_endpgm")
    return ("k12_fused_kernel", 256, 512, LDS12, 256)

def PLF(OPT):
    return {0: "", 1: " sc1", 2: " nt", 3: " sc1 nt", 4: " sc0 sc1"}[OPT.get('plf', 0)]

def table_params(a, vRho, sRb, vA, vRi, tmp, st=36):
    a(f"v_and_b32 v{vA}, 3, v{vRho}")
    a(f"v_lshlrev_b32 v{vA}, 2, v{vA}")
    a(f"v_lshrrev_b32 v{tmp}, 3, v{vRho}")
    a(f"v_lshl_add_u32 v{vA}, v{tmp}, 1, v{vA}")
    a(f"s_lshl_b32 s{st}, s{sRb}, 4")
    a(f"s_add_u32 s{st}, s{st}, 1")
    a(f"v_add_u32 v{vA}, s{st}, v{vA}")
    a(f"v_bfe_u32 v{vRi}, v{vRho}, 2, 1")

def lds_init(a, sw, vLane16, z):
    for k in range(4): a(f"v_mov_b32 v{z+k}, 0")
    a(f"s_mul_i32 s28, s{sw}, {SB2}")
    if gen.OPT.get('b21'):
        a(f"s_add_u32 s28, s28, {174*128}")
        a(f"v_add_u32 v{z+4}, s28, v{vLane16}")
        a("s_mov_b64 exec, 0xffff")
        a(f"ds_write_b128 v{z+4}, v[{z}:{z+3}]")
        a("s_mov_b64 exec, -1")
    else:
        a(f"s_add_u32 s28, s28, {167*128}")
        a(f"v_add_u32 v{z+4}, s28, v{vLane16}")
        a(f"ds_write_b128 v{z+4}, v[{z}:{z+3}]")
        a("s_mov_b64 exec, 0xff")
        a(f"ds_write_b128 v{z+4}, v[{z}:{z+3}] offset:1024")
        a("s_mov_b64 exec, -1")
    for base, sh, wide in ((SYNC, 2, False), (PCNT, 3, True), (MIRROR, 3, True)):
        a(f"s_lshl_b32 s28, s{sw}, {sh}")
        a(f"s_add_u32 s28, s28, {base}")
        a(f"v_mov_b32 v{z+4}, s28")
        a(f"ds_write_b64 v{z+4}, v[{z}:{z+1}]" if wide else f"ds_write_b32 v{z+4}, v{z}")
    a(f"v_mov_b32 v{z+4}, {ISSUED}")
    a(f"ds_write_b32 v{z+4}, v{z}")
    a(f"v_mov_b32 v{z+4}, {ONES}")
    a(f"v_mov_b32 v{z+5}, 1")
    a(f"ds_write_b32 v{z+4}, v{z+5}")

def consumer(a, O, OPT):
    WSTR = O['WSTR']
    AF, BP, BQ, NW, ACC = 8, 40, 56, 72, 80
    vT, vL, vAr, vAi, vB, vPA, vWA = 0, 1, 2, 3, 4, 5, 7
    sc = " sc1" if OPT.get('dmasc1', 1) else ""
    a("s_and_b32 s6, s2, 7")
    a("s_lshl_b32 s6, s6, 2")
    a("s_lshr_b32 s7, s2, 6")
    a("s_add_u32 s6, s6, s7")
    a("s_mov_b32 s51, s6")
    a("s_mov_b32 s27, s6")
    a("s_lshr_b32 s7, s2, 3")
    a("s_and_b32 s7, s7, 7")
    a("s_lshr_b32 s20, s7, 2")
    a("s_and_b32 s21, s7, 3")
    a("s_lshl_b32 s22, s6, 1")
    a("s_add_u32 s22, s22, s20")
    a("s_lshl_b32 s23, s6, 2")
    a("s_add_u32 s23, s23, s21")
    a(f"s_mul_i32 s24, s22, {XFB}")
    a(f"s_mul_i32 s25, s23, {WSTR}")
    a(f"s_add_u32 s25, s25, {O['WT']}")
    a(f"s_mul_i32 s26, s22, {YFB}")
    a(f"s_add_u32 s26, s26, {O['YT']}")
    if O['XT']:
        a(f"s_add_u32 s24, s24, {O['XT']}")
    srd(a, 8, 58, "s24", XFB)
    srd(a, 12, 58, "s25", 524288)
    srd(a, 16, 58, "s26", YFB)
    if OPT.get('kpre'):
        a(f"s_add_u32 s4, s58, {O['SY'] + 16384}")
        a("s_addc_u32 s5, s59, 0")
    else:
        a("s_add_u32 s4, s56, 128")
        a("s_addc_u32 s5, s57, 0")
    a("s_and_b32 s5, s5, 0xffff")
    a("s_cmp_eq_u32 s3, 0")
    a("s_cselect_b32 s6, 128, 0")
    a("s_mov_b32 s7, 0x00020000")
    a(f"s_mov_b32 s46, {MIRROR}")
    a(f"s_cselect_b32 s46, s46, {DUMMY}")
    a(f"s_mov_b32 s47, {MIRROR}")
    a(f"s_cselect_b32 s47, s47, {ONES}")
    a("s_cselect_b32 s45, 4, 0")
    a("s_mov_b32 s50, s45")
    KP = OPT.get('kpre', 0)
    if not KP:
        a(f"v_lshrrev_b32 v2, 4, v254")
    a("v_and_b32 v8, 15, v2")
    a("v_lshrrev_b32 v9, 4, v2")
    a(f"v_lshlrev_b32 v{vL}, 4, v2")
    a("s_mul_i32 s30, s3, 5120")
    a("s_mov_b32 s36, s30")
    a("s_lshl_b32 s31, s3, 12")
    a(f"s_add_u32 s37, s31, {BOFF2}")
    B21 = OPT.get('b21', 0)
    if B21:
        a("s_lshr_b32 s28, s3, 1")
        a("s_and_b32 s29, s3, 1")
        a("s_lshl_b32 s33, s29, 9")
        a("s_add_u32 s33, s33, 20480")
        a("s_mul_i32 s38, s28, 896")
        a("s_add_u32 s38, s38, s33")
        a("s_lshl_b32 s34, s6x, 1".replace("s6x", "s51"))
        a("s_add_u32 s34, s34, s28")
        a(f"s_mul_i32 s34, s34, {XFB}")
        if O['XT']: a(f"s_add_u32 s34, s34, {O['XT']}")
        srd(a, 64, 58, "s34", XFB)
        a("s_mov_b32 s44, 0xffffff")
        a("s_cmp_eq_u32 s29, 0")
        a("s_cselect_b32 s44, -1, s44")
        a("s_mov_b32 s45, 0")
    else:
      a("s_lshl_b32 s33, s3, 8")
      a("s_add_u32 s33, s33, 20480")
      a("s_mov_b32 s38, s33")
      a("s_mov_b32 s44, 0xffff")
    if not B21:
      a("s_cmp_eq_u32 s3, 3")
      a("s_cselect_b32 s44, 0xff, s44")
      a("s_mov_b32 s45, 0")
    def dma_groups(sbuf):
        g = []
        g.append([f"s_add_u32 m0, s{sbuf}, s36", "s_nop 0", f"buffer_load_dwordx4 v{vL}, s[8:11], s30 offen{sc} lds"])
        for k in range(1, 4):
            g.append([f"buffer_load_dwordx4 v{vL}, s[8:11], s30 offen offset:{1024*k}{sc} lds"])
        g.append(["s_add_u32 m0, m0, 4096", "s_add_u32 s34, s30, 4096", f"buffer_load_dwordx4 v{vL}, s[8:11], s34 offen{sc} lds"])
        g.append([f"s_add_u32 m0, s{sbuf}, s37", f"s_add_u32 s30, s30, {XBLK}", f"buffer_load_dwordx4 v{vL}, s[12:15], s31 offen{sc} lds"])
        for k in range(1, 4):
            g.append([f"buffer_load_dwordx4 v{vL}, s[12:15], s31 offen offset:{1024*k}{sc} lds"])
        g.append([f"s_add_u32 m0, s{sbuf}, s38", "s_mov_b64 exec, s[44:45]",
                  f"buffer_load_dwordx4 v{vL}, {'s[64:67]' if B21 else 's[8:11]'}, s33 offen{sc} lds", "s_mov_b64 exec, -1",
                  "s_add_u32 s31, s31, 16384", f"s_add_u32 s33, s33, {XBLK}"])
        return g
    def mirror_dma():
        return ["s_mov_b32 m0, s46", "s_mov_b64 exec, 0xff", f"buffer_load_dword v{vL}, s[4:7], 0 offen sc1 lds", "s_mov_b64 exec, -1"]
    a("v_lshrrev_b32 v10, 1, v8")
    a("v_xor_b32 v10, v10, v9")
    a("v_lshlrev_b32 v10, 4, v10")
    a(f"v_lshl_add_u32 v{vAr}, v8, 7, v10")
    a(f"v_xor_b32 v{vAi}, 64, v{vAr}")
    a("v_lshrrev_b32 v10, 2, v8")
    a("v_lshl_add_u32 v11, v9, 3, v10")
    a("v_lshlrev_b32 v11, 9, v11")
    a("v_and_b32 v12, 1, v9")
    a("v_lshl_or_b32 v10, v12, 2, v10")
    a("s_lshl_b32 s28, s3, 1")
    a("v_xor_b32 v10, s28, v10")
    a("v_lshl_add_u32 v11, v10, 5, v11")
    a("v_and_b32 v10, 3, v8")
    a("v_lshl_add_u32 v11, v10, 3, v11")
    a(f"v_add_u32 v{vB}, {BOFF2}, v11")
    if B21:
        a("s_lshl_b32 s28, s20, 5")
        a(f"v_xor_b32 v{vB}, s28, v{vB}")
    a("v_and_b32 v10, 3, v8")
    a("v_lshlrev_b32 v10, 2, v10")
    a(f"v_add_u32 v{vPA}, {SYNC}, v10")
    a("s_lshl_b32 s28, s3, 2")
    a(f"s_add_u32 s28, s28, {SYNC}")
    a(f"v_mov_b32 v{vWA}, s28")
    a("s_mov_b32 s35, 0x80008000")

    slow = []
    nlab = [0]
    def flag_wait_loop(lab, saddr, back):
        r = [f"{lab}:", f"s_mov_b32 s61, {SPIN}", "s_add_u32 s63, s63, 1", f"{lab}_L:"] + mirror_dma() + ["s_waitcnt vmcnt(0)",
             f"v_mov_b32 v{vT}, s{saddr}", f"ds_read_b32 v{vT}, v{vT}", "s_waitcnt lgkmcnt(0)",
             f"v_cmp_eq_u32 vcc, 0, v{vT}", "s_sub_u32 s61, s61, 1", "s_cmp_eq_u32 s61, 0",
             f"s_cbranch_scc1 {lab}_X", f"s_cbranch_vccz {lab}_X", f"s_sleep {OPT.get('fsleep', 2)}", f"s_branch {lab}_L", f"{lab}_X:"]
        if back: r.append(f"s_branch {back}")
        return r
    def emit(ins):
        if ins.endswith(":"): a.lab(ins[:-1])
        else: a(ins)
    def poll_slow(vP, sv=40):
        n = nlab[0]; nlab[0] += 1
        slow.extend([f"K12_S{n}:", f"s_mov_b32 s61, {SPIN}", "s_add_u32 s62, s62, 1", f"K12_S{n}_L:", f"ds_read_b32 v{vP}, v{vPA}", "s_waitcnt lgkmcnt(0)",
                     f"v_cmp_gt_u32 vcc, s{sv}, v{vP}", "s_sub_u32 s61, s61, 1", "s_cmp_eq_u32 s61, 0", f"s_cbranch_scc1 K12_Q{n}",
                     f"s_cbranch_vccz K12_Q{n}"] + ([f"s_sleep {OPT['lsleep']}"] if OPT.get('lsleep') else []) + [f"s_branch K12_S{n}_L"])
        return n
    a("s_mov_b32 s62, 0"); a("s_mov_b32 s63, 0")
    if OPT.get('noncons'):
        a("s_endpgm")
    if KP:
        pre_prologue = True
    else:
      for r in range(176):
        a(f"v_mov_b32 v{ACC+r}, 0")
      for ins in flag_wait_loop("K12_W0", 47, None): emit(ins)
    if not KP:
        a("s_mov_b32 s40, 1")
        a(f"v_mov_b32 v{vT}, s40")
        a(f"ds_write_b32 v{vWA}, v{vT}")
        n0 = poll_slow(BQ)
        a(f"s_branch K12_S{n0}")
        a.lab(f"K12_Q{n0}")
    if OPT.get('stamp'):
        a("s_memtime s[84:85]")
        a("s_memrealtime s[86:87]")
    a("s_mov_b32 s39, 0")
    for st in range(3):
        for grp in dma_groups(39):
            for ins in grp: a(ins)
        a(f"s_add_u32 s39, s39, {SB2}")
    for ins in mirror_dma(): a(ins)
    if KP:
        a(f"v_lshrrev_b32 v9, 4, v{vL}"); a("v_and_b32 v8, 15, v9"); a("v_lshrrev_b32 v9, 4, v9")
        table_params(a, 8, 3, 10, 11, 12, st=28)
        a("v_and_b32 v13, 1, v9")
        a("v_lshlrev_b32 v13, 3, v13")
        a("v_mul_u32_u24 v14, 96, v11")
        a("v_mad_u32_u24 v15, v10, v13, v14")
        trig(a, 10, 15, 16, 24, 28, 32)
        a("v_cmp_lt_u32 vcc, 1, v9")
        a("s_lshl_b32 s28, s3, 10")
        a(f"s_add_u32 s28, s28, {TABW}")
        a(f"v_add_u32 v14, s28, v{vL}")
        for q in range(4):
            a(f"v_cndmask_b32 v{24+q}, v{24+q}, v{28+q}, vcc")
        a("ds_write_b128 v14, v[24:27]")
        lds_init(a, 3, vL, 12)
        a("s_waitcnt lgkmcnt(0)")
        a("s_barrier")
        for r in range(176):
            a(f"v_mov_b32 v{ACC+r}, 0")
        a("s_barrier")

    def a_reads(rb):
        s = AF + 8 * (rb % 4)
        return [f"ds_read_b128 v[{s}:{s+3}], v{vAr} offset:{rb*2048}",
                f"ds_read_b128 v[{s+4}:{s+7}], v{vAi} offset:{rb*2048}"]
    def b_reads(B):
        r = []
        for cb in range(2):
            for ri in range(2):
                d = B + 8 * cb + 4 * ri
                for t in range(2):
                    r.append(f"ds_read_b64_tr_b16 v[{d+2*t}:{d+2*t+1}], v{vB} offset:{ri*256+t*2048}")
            r.append(f"v_xor_b32 v{vB}, 32, v{vB}")
        return r
    def b_xor(B, cb):
        return [f"v_xor_b32 v{NW+4*cb+q}, s35, v{B+8*cb+4+q}" for q in range(4)]
    def mfmas(rb, B):
        s = AF + 8 * (rb % 4)
        Ar, Ai = s, s + 4
        def acc(cb, ri): return ACC + ((rb * 2 + cb) * 2 + ri) * 4
        def m(d, x, y): return f"v_mfma_f32_16x16x32_bf16 v[{d}:{d+3}], v[{x}:{x+3}], v[{y}:{y+3}], v[{d}:{d+3}]"
        Wr = lambda cb: B + 8 * cb
        Wi = lambda cb: B + 8 * cb + 4
        nWi = lambda cb: NW + 4 * cb
        if B21 and rb == 10:
            return [m(acc(0,0), Ar, Wr(0)), m(acc(0,1), Ar, Wi(0)), m(acc(0,0), Ai, nWi(0)), m(acc(0,1), Ai, Wr(0))]
        return [m(acc(0,0), Ar, Wr(0)), m(acc(0,1), Ar, Wi(0)), m(acc(1,0), Ar, Wr(1)), m(acc(1,1), Ar, Wi(1)),
                m(acc(0,0), Ai, nWi(0)), m(acc(0,1), Ai, Wr(0)), m(acc(1,0), Ai, nWi(1)), m(acc(1,1), Ai, Wr(1))]
    a("s_mov_b32 s40, 2")
    a(f"v_mov_b32 v{vT}, s40")
    a("s_waitcnt vmcnt(21)")
    a(f"ds_write_b32 v{vWA}, v{vT}")
    n = poll_slow(BQ)
    a(f"s_branch K12_S{n}")
    a.lab(f"K12_Q{n}")
    if OPT.get('stamp'):
        a("s_memtime s[88:89]")
        a("s_memrealtime s[90:91]")
    for ins in b_reads(BP): a(ins)
    for rb in (0, 1, 3):
        for ins in a_reads(rb): a(ins)
    QD = 12 if B21 else 4
    a(f"ds_read_b32 v{BQ+QD}, v{vPA}")
    a("s_waitcnt lgkmcnt(7)")
    for cb in range(2):
        for ins in b_xor(BP, cb): a(ins)
    a("s_mov_b32 s41, 0")
    a(f"s_mov_b32 s42, {SB2}")
    a("s_mov_b32 s39, 0")
    a(f"s_mov_b32 s29, {3*SB2}")
    def emit_stage(half, last=False):
        nslow = len(slow)
        Bc, Bn = (BP, BQ) if half == 0 else (BQ, BP)
        side = {k: [] for k in range(88)}
        lds_issue = {}
        def put(k, ins, tag=None):
            side[k].append(ins)
            if tag: lds_issue.setdefault(k, []).append(tag)
        def put_a(k, rb, tag):
            r = a_reads(rb)
            put(k, r[0], tag); put(k + 1, r[1], tag)
        put_a(0, 2, "A2")
        for rb in range(4, 11):
            put_a(8 * (rb - 3), rb, f"A{rb}")
        P = OPT.get('parr', 58)
        K1 = OPT.get('parr1', 44)
        put(2, "s_waitcnt lgkmcnt(2)")
        put(2, f"v_cmp_gt_u32 vcc, s40, v{Bn+QD}")
        n2 = poll_slow(Bn + QD, 40)
        put(3, f"s_cbranch_vccnz K12_S{n2}"); put(3, f"K12_Q{n2}:")
        put(K1 - 1, "s_add_u32 s40, s40, 1"); put(K1 - 1, "s_mov_b32 s51, s40")
        put(K1 - 1, f"v_mov_b32 v{vT}, s40") if half == 1 or True else None
        put(K1, "s_waitcnt vmcnt(19)")
        put(K1, f"ds_write_b32 v{vWA}, v{vT}", "W")
        put(P, "s_sub_u32 s43, s42, s41"); put(P, "s_add_u32 s40, s40, 1")
        put(P, f"v_add_u32 v{vAr}, s43, v{vAr}")
        put(P + 1, f"v_add_u32 v{vAi}, s43, v{vAi}"); put(P + 1, f"v_add_u32 v{vB}, s43, v{vB}")
        put(P + 1, f"v_mov_b32 v{vT}, s40")
        put(P + 2, f"ds_write_b32 v{vWA}, v{vT}", "W")
        pd = P + OPT.get('pdly', 5)
        put(pd, f"ds_read_b32 v{Bn}, v{vPA}", "P")
        if half == 0:
            put(2, "s_add_u32 s49, s39, 2"); put(2, "s_lshr_b32 s49, s49, 1")
            put(3, "s_mul_i32 s48, s49, s50"); put(3, "s_add_u32 s48, s48, s47")
            put(5, f"s_cmp_lt_u32 s49, {8 if not OPT.get('noprod') else 0}"); put(5, f"s_cselect_b32 s48, s48, {ONES}")
            if KP > 1:
                put(6, f"s_cmp_ge_u32 s49, {KP}"); put(6, f"s_cselect_b32 s48, s48, {ONES}")
            put(P - 9, f"v_mov_b32 v{vT}, s48")
            put(P - 8, f"ds_read_b32 v{vT}, v{vT}", "M")
            put(P - 3, "s_waitcnt lgkmcnt(0)")
            put(P - 3, f"v_cmp_eq_u32 vcc, 0, v{vT}")
            m = nlab[0]; nlab[0] += 1
            put(P - 1, f"s_cbranch_vccnz K12_F{m}"); put(P - 1, f"K12_G{m}:")
            slow.extend(flag_wait_loop(f"K12_F{m}", 48, f"K12_G{m}"))
        C = OPT.get('pchk', 69)
        put(C - 2, "s_waitcnt lgkmcnt(0)")
        put(C - 2, f"v_cmp_gt_u32 vcc, s51, v{Bn}")
        n = poll_slow(Bn, 51)
        put(C, f"s_cbranch_vccnz K12_S{n}"); put(C, f"K12_Q{n}:")
        br = b_reads(Bn)
        for i_, ins in enumerate(br): put(C + 1 + i_ if C + 1 + i_ < 78 else 77, ins, "B" if ins.startswith("ds_") else None)
        if B21:
            put_a(72, 0, "N0"); put_a(74, 3, "N3"); put_a(80, 1, "N1")
            put(76, f"ds_read_b32 v{Bc+QD}, v{vPA}", "Q")
        else:
            put_a(78, 0, "N0"); put_a(80, 1, "N1"); put_a(82, 3, "N3")
            put(83, f"ds_read_b32 v{Bc+4}, v{vPA}", "Q")
        dl = dma_groups(29)
        dpos = [4, 10, 14, 20, 26, 30, 36, 42, 46, 52]
        for i_, grp in enumerate(dl):
            for ins in grp: put(dpos[i_], ins)
        if half == 1:
            for ins in mirror_dma(): put(54, ins)
        if B21:
            xr0, xr1 = b_xor(Bc, 0), b_xor(Bc, 1)
            for q in range(4): put(q // 2, xr0[q]); put(2 + q // 2, xr1[q])
            for ins in ["s_mov_b32 s29, s41", "s_mov_b32 s41, s42", f"s_add_u32 s42, s42, {SB2}"]: put(82, ins)
            for ins in [f"s_cmp_eq_u32 s42, {NBUF2*SB2}", "s_cselect_b32 s42, 0, s42"]: put(83, ins)
            q = ["A0"] + ["A1"] * 2
        else:
            xr0, xr1 = b_xor(Bn, 0), b_xor(Bn, 1)
            put(84, "s_waitcnt lgkmcnt(7)")
            for q in range(4): put(84 + q // 2, xr0[q]); put(86 + q // 2, xr1[q])
            for ins in ["s_mov_b32 s29, s41", "s_mov_b32 s41, s42", f"s_add_u32 s42, s42, {SB2}"]: put(83, ins)
            for ins in [f"s_cmp_eq_u32 s42, {NBUF2*SB2}", "s_cselect_b32 s42, 0, s42"]: put(85, ins)
            q = ["A0"] * 2 + ["A1"] * 2 + ["A3"] * 2 + ["Q"]
        pre = {}
        for k in range(88):
            if k % 8 == 0:
                need = f"A{k // 8}"
                if need in q:
                    idx = max(i_ for i_, x in enumerate(q) if x == need)
                    pre[k] = len(q) - 1 - idx
                    q = q[idx + 1:]
            q += lds_issue.get(k, [])
            if k == 2: q = q[-2:]
            if k == C - 2 or (half == 0 and k == P - 3): q = []
        if last:
            del slow[nslow:]
            side = {k: [x for x in side[k] if (x.startswith("ds_read_b128") and k < 58) or (B21 and k < 4 and x.startswith("v_xor_b32") and "s35" in x)] for k in range(88)}
            q = (["A0"] + ["A1"] * 2) if B21 else (["A0"] * 2 + ["A1"] * 2 + ["A3"] * 2 + ["Q"])
            pre = {}
            for k in range(88):
                if k % 8 == 0:
                    need = f"A{k // 8}"
                    if need in q:
                        idx = max(i_ for i_, x in enumerate(q) if x == need)
                        pre[k] = len(q) - 1 - idx
                        q = q[idx + 1:]
                q += [t for t in lds_issue.get(k, []) if t.startswith("A")]
            st_setup = [f"v_lshrrev_b32 v{vT}, 4, v{vL}", f"v_and_b32 v{vPA}, 15, v{vT}", f"v_lshrrev_b32 v{vT}, 4, v{vT}",
                        "s_lshl_b32 s28, s21, 7", "s_lshl_b32 s29, s3, 5", "s_add_u32 s28, s28, s29",
                        f"v_add_u32 v{vPA}, s28, v{vPA}", f"v_lshlrev_b32 v{vPA}, 2, v{vPA}", f"v_lshl_add_u32 v{vPA}, v{vT}, 13, v{vPA}"]
            if B21:
                st_setup += ["s_lshl_b32 s28, s20, 6", f"v_xor_b32 v{vPA}, s28, v{vPA}", f"v_xor_b32 v{vWA}, 64, v{vPA}"]
            for i_, ins in enumerate(st_setup): side[4 + i_ // 2].append(ins)
            tmps = [Bn + ((x + 8) & 15) for x in range(16)]
            n_ = 0
            for rb in range(10):
                k0 = 8 * (rb + 1) + 3
                seq = []
                for i in range(4):
                    for cb in range(2):
                        t = tmps[n_ % 16]; n_ += 1
                        yr = ACC + ((rb * 2 + cb) * 2 + 0) * 4 + i
                        yi = ACC + ((rb * 2 + cb) * 2 + 1) * 4 + i
                        so = (16 * rb + (i & 2)) * 2048
                        pre_ = [f"s_mov_b32 s38, {so}"] if (cb == 0 and i % 2 == 0) else []
                        seq.append(pre_ + [f"v_cvt_pk_bf16_f32 v{t}, v{yr}, v{yi}",
                                           (f"buffer_store_dword v{t}, v{vWA if cb else vPA}, s[16:19], s38 offen offset:{(i&1)*2048}{NTF('ntys')}" if B21 else
                                            f"buffer_store_dword v{t}, v{vPA}, s[16:19], s38 offen offset:{(i&1)*2048+cb*64}{NTF('ntys')}")])
                for e_, grp in enumerate(seq):
                    kk = min(k0 + e_ * 3 // 4, 83 if B21 else 87)
                    side[kk] += grp
        k = 0
        for rb in range(11):
            for ins in mfmas(rb, Bc):
                if k in pre:
                    a(f"s_waitcnt lgkmcnt({min(pre[k], 15)})")
                emit(ins)
                for s_ in side[k]: emit(s_)
                k += 1
    ovl = OPT.get('epiovl', 1)
    a.lab("K12_LOOP")
    emit_stage(0); emit_stage(1)
    a("s_add_u32 s39, s39, 1")
    a(f"s_cmp_lt_u32 s39, {15 if ovl else 16}")
    a("s_cbranch_scc1 K12_LOOP")
    if ovl:
        emit_stage(0); emit_stage(1, last=True)
    if OPT.get('stamp'):
        a("s_memtime s[92:93]")
        a("s_memrealtime s[94:95]")
    if not ovl:
        a(f"v_lshrrev_b32 v8, 4, v{vL}")
        a("v_and_b32 v9, 15, v8")
        a("v_lshrrev_b32 v8, 4, v8")
        a("s_lshl_b32 s28, s21, 7")
        a("s_lshl_b32 s29, s3, 5")
        a("s_add_u32 s28, s28, s29")
        a("v_add_u32 v9, s28, v9")
        a("v_lshlrev_b32 v9, 2, v9")
        a(f"v_lshl_add_u32 v{vPA}, v8, 13, v9")
    a("s_nop 7")
    n = 0
    if B21:
        assert ovl
        a("s_lshl_b32 s34, s27, 1")
        a(f"s_mul_i32 s34, s34, {YFB}")
        a(f"s_add_u32 s34, s34, {O['YT']}")
        srd(a, 64, 58, "s34", 2 * YFB)
        a(f"v_lshrrev_b32 v8, 8, v{vL}")
        a(f"v_lshlrev_b32 v9, 13, v8")
        a(f"v_sub_u32 v9, v{vPA}, v9")
        a("v_lshlrev_b32 v8, 2, v8")
        a("v_add_u32 v8, 160, v8")
        for i in range(4):
            a(f"v_add_u32 v10, {i}, v8")
            a("v_add_u32 v11, 160, v10")
            a("v_cmp_gt_u32 vcc, 167, v10")
            a("s_nop 1")
            a("v_cndmask_b32 v11, v11, v10, vcc")
            a("v_cmp_gt_u32 vcc, 174, v10")
            a("v_mov_b32 v12, 0x7ffff")
            a("s_nop 0")
            a("v_cndmask_b32 v11, v12, v11, vcc")
            a(f"v_lshl_add_u32 v{16+i}, v11, 11, v9")
        for i in range(4):
            yr = ACC + ((10 * 2 + 0) * 2 + 0) * 4 + i
            yi = ACC + ((10 * 2 + 0) * 2 + 1) * 4 + i
            a(f"v_cvt_pk_bf16_f32 v{20+i}, v{yr}, v{yi}")
            a(f"buffer_store_dword v{20+i}, v{16+i}, s[64:67], 0 offen{NTF('ntys')}")
    else:
      for rb in range(10 if ovl else 0, 11):
        for i in range(4):
            if i % 2 == 0:
                a(f"s_mov_b32 s38, {(16*rb+i)*2048}")
            for cb in range(2):
                t = 8 + (n % 8); n += 1
                yr = ACC + ((rb * 2 + cb) * 2 + 0) * 4 + i
                yi = ACC + ((rb * 2 + cb) * 2 + 1) * 4 + i
                a(f"v_cvt_pk_bf16_f32 v{t}, v{yr}, v{yi}")
                a(f"buffer_store_dword v{t}, v{vPA}, s[16:19], s38 offen offset:{(i&1)*2048+cb*64}{NTF('ntys')}")
    if OPT.get('stamp'):
        a("s_waitcnt vmcnt(0)")
        a("s_memtime s[76:77]")
        a("s_memrealtime s[78:79]")
        a("s_waitcnt lgkmcnt(0)")
        srd(a, 64, 58, O['ST'] + (1 << 20), 1 << 20)
        order = [62, 63, 82, 83] + ([92, 93] if OPT.get('kpre') else [80, 81]) + [94, 95, 86, 87, 78, 79, 88, 89, 90, 91]
        for k, sreg in enumerate(order):
            a(f"v_mov_b32 v{16+k}, s{sreg}")
        a("s_lshl_b32 s38, s2, 3")
        a("s_add_u32 s38, s38, s3")
        a("s_lshl_b32 s38, s38, 6")
        a("v_mov_b32 v40, 0")
        a("s_mov_b64 exec, 1")
        for k in range(4):
            a(f"buffer_store_dwordx4 v[{16+4*k}:{19+4*k}], v40, s[64:67], s38 offen offset:{16*k}")
    a("s_endpgm")
    for ins in slow: emit(ins)

def producer(a, O, OPT):
    WSTR = O['WSTR']
    XR, OPS, WR, ACCW, FH, FL, FW, TMP = 0, 64, 96, 128, 160, 192, 224, 240
    vXL, vXS, vWL, vWS0, vXS0, vWS, vLA, vT = 248, 249, 250, 251, 252, 253, 254, 255
    st = {0: "", 1: " sc1", 2: " sc0 sc1", 3: " sc1 nt"}[OPT.get('stsc1', 1)]
    lo = OPT.get('xlo', 1)
    a("v_and_b32 v64, 15, v2")
    a("v_lshrrev_b32 v65, 4, v2")
    a(f"v_lshlrev_b32 v{vLA}, 4, v2")
    a("s_and_b32 s44, s3, 3")
    a("s_and_b32 s20, s44, 1")
    a("s_lshr_b32 s21, s44, 1")
    a("s_lshl_b32 s22, s2, 1")
    a("s_add_u32 s22, s22, s21")
    a("s_and_b32 s23, s22, 3")
    a("s_lshr_b32 s22, s22, 2")
    a("s_and_b32 s24, s2, 7")
    a("s_lshl_b32 s24, s24, 5")
    a("s_lshr_b32 s25, s2, 3")
    a("s_add_u32 s24, s24, s25")
    a(f"s_cmp_ge_u32 s24, {NT}")
    a("s_cselect_b32 s25, 1, 0")
    a(f"s_mul_i32 s26, s25, {NT}")
    a("s_sub_u32 s24, s24, s26")
    a("s_cmp_eq_u32 s21, 0")
    a("s_cselect_b32 s25, s25, 1")
    a("s_mul_i32 s26, s25, 16384000")
    srd(a, 4, 52, "s26", 16384000)
    srd(a, 8, 54, None, 31 * 524288)
    srd(a, 12, 58, O['XT'] if O['XT'] else None, XT_SIZE)
    srd(a, 16, 58, O['WT'], 128 * WSTR)
    if OPT.get('kpre'):
        srd(a, 60, 58, O['SY'], 32768)
    else:
        a("s_mov_b32 s60, s56"); a("s_and_b32 s61, s57, 0xffff"); a("s_mov_b32 s62, 256"); a("s_mov_b32 s63, 0x00020000")
    a("s_mov_b32 s28, 0x05040100")
    a("s_mov_b32 s29, 0x07060302")
    if OPT.get('stamp'):
        srd(a, 64, 58, O['ST'] + (6 << 20), 1 << 20)
        a("s_lshl_b32 s73, s2, 2")
        a("s_add_u32 s73, s73, s44")
        a("s_lshl_b32 s73, s73, 7")
    a(f"v_lshlrev_b32 v{vXL}, 14, v65")
    a(f"v_lshl_add_u32 v{vXL}, v64, 4, v{vXL}")
    a(f"v_and_b32 v{vWL}, 1, v65")
    a(f"v_lshlrev_b32 v{vWL}, 23, v{vWL}")
    a(f"v_lshl_add_u32 v{vWL}, v64, 4, v{vWL}")
    a("v_lshrrev_b32 v66, 1, v65")
    a(f"s_mov_b32 s26, {2*XFB}")
    a("v_mul_lo_u32 v66, v66, s26")
    a("v_lshrrev_b32 v67, 2, v64")
    a(f"s_mov_b32 s26, {XBLK}")
    a("v_mul_lo_u32 v67, v67, s26")
    a("v_add_u32 v66, v66, v67")
    a(f"v_mov_b32 v{vXS0}, v66")
    a("v_lshrrev_b32 v66, 1, v65")
    a(f"s_mov_b32 s26, {4*WSTR}")
    a("v_mul_lo_u32 v66, v66, s26")
    a("v_and_b32 v67, 1, v65")
    a("v_lshl_add_u32 v66, v67, 8, v66")
    a("v_and_b32 v67, 1, v64")
    a(f"v_lshl_add_u32 v{vWS0}, v67, 4, v66")
    a(f"s_mul_i32 s31, s25, {XFB}")
    a(f"s_mul_i32 s32, s23, {WSTR}")
    a("s_lshl_b32 s33, s23, 8")
    def tile_of(sp):
        a(f"s_mul_i32 s36, s{sp}, 85")
        a("s_add_u32 s36, s36, s2")
        a("s_and_b32 s36, s36, 255")
        a("s_mul_hi_u32 s37, s36, 0x55555556")
        a("s_mul_i32 s38, s37, 3")
        a("s_cmp_eq_u32 s38, s36")
        a("s_cselect_b32 s27, 1, 0")
        a("s_cmp_lt_u32 s37, 78")
        a("s_cselect_b32 s27, s27, 0")
        a(f"s_add_u32 s37, s37, {256 - NT}")
        a("s_cmp_eq_u32 s21, 0")
        a("s_cselect_b32 s30, s24, s37")
        a("s_cselect_b32 s27, 1, s27")
    def w_loads(sp):
        a(f"s_lshl_b32 s36, s{sp}, 7")
        a("s_add_u32 s36, s36, s22")
        a("s_lshr_b32 s37, s36, 9")
        a("s_lshl_b32 s37, s37, 19")
        a("s_and_b32 s36, s36, 511")
        a("s_lshl_b32 s36, s36, 10")
        a("s_add_u32 s36, s36, s37")
        a("s_add_u32 s36, s36, s33")
        if OPT.get('pldsame'): a("s_mov_b32 s36, s33")
        for e in range(8 if not OPT.get('pnold') else 0):
            a(f"buffer_load_dwordx4 v[{WR+4*e}:{WR+4*e+3}], v{vWL}, s[8:11], s36 offen{PLF(OPT)}")
            if e < 7: a("s_add_u32 s36, s36, 0x100000")
    def x_loads(sp):
        a(f"s_lshl_b32 s36, s{sp}, 8")
        a(f"s_mul_i32 s37, s30, {48*2048}")
        a("s_add_u32 s36, s36, s37")
        if OPT.get('pldsame'): a("s_mov_b32 s36, 0")
        for ks in range(2 if not OPT.get('pnold') else 0):
            for e2 in range(4):
                r = XR + 32 * ks + 8 * e2
                a(f"buffer_load_dwordx4 v[{r}:{r+3}], v{vXL}, s[4:7], s36 offen{PLF(OPT)}")
                a(f"buffer_load_dwordx4 v[{r+4}:{r+7}], v{vXL}, s[4:7], s36 offen offset:2048{PLF(OPT)}")
                if not (ks == 1 and e2 == 3):
                    a(f"s_add_u32 s36, s36, {4096 if e2 < 3 else 32*2048 - 3*4096}")
    nsig = [0]
    def signal(sp):
        n = nsig[0]; nsig[0] += 1
        a("s_mov_b32 s34, -1")
        a(f"s_cmp_ge_u32 s{sp}, 8")
        a(f"s_cbranch_scc1 K12_SG{n}")
        if OPT.get('stamp'):
            a("s_memrealtime s[70:71]")
            a("s_waitcnt lgkmcnt(0)")
            a(f"s_lshl_b32 s72, s{sp}, 3")
            a("s_add_u32 s72, s72, s73")
            a("v_mov_b32 v240, s70"); a("v_mov_b32 v241, s71"); a("v_mov_b32 v242, 0")
            a("s_mov_b64 exec, 1")
            a("buffer_store_dwordx2 v[240:241], v242, s[64:67], s72 offen")
            a("s_mov_b64 exec, -1")
        a(f"s_lshl_b32 s36, s{sp}, 2")
        a(f"s_add_u32 s37, s36, {PCNT}")
        a("s_mov_b64 exec, 1")
        a(f"v_mov_b32 v{vT}, s37")
        a(f"v_mov_b32 v{TMP}, 1")
        a(f"ds_add_rtn_u32 v{TMP}, v{vT}, v{TMP}")
        a("s_waitcnt lgkmcnt(0)")
        a(f"v_readfirstlane_b32 s37, v{TMP}")
        a("s_nop 3")
        a("s_cmp_eq_u32 s37, 3")
        a(f"s_cbranch_scc0 K12_SH{n}")
        if OPT.get('wbl2'):
            a("buffer_wbl2 sc1")
            a("s_waitcnt vmcnt(0)")
        if OPT.get('kpre'):
            a("s_lshl_b32 s36, s36, 8")
        a(f"v_mov_b32 v{vT}, 1")
        a(f"v_mov_b32 v{TMP}, s36")
        a(f"buffer_atomic_add v{vT}, v{TMP}, s[60:63], 0 offen sc0 sc1")
        a(f"s_mov_b32 s34, s{sp}")
        a.lab(f"K12_SH{n}")
        a("s_mov_b64 exec, -1")
        a.lab(f"K12_SG{n}")
    def publish():
        n = nsig[0]; nsig[0] += 1
        a("s_cmp_ge_u32 s34, 8")
        a(f"s_cbranch_scc1 K12_PB{n}")
        a(f"v_readfirstlane_b32 s37, v{vT}")
        a("s_nop 3")
        a("s_cmp_eq_u32 s37, 255")
        a(f"s_cbranch_scc0 K12_PB{n}")
        a("s_lshl_b32 s36, s34, 4")
        a(f"s_add_u32 s36, s36, {16384 if OPT.get('kpre') else 128}")
        a("s_mov_b64 exec, 1")
        a(f"v_mov_b32 v{vT}, 1")
        a(f"v_mov_b32 v{TMP}, s36")
        a(f"buffer_store_dword v{vT}, v{TMP}, s[60:63], 0 offen sc1")
        a("s_mov_b64 exec, -1")
        a.lab(f"K12_PB{n}")
    nsub = [0]
    def subgate(rb):
        if not OPT.get('subg', 1) or rb == 0: return
        G = OPT.get('gateg', 17)
        n = nsub[0]; nsub[0] += 1
        a(f"s_cmp_lt_u32 s40, {max(OPT.get('gatep', 3), OPT.get('kpre', 0) + OPT.get('subskip', 1))}")
        a(f"s_cbranch_scc1 K12_UT{n}")
        a("s_lshl_b32 s36, s40, 3")
        a(f"s_sub_i32 s36, s36, {2 * (G - rb * OPT.get('substep', 1)) + 2}")
        a("s_max_i32 s36, s36, 1")
        a(f"s_mov_b32 s37, {SPIN * 8}")
        a.lab(f"K12_UL{n}")
        a(f"v_mov_b32 v{vT}, {SYNC}")
        a(f"ds_read_b32 v{vT}, v{vT}")
        a("s_waitcnt lgkmcnt(0)")
        a(f"v_cmp_gt_u32 vcc, s36, v{vT}")
        a("s_sub_u32 s37, s37, 1")
        a("s_cmp_eq_u32 s37, 0")
        a(f"s_cbranch_scc1 K12_UT{n}")
        a(f"s_cbranch_vccz K12_UT{n}")
        a(f"s_sleep {OPT.get('gsleep', 2)}")
        a(f"s_branch K12_UL{n}")
        a.lab(f"K12_UT{n}")
    def w_compute(sp):
        a(f"s_lshl_b32 s36, s{sp}, 7")
        a("s_add_u32 s36, s36, s22")
        a("s_and_b32 s37, s36, 3")
        a("s_lshr_b32 s38, s36, 1")
        a("s_and_b32 s38, s38, 4")
        a("s_or_b32 s37, s37, s38")
        a(f"v_bfe_u32 v{vWS}, v{vLA}, 5, 3")
        a(f"v_xor_b32 v{vWS}, s37, v{vWS}")
        a(f"v_lshl_add_u32 v{vWS}, v{vWS}, 5, v{vWS0}")
        a("s_lshl_b32 s36, s36, 9")
        a("s_add_u32 s39, s36, s32")
        if OPT.get('plin'):
            a(f"v_mov_b32 v{vWS}, v{vLA}")
            a(f"s_lshl_b32 s39, s{sp}, 10"); a("s_lshl_b32 s36, s2, 2"); a("s_add_u32 s39, s39, s36"); a("s_add_u32 s39, s39, s3"); a("s_lshl_b32 s39, s39, 14"); a("s_and_b32 s39, s39, 0x3ffffff")
        for rb in range(4):
            subgate(rb)
            for i in range(8 if not OPT.get('pnocomp') else 0):
                a(f"v_mfma_f32_16x16x32_bf16 v[{ACCW+4*i}:{ACCW+4*i+3}], v[{FW+4*rb}:{FW+4*rb+3}], v[{OPS+4*i}:{OPS+4*i+3}], 0")
            a("s_nop 7")
            for r in range(4):
                t = TMP + 4 * (r & 1)
                for q in range(4 if not OPT.get('pnocomp') else 0):
                    a(f"v_cvt_pk_bf16_f32 v{t+q}, v{ACCW+4*(2*q)+r}, v{ACCW+4*(2*q+1)+r}")
                if not OPT.get('pnost'): a(f"buffer_store_dwordx4 v[{t}:{t+3}], v{vWS}, s[16:19], s39 offen{st}")
                if not (rb == 3 and r == 3):
                    a(f"s_add_u32 s39, s39, {1024 if OPT.get('plin') else 2*4*WSTR}")
    def x_compute(sp):
        ACCX = XR + 32
        a(f"s_mul_i32 s39, s{sp}, {4*XBLK}")
        a("s_add_u32 s39, s39, s31")
        a("s_lshl_b32 s36, s30, 7")
        a("s_add_u32 s39, s39, s36")
        a(f"v_bfe_u32 v{vXS}, v{vLA}, 4, 2")
        a(f"v_bfe_u32 v{TMP}, v{vLA}, 8, 1")
        a(f"v_lshl_add_u32 v{vXS}, v{TMP}, 2, v{vXS}")
        if OPT.get('b21'):
            a("s_add_u32 s36, s30, 7")
            a("s_cmp_ge_u32 s30, 160")
            a("s_cselect_b32 s36, s36, s30")
            a("s_cmp_eq_u32 s25, 1")
            a("s_cselect_b32 s36, s36, s30")
            a("s_lshr_b32 s36, s36, 1")
        else:
            a("s_lshr_b32 s36, s30, 1")
        a("s_and_b32 s36, s36, 7")
        a(f"v_xor_b32 v{vXS}, s36, v{vXS}")
        a(f"v_lshl_add_u32 v{vXS}, v{vXS}, 4, v{vXS0}")
        if OPT.get('plin'):
            a(f"s_lshl_b32 s39, s{sp}, 9"); a("s_lshl_b32 s36, s2, 1"); a("s_add_u32 s39, s39, s36"); a("s_add_u32 s39, s39, s21"); a("s_lshl_b32 s39, s39, 14"); a("s_and_b32 s39, s39, 0x1ffffff")
        for rb in range(4):
            subgate(rb)
            terms = [(FH + (rb * 2) * 4, OPS), (FH + (rb * 2 + 1) * 4, XR)]
            if lo:
                terms = [terms[0], (FL + (rb * 2) * 4, OPS), terms[1], (FL + (rb * 2 + 1) * 4, XR)]
            for ti, (F, ops) in enumerate(terms if not OPT.get('pnocomp') else []):
                for i in range(8):
                    c = "0" if ti == 0 else f"v[{ACCX+4*i}:{ACCX+4*i+3}]"
                    a(f"v_mfma_f32_16x16x32_bf16 v[{ACCX+4*i}:{ACCX+4*i+3}], v[{F}:{F+3}], v[{ops+4*i}:{ops+4*i+3}], {c}")
            a("s_nop 7")
            for r in range(4):
                t = TMP + 4 * (r & 1)
                for q in range(4 if not OPT.get('pnocomp') else 0):
                    a(f"v_cvt_pk_bf16_f32 v{t+q}, v{ACCX+4*(2*q)+r}, v{ACCX+4*(2*q+1)+r}")
                if not OPT.get('pnost'): a(f"buffer_store_dwordx4 v[{t}:{t+3}], v{vLA if OPT.get('plin') else vXS}, s[12:15], s39 offen{st}")
                if not (rb == 3 and r == 3):
                    a(f"s_add_u32 s39, s39, {1024 if OPT.get('plin') else 2*2*XFB}")
    nst = [0]
    def ustamp(slot):
        if not OPT.get('stamp'): return
        n = nst[0]; nst[0] += 1
        a("s_and_b32 s72, s40, 6")
        a(f"s_cmp_eq_u32 s72, {OPT.get('ustph', 4)}")
        a(f"s_cbranch_scc0 K12_US{n}")
        a(f"s_memrealtime s[{74+0}:{75}]")
        a("s_waitcnt lgkmcnt(0)")
        a(f"s_add_u32 s72, s73, {(8+slot)*8}")
        a("v_mov_b32 v240, s74"); a("v_mov_b32 v241, s75"); a("v_mov_b32 v242, 0")
        a("s_mov_b64 exec, 1")
        a("buffer_store_dwordx2 v[240:241], v242, s[64:67], s72 offen")
        a("s_mov_b64 exec, -1")
        a.lab(f"K12_US{n}")
    def eager_publish():
        n = nsig[0]; nsig[0] += 1
        a("s_cmp_ge_u32 s34, 8")
        a(f"s_cbranch_scc1 K12_EP{n}")
        a("s_waitcnt vmcnt(0)")
        publish()
        a("s_mov_b32 s34, -1")
        a.lab(f"K12_EP{n}")
    def early_signal():
        if not OPT.get('early', 1): return
        n = nsig[0]; nsig[0] += 1
        a(f"s_cmp_eq_u32 s41, {OPT.get('kpre', 0) or 1}")
        a(f"s_cbranch_scc0 K12_ES{n}")
        a("s_waitcnt vmcnt(0)")
        signal(41)
        a("s_waitcnt vmcnt(0)")
        publish()
        a("s_mov_b32 s34, -1")
        a("s_mov_b32 s41, -1")
        a.lab(f"K12_ES{n}")
    ngate = [0]
    def gate():
        G = OPT.get('gateg', 17); GP = OPT.get('gatep', 3)
        n = ngate[0]; ngate[0] += 1
        a("s_lshl_b32 s36, s40, 3")
        a(f"s_sub_i32 s36, s36, {2 * G + 2}")
        a("s_max_i32 s36, s36, 1")
        a(f"s_mov_b32 s38, {SYNC}")
        a(f"s_cmp_eq_u32 s40, {1 if not OPT.get('kpre') else 99}")
        a(f"s_cselect_b32 s36, {4 if OPT.get('ord1', 1) else 0}, s36")
        a(f"s_cselect_b32 s38, {ISSUED}, s38")
        a(f"s_cbranch_scc1 K12_GS{n}")
        a(f"s_cmp_lt_u32 s40, {GP}")
        a(f"s_cbranch_scc1 K12_GT{n}")
        a.lab(f"K12_GS{n}")
        a(f"s_mov_b32 s37, {SPIN * 8}")
        a.lab(f"K12_GL{n}")
        a(f"v_mov_b32 v{TMP}, s38")
        a(f"ds_read_b32 v{TMP}, v{TMP}")
        a("s_waitcnt lgkmcnt(0)")
        a(f"v_cmp_gt_u32 vcc, s36, v{TMP}")
        a("s_sub_u32 s37, s37, 1")
        a("s_cmp_eq_u32 s37, 0")
        a(f"s_cbranch_scc1 K12_GT{n}")
        a(f"s_cbranch_vccz K12_GT{n}")
        a(f"s_sleep {OPT.get('gsleep', 2)}")
        a(f"s_branch K12_GL{n}")
        a.lab(f"K12_GT{n}")
    xs = 1 if OPT.get('stamp') else 0
    def advance():
        a("s_mov_b32 s41, s40"); a("s_add_u32 s40, s40, 1")
        early_signal()
    def gate_at(thr_expr_G, tagn):
        n = ngate[0]; ngate[0] += 1
        a("s_lshl_b32 s36, s40, 3")
        a(f"s_sub_i32 s36, s36, {thr_expr_G}")
        a("s_max_i32 s36, s36, 1")
        a(f"s_mov_b32 s37, {SPIN * 8}")
        a.lab(f"K12_GL{n}")
        a(f"v_mov_b32 v{TMP}, {SYNC}")
        a(f"ds_read_b32 v{TMP}, v{TMP}")
        a("s_waitcnt lgkmcnt(0)")
        a(f"v_cmp_gt_u32 vcc, s36, v{TMP}")
        a("s_sub_u32 s37, s37, 1")
        a("s_cmp_eq_u32 s37, 0")
        a(f"s_cbranch_scc1 K12_GT{n}")
        a(f"s_cbranch_vccz K12_GT{n}")
        a(f"s_sleep {OPT.get('gsleep', 2)}")
        a(f"s_branch K12_GL{n}")
        a.lab(f"K12_GT{n}")
    LG = OPT.get('lgate', 0)
    def w_phase(tag):
        ustamp(0)
        if LG:
            a("s_waitcnt vmcnt(0)")
            signal(41); eager_publish()
        interleave_perm(a, WR, OPS, 28, 29, OPT.get('pnocomp'))
        if LG: gate_at(2 * OPT.get('gateg', 13) + 2, tag)
        a("s_add_u32 s42, s40, 1")
        tile_of(42)
        a("s_cmp_eq_u32 s27, 0")
        a(f"s_cbranch_scc1 {tag}_N")
        x_loads(42)
        ustamp(1)
        if not LG: a(f"s_waitcnt vmcnt({16 + xs})")
        a(f"s_branch {tag}_M")
        a.lab(f"{tag}_N")
        if not LG: a("s_waitcnt vmcnt(0)")
        a.lab(f"{tag}_M")
        if not LG:
            signal(41)
            eager_publish()
            gate()
        ustamp(2)
        w_compute(40)
        ustamp(3)
        advance()
        a("s_waitcnt vmcnt(16)")
        publish()
    def x_phase(tag):
        ustamp(4)
        if LG:
            a("s_waitcnt vmcnt(0)")
            signal(41); eager_publish()
        a("s_cmp_eq_u32 s27, 0")
        a(f"s_cbranch_scc1 {tag}_N")
        interleave_perm(a, XR, OPS, 28, 29, OPT.get('pnocomp'))
        interleave_perm(a, XR + 32, XR, 28, 29, OPT.get('pnocomp'))
        a.lab(f"{tag}_N")
        if LG: gate_at(2 * OPT.get('gateg', 13) + 2, tag)
        a("s_add_u32 s42, s40, 1")
        w_loads(42)
        ustamp(5)
        if not LG:
            a(f"s_waitcnt vmcnt({8 + xs})")
            signal(41)
            eager_publish()
        a("s_cmp_eq_u32 s27, 0")
        a(f"s_cbranch_scc1 {tag}_E")
        if not LG: gate()
        ustamp(6)
        x_compute(40)
        ustamp(7)
        advance()
        a("s_waitcnt vmcnt(16)")
        a(f"s_branch {tag}_F")
        a.lab(f"{tag}_E")
        advance()
        a("s_waitcnt vmcnt(0)")
        a.lab(f"{tag}_F")
        publish()

    KP = OPT.get('kpre', 0)
    if KP:
        a(f"s_mov_b32 s40, {KP}")
    else:
        a("s_lshr_b32 s40, s3, 2")
    a("s_xor_b32 s43, s40, s20")
    a("s_and_b32 s43, s43, 1")
    tile_of(40)
    a("s_cmp_eq_u32 s43, 0")
    a("s_cbranch_scc0 K12_PL1")
    w_loads(40)
    a("s_branch K12_PL2")
    a.lab("K12_PL1")
    a("s_cmp_eq_u32 s27, 0")
    a("s_cbranch_scc1 K12_PL2")
    x_loads(40)
    a.lab("K12_PL2")
    if KP and OPT.get('touch', 1):
        a(f"v_lshrrev_b32 v128, 4, v{vLA}")
        a("v_lshlrev_b32 v129, 11, v128")
        a("v_lshrrev_b32 v130, 1, v128")
        a("v_lshlrev_b32 v130, 20, v130")
        a("v_and_b32 v131, 1, v128")
        a("v_lshl_add_u32 v130, v131, 7, v130")
        a("s_mov_b32 s45, s27"); a("s_mov_b32 s46, s30")
        a("s_add_u32 s47, s40, 1")
        a.lab("K12_TCH")
        a("s_xor_b32 s48, s47, s20")
        a("s_and_b32 s48, s48, 1")
        a("s_cmp_eq_u32 s48, 0")
        a("s_cbranch_scc1 K12_TCHW")
        tile_of(47)
        a("s_cmp_eq_u32 s27, 0")
        a("s_cbranch_scc1 K12_TCHN")
        a("s_lshl_b32 s36, s47, 8")
        a(f"s_mul_i32 s37, s30, {48*2048}")
        a("s_add_u32 s36, s36, s37")
        a("buffer_load_dword v244, v129, s[4:7], s36 offen")
        a("buffer_load_dword v245, v129, s[4:7], s36 offen offset:128")
        a("s_branch K12_TCHN")
        a.lab("K12_TCHW")
        a("s_lshl_b32 s36, s47, 7")
        a("s_add_u32 s36, s36, s22")
        a("s_lshr_b32 s37, s36, 9")
        a("s_lshl_b32 s37, s37, 19")
        a("s_and_b32 s36, s36, 511")
        a("s_lshl_b32 s36, s36, 10")
        a("s_add_u32 s36, s36, s37")
        a("s_add_u32 s36, s36, s33")
        a("s_mov_b64 exec, 0xffffffff")
        a("buffer_load_dword v246, v130, s[8:11], s36 offen")
        a("s_mov_b64 exec, -1")
        a.lab("K12_TCHN")
        a("s_add_u32 s47, s47, 1")
        a("s_cmp_lt_u32 s47, 8")
        a("s_cbranch_scc1 K12_TCH")
        a("s_mov_b32 s27, s45"); a("s_mov_b32 s30, s46")
    if OPT.get('stamp'):
        a("s_memrealtime s[84:85]")
    if KP:
        table_params(a, 64, 44, 128, 129, 130)
        a("v_lshlrev_b32 v131, 3, v65")
        for ks in range(2):
            if ks: a("v_add_u32 v131, 32, v131")
            a("v_lshlrev_b32 v132, 5, v129")
            a("v_mad_u32_u24 v133, v128, v131, v132")
            trig(a, 128, 133, 136, 144, 148, 152)
            a("s_lshl_b32 s37, s44, 12")
            a(f"s_add_u32 s37, s37, {TABX + ks*2048}")
            a(f"v_add_u32 v132, s37, v{vLA}")
            a("ds_write_b128 v132, v[144:147]")
            a("ds_write_b128 v132, v[148:151] offset:1024")
    else:
        table_params(a, 64, 44, 128, 129, 130)
        a("v_lshlrev_b32 v131, 3, v65")
        a("s_lshr_b32 s36, s3, 2")
        a("s_lshl_b32 s37, s36, 5")
        a("v_add_u32 v131, s37, v131")
        a("v_lshlrev_b32 v132, 5, v129")
        a("v_mad_u32_u24 v133, v128, v131, v132")
        trig(a, 128, 133, 136, 144, 148, 152)
        a("s_lshl_b32 s37, s44, 12")
        a("s_lshl_b32 s36, s36, 11")
        a("s_add_u32 s37, s37, s36")
        a(f"v_add_u32 v132, s37, v{vLA}")
        a(f"ds_write_b128 v132, v[144:147] offset:{TABX}")
        a(f"ds_write_b128 v132, v[148:151] offset:{TABX + 1024}")
        a("s_cmp_ge_u32 s3, 4")
        a("s_cbranch_scc1 K12_TB")
        a("v_and_b32 v131, 1, v65")
        a("v_lshlrev_b32 v131, 3, v131")
        a("v_mul_u32_u24 v132, 96, v129")
        a("v_mad_u32_u24 v133, v128, v131, v132")
        trig(a, 128, 133, 136, 144, 148, 152)
        a("v_cmp_lt_u32 vcc, 1, v65")
        a("s_lshl_b32 s37, s44, 10")
        a(f"v_add_u32 v132, s37, v{vLA}")
        for q in range(4):
            a(f"v_cndmask_b32 v{144+q}, v{144+q}, v{148+q}, vcc")
        a(f"ds_write_b128 v132, v[144:147] offset:{TABW}")
        a("v_mov_b32 v136, 0"); a("v_mov_b32 v137, 0"); a("v_mov_b32 v138, 0"); a("v_mov_b32 v139, 0")
        a(f"s_mul_i32 s36, s44, {SB2}")
        a(f"s_add_u32 s36, s36, {167*128}")
        a(f"v_add_u32 v132, s36, v{vLA}")
        a("ds_write_b128 v132, v[136:139]")
        a("s_mov_b64 exec, 0xff")
        a("ds_write_b128 v132, v[136:139] offset:1024")
        a("s_mov_b64 exec, -1")
        a("s_lshl_b32 s36, s44, 2")
        a(f"s_add_u32 s36, s36, {SYNC}")
        a("v_mov_b32 v132, s36")
        a("ds_write_b32 v132, v136")
        a("s_lshl_b32 s36, s44, 3")
        a(f"s_add_u32 s36, s36, {PCNT}")
        a("v_mov_b32 v132, s36")
        a("ds_write_b64 v132, v[136:137]")
        a("s_lshl_b32 s36, s44, 3")
        a(f"s_add_u32 s36, s36, {MIRROR}")
        a("v_mov_b32 v132, s36")
        a("ds_write_b64 v132, v[136:137]")
        a(f"v_mov_b32 v132, {ISSUED}")
        a("ds_write_b32 v132, v136")
        a(f"v_mov_b32 v132, {ONES}")
        a("v_mov_b32 v133, 1")
        a("ds_write_b32 v132, v133")
    a.lab("K12_TB")
    a("s_waitcnt lgkmcnt(0)")
    a("s_barrier")
    if OPT.get('stamp'):
        a("s_memrealtime s[86:87]")
    a(f"v_add_u32 v{vT}, {TABX}, v{vLA}")
    for fr in range(8):
        a(f"ds_read_b128 v[{FH+4*fr}:{FH+4*fr+3}], v{vT} offset:{(fr>>1)*4096 + (fr&1)*2048}")
        a(f"ds_read_b128 v[{FL+4*fr}:{FL+4*fr+3}], v{vT} offset:{(fr>>1)*4096 + (fr&1)*2048 + 1024}")
        if fr == 3: a("s_waitcnt lgkmcnt(0)")
    for rb in range(4):
        a(f"ds_read_b128 v[{FW+4*rb}:{FW+4*rb+3}], v{vT} offset:{16384 + rb*1024}")
    if KP:
        a("s_waitcnt lgkmcnt(0)")
        a("s_barrier")
    a("s_waitcnt vmcnt(0) lgkmcnt(0)")
    if OPT.get('stamp'):
        a("s_memrealtime s[88:89]")
    a("s_mov_b32 s41, -1")
    a("s_mov_b32 s34, -1")
    if KP:
        a("s_branch K12_PROD")
    a("s_cmp_lt_u32 s3, 4")
    a("s_cbranch_scc0 K12_PROD")
    a("s_cmp_eq_u32 s43, 0")
    a("s_cbranch_scc0 K12_H1")
    interleave_perm(a, WR, OPS, 28, 29, OPT.get('pnocomp'))
    w_compute(40)
    a("s_branch K12_H2")
    a.lab("K12_H1")
    a("s_cmp_eq_u32 s27, 0")
    a("s_cbranch_scc1 K12_H2")
    interleave_perm(a, XR, OPS, 28, 29, OPT.get('pnocomp'))
    interleave_perm(a, XR + 32, XR, 28, 29, OPT.get('pnocomp'))
    x_compute(40)
    a.lab("K12_H2")
    a("s_mov_b64 exec, 1")
    a(f"v_mov_b32 v{vT}, {ISSUED}")
    a(f"v_mov_b32 v{OPS}, 1")
    a(f"ds_add_u32 v{vT}, v{OPS}")
    a("s_mov_b64 exec, -1")
    if OPT.get('stamp'):
        a("s_memrealtime s[90:91]")
    a("s_waitcnt vmcnt(0)")
    if OPT.get('stamp'):
        a("s_memrealtime s[92:93]")
        a("s_waitcnt lgkmcnt(0)")
        srd(a, 68, 58, O['ST'] + (7 << 20), 1 << 20)
        for k in range(10):
            a(f"v_mov_b32 v{128+k}, s{84+k}")
        a("v_mov_b32 v138, s82"); a("v_mov_b32 v139, s83"); a("v_mov_b32 v140, 0")
        a("s_lshl_b32 s72, s2, 2"); a("s_add_u32 s72, s72, s3"); a("s_lshl_b32 s72, s72, 6")
        a("s_mov_b64 exec, 1")
        for k in range(3):
            a(f"buffer_store_dwordx4 v[{128+4*k}:{131+4*k}], v140, s[68:71], s72 offen offset:{16*k}")
        a("s_mov_b64 exec, -1")
    a("s_mov_b32 s41, 0")
    signal(41)
    a("s_waitcnt vmcnt(0)")
    publish()
    if OPT.get('stamp'):
        a("s_memrealtime s[80:81]")
    a("s_branch K12_CONS")
    a.lab("K12_PROD")
    if OPT.get('noprod') == 1:
        a("s_endpgm")
    if OPT.get('noprod') == 2:
        a("s_mov_b32 s37, 4000")
        a.lab("K12_IDLE")
        a("s_sleep 64")
        a(f"v_mov_b32 v{TMP}, {SYNC}")
        a(f"ds_read_b32 v{TMP}, v{TMP}")
        a("s_waitcnt lgkmcnt(0)")
        a(f"v_cmp_gt_u32 vcc, 34, v{TMP}")
        a("s_sub_u32 s37, s37, 1")
        a("s_cmp_eq_u32 s37, 0")
        a("s_cbranch_scc1 K12_IDLE_X")
        a("s_cbranch_vccnz K12_IDLE")
        a.lab("K12_IDLE_X")
        a("s_endpgm")
    if OPT.get('pprio', 1):
        a(f"s_setprio {OPT.get('pprio', 1)}")
    a("s_cmp_eq_u32 s43, 0")
    a("s_cbranch_scc1 K12_WENTRY")
    a.lab("K12_XW")
    x_phase("K12_XP")
    a("s_cmp_ge_u32 s40, 8")
    a("s_cbranch_scc1 K12_PFIN")
    a.lab("K12_WENTRY")
    w_phase("K12_WP")
    a("s_cmp_lt_u32 s40, 8")
    a("s_cbranch_scc1 K12_XW")
    a.lab("K12_PFIN")
    a("s_waitcnt vmcnt(0)")
    signal(41)
    a("s_waitcnt vmcnt(0)")
    publish()
    a("s_endpgm")


def k1mix(a, O, OPT):
    WSTR = O['WSTR']; KP = OPT['kpre']; lo = OPT.get('xlo', 1)
    NWG = 256 * KP
    TX, TW = 0, (16384 if lo else 8192)
    a.raw(".p2align 8")
    a.raw(".type k1_xform_kernel,@function")
    a.lab("k1_xform_kernel")
    a(f"s_cmp_ge_u32 s2, {NWG}")
    a("s_cbranch_scc1 K1_END")
    stamp_begin(a)
    a("s_load_dwordx4 s[4:7], s[0:1], 0")
    a("s_load_dwordx2 s[8:9], s[0:1], 48")
    a("v_lshrrev_b32 v120, 6, v0")
    a("v_and_b32 v121, 63, v0")
    a("v_readfirstlane_b32 s3, v120")
    a("v_and_b32 v122, 15, v121")
    a("v_lshrrev_b32 v123, 4, v121")
    a("v_lshlrev_b32 v121, 4, v121")
    a("s_mov_b32 s28, 0x05040100")
    a("s_mov_b32 s29, 0x07060302")
    if OPT.get('kaorder', 0) == 0:
        a("s_lshr_b32 s40, s2, 8")
        a("s_and_b32 s41, s2, 255")
    else:
        a(f"s_mul_hi_u32 s41, s2, {(2**32 + KP - 1) // KP}")
        a(f"s_mul_i32 s40, s41, {KP}")
        a("s_sub_u32 s40, s2, s40")
    a("s_and_b32 s20, s3, 1")
    a("s_lshr_b32 s21, s3, 1")
    a("s_xor_b32 s43, s40, s20")
    a("s_and_b32 s43, s43, 1")
    a("s_waitcnt lgkmcnt(0)")
    a("s_or_b32 s10, s2, s3")
    a("s_cmp_eq_u32 s10, 0")
    a("s_cbranch_scc0 K1_NOCLR")
    srd(a, 12, 8, O['SY'], 32768)
    a("v_lshrrev_b32 v118, 4, v121")
    a("v_lshlrev_b32 v119, 10, v118")
    a("v_mov_b32 v117, 0")
    a("s_mov_b64 exec, 0xffff")
    a("buffer_store_dword v117, v119, s[12:15], 0 offen")
    a("v_lshlrev_b32 v119, 4, v118")
    a("v_add_u32 v119, 16384, v119")
    a("buffer_store_dword v117, v119, s[12:15], 0 offen")
    a("s_mov_b64 exec, -1")
    a.lab("K1_NOCLR")
    if OPT.get('k34'):
        a("s_cmp_lt_u32 s2, 32")
        a("s_cbranch_scc0 K1_NOFILL")
        srd(a, 12, 8, O['PART'], 256 * 512)
        a("s_lshl_b32 s10, s2, 2")
        a("s_add_u32 s10, s10, s3")
        a("s_lshl_b32 s10, s10, 10")
        for k in range(4): a(f"v_mov_b32 v{112+k}, -1")
        a("buffer_store_dwordx4 v[112:115], v121, s[12:15], s10 offen")
        a.lab("K1_NOFILL")
    a("s_cmp_eq_u32 s43, 0")
    a("s_cbranch_scc1 K1_WL")
    a("s_and_b32 s24, s41, 7")
    a("s_lshl_b32 s24, s24, 5")
    a("s_lshr_b32 s25, s41, 3")
    a("s_add_u32 s24, s24, s25")
    a("s_mul_i32 s36, s40, 85")
    a("s_add_u32 s36, s36, s41")
    a("s_and_b32 s36, s36, 255")
    a("s_mul_hi_u32 s37, s36, 0x55555556")
    a("s_mul_i32 s38, s37, 3")
    a("s_cmp_eq_u32 s38, s36")
    a("s_cselect_b32 s27, 1, 0")
    a("s_cmp_lt_u32 s37, 78")
    a("s_cselect_b32 s27, s27, 0")
    a("s_add_u32 s37, s37, 256")
    a("s_cmp_eq_u32 s21, 0")
    a("s_cselect_b32 s24, s24, s37")
    a("s_cselect_b32 s27, 1, s27")
    a(f"s_cmp_ge_u32 s24, {NT}")
    a("s_cselect_b32 s13, 1, 0")
    a(f"s_mul_i32 s26, s13, {NT}")
    a("s_sub_u32 s11, s24, s26")
    a("s_mul_i32 s14, s13, 16384000")
    srd(a, 16, 4, "s14", 16384000)
    srd(a, 20, 8, O['XT'] if O['XT'] else None, XT_SIZE)
    a("v_lshlrev_b32 v126, 14, v123")
    a("v_lshl_add_u32 v126, v122, 4, v126")
    a(f"s_mul_i32 s15, s11, {48*2048}")
    a("s_lshl_b32 s24, s40, 8")
    a("s_add_u32 s15, s15, s24")
    a("s_cmp_eq_u32 s27, 0")
    a("s_cbranch_scc1 K1_TAB")
    for ks in range(2):
        for e2 in range(4):
            r = 32 * ks + 8 * e2
            a(f"buffer_load_dwordx4 v[{r}:{r+3}], v126, s[16:19], s15 offen")
            a(f"buffer_load_dwordx4 v[{r+4}:{r+7}], v126, s[16:19], s15 offen offset:2048")
            if not (ks == 1 and e2 == 3):
                a(f"s_add_u32 s15, s15, {4096 if e2 < 3 else 32*2048 - 3*4096}")
    a("s_branch K1_TAB")
    a.lab("K1_WL")
    a("s_lshl_b32 s22, s41, 1")
    a("s_add_u32 s22, s22, s21")
    a("s_and_b32 s44, s22, 3")
    a("s_lshr_b32 s22, s22, 2")
    a("s_lshl_b32 s11, s40, 7")
    a("s_add_u32 s11, s11, s22")
    srd(a, 16, 6, None, 31 * 524288)
    srd(a, 20, 8, O['WT'], 128 * WSTR)
    a("s_lshr_b32 s12, s11, 9")
    a("s_and_b32 s13, s11, 511")
    a("s_lshl_b32 s14, s12, 19")
    a("s_lshl_b32 s15, s13, 10")
    a("s_add_u32 s14, s14, s15")
    a("s_lshl_b32 s15, s44, 8")
    a("s_add_u32 s15, s14, s15")
    a("v_and_b32 v126, 1, v123")
    a("v_lshlrev_b32 v126, 23, v126")
    a("v_lshl_add_u32 v126, v122, 4, v126")
    for e in range(8):
        a(f"buffer_load_dwordx4 v[{4*e}:{4*e+3}], v126, s[16:19], s15 offen")
        if e < 7: a("s_add_u32 s15, s15, 0x100000")
    a.lab("K1_TAB")
    table_params(a, 122, 3, 124, 125, 112, st=10)
    a("v_lshlrev_b32 v127, 3, v123")
    for ks in range(2):
        if ks: a("v_add_u32 v127, 32, v127")
        a("v_lshlrev_b32 v112, 5, v125")
        a("v_mad_u32_u24 v113, v124, v127, v112")
        trig(a, 124, 113, 64, 72, 76, 80)
        a(f"s_lshl_b32 s10, s3, {12 if lo else 11}")
        a("v_add_u32 v114, s10, v121")
        if lo:
            a(f"ds_write_b128 v114, v[72:75] offset:{TX + ks*2048}")
            a(f"ds_write_b128 v114, v[76:79] offset:{TX + ks*2048 + 1024}")
        else:
            a(f"ds_write_b128 v114, v[72:75] offset:{TX + ks*1024}")
    a("v_and_b32 v127, 1, v123")
    a("v_lshlrev_b32 v127, 3, v127")
    a("v_mul_u32_u24 v112, 96, v125")
    a("v_mad_u32_u24 v113, v124, v127, v112")
    trig(a, 124, 113, 64, 72, 76, 80)
    a("v_cmp_lt_u32 vcc, 1, v123")
    a("s_lshl_b32 s10, s3, 10")
    a("v_add_u32 v114, s10, v121")
    for q in range(4):
        a(f"v_cndmask_b32 v{72+q}, v{72+q}, v{76+q}, vcc")
    a(f"ds_write_b128 v114, v[72:75] offset:{TW}")
    a("s_waitcnt lgkmcnt(0)")
    a("s_barrier")
    a("s_cmp_eq_u32 s43, 0")
    a("s_cbranch_scc1 K1_WC")
    a("s_cmp_eq_u32 s27, 0")
    a("s_cbranch_scc1 K1_END")
    a("v_lshrrev_b32 v112, 1, v123")
    a(f"s_mov_b32 s24, {2*XFB}")
    a("v_mul_lo_u32 v112, v112, s24")
    a("v_lshrrev_b32 v113, 2, v122")
    a(f"s_mov_b32 s24, {XBLK}")
    a("v_mul_lo_u32 v113, v113, s24")
    a("v_add_u32 v112, v112, v113")
    a("v_and_b32 v113, 3, v122")
    a("v_and_b32 v114, 1, v123")
    a("v_lshl_add_u32 v113, v114, 2, v113")
    if OPT.get('b21'):
        a("s_add_u32 s24, s11, 7")
        a("s_cmp_ge_u32 s11, 160")
        a("s_cselect_b32 s24, s24, s11")
        a("s_cmp_eq_u32 s13, 1")
        a("s_cselect_b32 s24, s24, s11")
        a("s_lshr_b32 s24, s24, 1")
    else:
        a("s_lshr_b32 s24, s11, 1")
    a("s_and_b32 s24, s24, 7")
    a("v_xor_b32 v113, s24, v113")
    a("v_lshl_add_u32 v120, v113, 4, v112")
    a(f"s_mul_i32 s25, s13, {XFB}")
    a(f"s_mul_i32 s24, s40, {4*XBLK}")
    a("s_add_u32 s25, s25, s24")
    a("s_lshl_b32 s24, s11, 7")
    a("s_add_u32 s25, s25, s24")
    if OPT.get('mixlin'):
        a("v_mov_b32 v120, v121"); a("s_lshl_b32 s25, s2, 2"); a("s_add_u32 s25, s25, s3"); a("s_lshl_b32 s25, s25, 14"); a("s_and_b32 s25, s25, 0x1ffffff")
    a("s_waitcnt vmcnt(8)")
    interleave_perm(a, 0, 64, 28, 29)
    a("s_waitcnt vmcnt(0)")
    stamp_mid(a)
    interleave_perm(a, 32, 0, 28, 29)
    for rb in range(4):
        nfr = 4 if lo else 2
        for fr in range(nfr):
            off = TX + (rb*4096 + fr*1024 if lo else rb*2048 + fr*1024)
            a(f"ds_read_b128 v[{96+4*fr}:{99+4*fr}], v121 offset:{off}")
        for term in range(nfr):
            a(f"s_waitcnt lgkmcnt({nfr-1-term})")
            ops = (64 if term < 2 else 0) if lo else (64 if term == 0 else 0)
            for i in range(8):
                c = "0" if term == 0 else f"v[{32+4*i}:{35+4*i}]"
                a(f"v_mfma_f32_16x16x32_bf16 v[{32+4*i}:{35+4*i}], v[{96+4*term}:{99+4*term}], v[{ops+4*i}:{ops+4*i+3}], {c}")
        a("s_nop 7")
        for r in range(4):
            t = 112 + 4 * (r & 1)
            for q in range(4):
                a(f"v_cvt_pk_bf16_f32 v{t+q}, v{32+4*(2*q)+r}, v{32+4*(2*q+1)+r}")
            a(f"buffer_store_dwordx4 v[{t}:{t+3}], v120, s[20:23], s25 offen")
            if not (rb == 3 and r == 3):
                a(f"s_add_u32 s25, s25, {1024 if OPT.get('mixlin') else 2*2*XFB}")
    stamp_end(a, O, 0)
    a("s_endpgm")
    a.lab("K1_WC")
    a("v_lshrrev_b32 v112, 1, v123")
    a(f"s_mov_b32 s24, {4*WSTR}")
    a("v_mul_lo_u32 v112, v112, s24")
    a("v_and_b32 v113, 1, v123")
    a("v_lshl_add_u32 v112, v113, 8, v112")
    a("v_and_b32 v113, 1, v122")
    a("v_lshl_add_u32 v124, v113, 4, v112")
    a("v_lshrrev_b32 v125, 1, v122")
    a("s_and_b32 s30, s11, 3")
    a("s_lshr_b32 s24, s11, 1")
    a("s_and_b32 s24, s24, 4")
    a("s_or_b32 s30, s30, s24")
    a("v_xor_b32 v112, s30, v125")
    a("v_lshl_add_u32 v120, v112, 5, v124")
    a(f"s_mul_i32 s25, s44, {WSTR}")
    a("s_lshl_b32 s24, s11, 9")
    a("s_add_u32 s25, s25, s24")
    for rb in range(4):
        a(f"ds_read_b128 v[{96+4*rb}:{99+4*rb}], v121 offset:{TW + rb*1024}")
    a("s_waitcnt vmcnt(0) lgkmcnt(0)")
    stamp_mid(a)
    interleave_perm(a, 0, 32, 28, 29)
    a("s_nop 1")
    for rb in range(4):
        for i in range(8):
            a(f"v_mfma_f32_16x16x32_bf16 v[{64+4*i}:{67+4*i}], v[{96+4*rb}:{99+4*rb}], v[{32+4*i}:{35+4*i}], 0")
        a("s_nop 7")
        for r in range(4):
            t = 112 + 4 * (r & 1)
            for q in range(4):
                a(f"v_cvt_pk_bf16_f32 v{t+q}, v{64+4*(2*q)+r}, v{64+4*(2*q+1)+r}")
            a(f"buffer_store_dwordx4 v[{t}:{t+3}], v120, s[20:23], s25 offen")
            if not (rb == 3 and r == 3):
                a(f"s_add_u32 s25, s25, {2*4*WSTR}")
    stamp_end(a, O, 0)
    a.lab("K1_END")
    a("s_endpgm")
    return ("k1_xform_kernel", NWG, 256, TW + 4096, 128)
```

```python
import sys

NAME = "standalone__self_sup_conv_stem_wavlm__speech"

T2 = 8000
L = 7985
V = 48
NT = 167
XBLK = NT * 128
XFB = 32 * XBLK
XT_SIZE = 64 * XFB
YFB = NT * 2048
YT_SIZE = 64 * YFB

OPT = dict(fused=1, kpre=3, subg=1, gateg=11, k34=1, xlo=1, lgate=1, b21=1, tlate=2, pbar=1, dynprio=1, wpad=0, cpw=1, xfirst=1, ntx=0, ntw=0, ntxs=0, ntws=0, ntk2=0, ntys=2, ntyl=0, nto=2)
def NTF(k): return {0: '', 1: ' nt', 2: ' sc1', 3: ' sc0 sc1'}[OPT.get(k, 0)]

class A:
    def __init__(self):
        self.l = []
    def __call__(self, s):
        self.l.append("    " + s)
    def lab(self, s):
        self.l.append(s + ":")
    def raw(self, s):
        self.l.append(s)
    def c(self, s):
        self.l.append("    ; " + s)
    def text(self):
        return "\n".join(self.l) + "\n"

def vr(a, n=1):
    return f"v{a}" if n == 1 else f"v[{a}:{a+n-1}]"
def sr(a, n=1):
    return f"s{a}" if n == 1 else f"s[{a}:{a+n-1}]"

def srd(a, s, base, off, size):
    if off is None:
        a(f"s_mov_b32 s{s}, s{base}")
        a(f"s_mov_b32 s{s+1}, s{base+1}")
    else:
        a(f"s_add_u32 s{s}, s{base}, {off}")
        a(f"s_addc_u32 s{s+1}, s{base+1}, 0")
    a(f"s_and_b32 s{s+1}, s{s+1}, 0xffff")
    a(f"s_mov_b32 s{s+2}, {size}")
    a(f"s_mov_b32 s{s+3}, 0x00020000")

def trig(a, vA, vM0, T, hi, lo, tmp, scale=None):
    if OPT.get('k1nocomp'): return
    for e in range(8):
        a(f"v_mad_u32_u24 v{T+e}, v{vA}, {e}, v{vM0}")
    trig_core(a, T, hi, lo, tmp, scale)

def trig_core(a, T, hi, lo, tmp, scale=None):
    for e in range(8):
        a(f"v_and_b32 v{T+e}, 127, v{T+e}")
    for e in range(8):
        a(f"v_cvt_f32_u32 v{T+e}, v{T+e}")
    for e in range(8):
        a(f"v_mul_f32 v{T+e}, 0x3c000000, v{T+e}")
    for e in range(8):
        a(f"v_cos_f32 v{T+e}, v{T+e}")
    a("s_nop 0")
    if scale is not None:
        for e in range(8):
            a(f"v_mul_f32 v{T+e}, {scale}, v{T+e}")
    for q in range(4):
        a(f"v_cvt_pk_bf16_f32 v{hi+q}, v{T+2*q}, v{T+2*q+1}")
    for q in range(4):
        a(f"v_lshlrev_b32 v{tmp}, 16, v{hi+q}")
        a(f"v_and_b32 v{tmp+1}, 0xffff0000, v{hi+q}")
        a(f"v_sub_f32 v{T+2*q}, v{T+2*q}, v{tmp}")
        a(f"v_sub_f32 v{T+2*q+1}, v{T+2*q+1}, v{tmp+1}")
    for q in range(4):
        a(f"v_cvt_pk_bf16_f32 v{lo+q}, v{T+2*q}, v{T+2*q+1}")

def interleave_perm(a, raw, ops, sLo, sHi, skip=False):
    if OPT.get('k1nocomp') or skip: return
    for q in range(4):
        for m in range(4):
            r0 = raw + 4 * (2 * m) + q
            r1 = raw + 4 * (2 * m + 1) + q
            a(f"v_perm_b32 v{ops+4*(2*q)+m}, v{r1}, v{r0}, s{sLo}")
            a(f"v_perm_b32 v{ops+4*(2*q+1)+m}, v{r1}, v{r0}, s{sHi}")

def stamp_begin(a):
    if OPT.get('stamp'):
        a("s_memtime s[64:65]")
        a("s_memrealtime s[66:67]")
        a("s_load_dwordx2 s[76:77], s[0:1], 48")
        a("s_lshl_b32 s78, s2, 4")

def stamp_mid(a):
    if OPT.get('stamp'):
        a("s_memrealtime s[80:81]")

def stamp_end(a, O, kidx):
    if OPT.get('stamp'):
        a("s_waitcnt vmcnt(0) lgkmcnt(0)")
        a("s_memtime s[68:69]")
        a("s_memrealtime s[70:71]")
        a("s_waitcnt lgkmcnt(0)")
        srd(a, 72, 76, O['ST'] + (2 << 20) + kidx * (1 << 20), 1 << 20)
        a("s_mov_b32 s64, s80")
        a("s_mov_b32 s65, s81")
        for k in range(8):
            a(f"v_mov_b32 v{16+k}, s{64+k}")
        a("s_add_u32 s78, s78, s3")
        a("s_lshl_b32 s78, s78, 5")
        a("v_mov_b32 v30, 0")
        a("s_mov_b64 exec, 1")
        for k in range(2):
            a(f"buffer_store_dwordx4 v[{16+4*k}:{19+4*k}], v30, s[72:75], s78 offen offset:{16*k}")

def code_prefetch(a, entry, tag, vtid=0, tmp=8, nwaves=8, dest=63):
    if not OPT.get('cpf', 1): return
    a(f"s_getpc_b64 s[90:91]")
    a.lab(f"CPF_{tag}")
    a(f"s_sub_u32 s90, s90, CPF_{tag}-{entry}")
    a("s_subb_u32 s91, s91, 0")
    per = nwaves * 64 * 128
    a(f"v_lshlrev_b32 v{tmp}, 7, v{vtid}")
    a(f"v_mov_b32 v{tmp+3}, s91")
    for r in range(OPT.get('cpfn', 1)):
        a(f"v_min_u32 v{tmp+1}, TEXT_END-{entry}-4, v{tmp}")
        a(f"v_add_co_u32 v{tmp+2}, vcc, s90, v{tmp+1}")
        a(f"v_addc_co_u32 v{tmp+3}, vcc, 0, v{tmp+3}, vcc")
        a(f"global_load_dword v{dest}, v[{tmp+2}:{tmp+3}], off")
        if r + 1 < OPT.get('cpfn', 1):
            a(f"v_mov_b32 v{tmp+3}, s91")
            a(f"v_add_u32 v{tmp}, {per}, v{tmp}")

def layout():
    O = {}
    O['WSTR'] = 524288 + OPT['wpad']
    O['XT'] = 0
    O['WT'] = 48 << 20
    O['YT'] = O['WT'] + ((128 * O['WSTR'] + (1 << 20) - 1) >> 20 << 20) + (1 << 20)
    O['ST'] = O['YT'] + (24 << 20)
    O['PART'] = O['ST'] + (9 << 20) + (1 << 19)
    O['SY'] = O['ST'] + (9 << 20)
    assert O['ST'] + (10 << 20) <= (256 << 20)
    return O

def k1(a, O):
    CPW = OPT['cpw']
    KP = OPT.get('kpre', 0) or 8
    NW = 128 * KP // CPW
    if OPT.get('wonly'): KP = 8
    NX = 2 * KP * 42
    WSTR = O['WSTR']
    a.raw(".p2align 8")
    a.raw(".type k1_xform_kernel,@function")
    a.lab("k1_xform_kernel")
    a(f"s_cmp_ge_u32 s2, {NW+NX}")
    a("s_cbranch_scc1 K1_END")
    stamp_begin(a)
    a("s_load_dwordx4 s[4:7], s[0:1], 0")
    a("s_load_dwordx2 s[8:9], s[0:1], 48")
    a("v_lshrrev_b32 v120, 6, v0")
    a("v_and_b32 v121, 63, v0")
    a("v_readfirstlane_b32 s3, v120")
    a("v_and_b32 v122, 15, v121")
    a("v_lshrrev_b32 v123, 4, v121")
    a("s_mov_b32 s28, 0x05040100")
    a("s_mov_b32 s29, 0x07060302")
    a("v_and_b32 v124, 3, v122")
    a("v_lshlrev_b32 v124, 2, v124")
    a("v_lshrrev_b32 v125, 3, v122")
    a("v_lshl_add_u32 v124, v125, 1, v124")
    a("s_lshl_b32 s10, s3, 4")
    a("s_add_u32 s10, s10, 1")
    a("v_add_u32 v124, s10, v124")
    a("v_bfe_u32 v125, v122, 2, 1")
    a("v_lshlrev_b32 v121, 4, v121")
    a("s_waitcnt lgkmcnt(0)")
    if OPT.get('fused') and OPT.get('kpre'):
        a("s_or_b32 s10, s2, s3")
        a("s_cmp_eq_u32 s10, 0")
        a("s_cbranch_scc0 K1_NOCLR")
        srd(a, 12, 8, O['SY'], 32768)
        a("v_lshrrev_b32 v118, 4, v121")
        a("v_lshlrev_b32 v119, 10, v118")
        a("v_mov_b32 v117, 0")
        a("s_mov_b64 exec, 0xffff")
        a("buffer_store_dword v117, v119, s[12:15], 0 offen")
        a("v_lshlrev_b32 v119, 4, v118")
        a("v_add_u32 v119, 16384, v119")
        a("buffer_store_dword v117, v119, s[12:15], 0 offen")
        a("s_mov_b64 exec, -1")
        a.lab("K1_NOCLR")
    if OPT.get('k34'):
        a("s_cmp_lt_u32 s2, 32")
        a("s_cbranch_scc0 K1_NOFILL")
        srd(a, 12, 8, O['PART'], 256 * 512)
        a("s_lshl_b32 s10, s2, 2")
        a("s_add_u32 s10, s10, s3")
        a("s_lshl_b32 s10, s10, 10")
        for k in range(4): a(f"v_mov_b32 v{112+k}, -1")
        a("buffer_store_dwordx4 v[112:115], v121, s[12:15], s10 offen")
        a.lab("K1_NOFILL")
    if OPT.get('xfirst'):
        a(f"s_add_u32 s10, s2, {NW}")
        a(f"s_sub_u32 s11, s2, {NX}")
        a(f"s_cmp_lt_u32 s2, {NX}")
        a("s_cselect_b32 s2, s10, s11")
    a(f"s_cmp_lt_u32 s2, {NW}")
    if OPT.get('skipw'):
        a("s_cbranch_scc1 K1_END")
    else:
        a("s_cbranch_scc1 K1_W")
    if OPT.get('skipx'):
        a("s_endpgm")

    a.c("x-type workgroup: 4 consecutive tiles, one 128-channel group")
    a(f"s_sub_u32 s11, s2, {NW}")
    if KP & (KP - 1) == 0:
        a(f"s_and_b32 s12, s11, {KP - 1}")
        a(f"s_lshr_b32 s11, s11, {KP.bit_length() - 1}")
    else:
        a(f"s_mul_hi_u32 s13, s11, {(2**32 + KP - 1) // KP}")
        a(f"s_mul_i32 s12, s13, {KP}")
        a("s_sub_u32 s12, s11, s12")
        a("s_mov_b32 s11, s13")
    a("s_cmp_ge_u32 s11, 42")
    a("s_cselect_b32 s13, 1, 0")
    a("s_mul_i32 s14, s13, 42")
    a("s_sub_u32 s11, s11, s14")
    a("s_lshl_b32 s11, s11, 2")
    a("s_add_u32 s11, s11, s3")
    a("s_mul_i32 s14, s13, 16384000")
    srd(a, 16, 4, "s14", 16384000)
    srd(a, 20, 8, O['XT'] if O['XT'] else None, XT_SIZE)
    a("v_lshlrev_b32 v126, 14, v123")
    a("v_lshl_add_u32 v126, v122, 4, v126")
    a(f"s_mul_i32 s15, s11, {48*2048}")
    a("s_lshl_b32 s24, s12, 8")
    a("s_add_u32 s15, s15, s24")
    for ks in range(2):
        for e2 in range(4):
            e = 2 * e2
            r = 32 * ks + 4 * e
            if not OPT.get('k1nold'):
                a(f"buffer_load_dwordx4 v[{r}:{r+3}], v126, s[16:19], s15 offen{NTF('ntx')}")
                a(f"buffer_load_dwordx4 v[{r+4}:{r+7}], v126, s[16:19], s15 offen offset:2048{NTF('ntx')}")
            if not (ks == 1 and e2 == 3):
                a(f"s_add_u32 s15, s15, {4096 if e2 < 3 else 32*2048 - 3*4096}")
    a("v_lshlrev_b32 v127, 3, v123")
    for ks in range(2):
        if ks == 1:
            a("v_add_u32 v127, 32, v127")
        a("v_lshlrev_b32 v112, 5, v125")
        a("v_mad_u32_u24 v113, v124, v127, v112")
        trig(a, 124, 113, 64, 72, 76, 80)
        a(f"s_lshl_b32 s24, s3, 12")
        a(f"v_add_u32 v114, s24, v121")
        a(f"ds_write_b128 v114, v[72:75] offset:{ks*2048}")
        a(f"ds_write_b128 v114, v[76:79] offset:{ks*2048+1024}")
    a("v_lshrrev_b32 v112, 1, v123")
    a(f"s_mov_b32 s24, {2*XFB}")
    a("v_mul_lo_u32 v112, v112, s24")
    a("v_lshrrev_b32 v113, 2, v122")
    a(f"s_mov_b32 s24, {XBLK}")
    a("v_mul_lo_u32 v113, v113, s24")
    a("v_add_u32 v112, v112, v113")
    a("v_and_b32 v113, 3, v122")
    a("v_and_b32 v114, 1, v123")
    a("v_lshl_add_u32 v113, v114, 2, v113")
    if OPT.get('b21'):
        a("s_add_u32 s24, s11, 7")
        a("s_cmp_ge_u32 s11, 160")
        a("s_cselect_b32 s24, s24, s11")
        a("s_cmp_eq_u32 s13, 1")
        a("s_cselect_b32 s24, s24, s11")
        a("s_lshr_b32 s24, s24, 1")
    else:
        a("s_lshr_b32 s24, s11, 1")
    a("s_and_b32 s24, s24, 7")
    a("v_xor_b32 v113, s24, v113")
    a("v_lshl_add_u32 v120, v113, 4, v112")
    a(f"s_mul_i32 s25, s13, {XFB}")
    a(f"s_mul_i32 s24, s12, {4*XBLK}")
    a("s_add_u32 s25, s25, s24")
    a("s_lshl_b32 s24, s11, 7")
    a("s_add_u32 s25, s25, s24")
    if OPT.get('k1lin'):
        a("v_mov_b32 v120, v121")
        a(f"s_sub_u32 s25, s2, {NW}")
        a("s_lshl_b32 s25, s25, 2")
        a("s_add_u32 s25, s25, s3")
        a("s_lshl_b32 s25, s25, 14")
    a("s_waitcnt lgkmcnt(0)")
    a("s_barrier")
    a(f"s_cmp_ge_u32 s11, {NT}")
    a("s_cbranch_scc1 K1_END")
    a("s_waitcnt vmcnt(8)")
    interleave_perm(a, 0, 64, 28, 29)
    a("s_waitcnt vmcnt(0)")
    stamp_mid(a)
    interleave_perm(a, 32, 0, 28, 29)
    for rb in range(4):
        for fr in range(4):
            a(f"ds_read_b128 v[{96+4*fr}:{99+4*fr}], v121 offset:{rb*4096+fr*1024}")
        for term in range(4):
            a(f"s_waitcnt lgkmcnt({3-term})")
            ops = 64 if term < 2 else 0
            for i in range(8 if not OPT.get('k1nocomp') else 0):
                c = "0" if term == 0 else f"v[{32+4*i}:{35+4*i}]"
                a(f"v_mfma_f32_16x16x32_bf16 v[{32+4*i}:{35+4*i}], v[{96+4*term}:{99+4*term}], v[{ops+4*i}:{ops+4*i+3}], {c}")
        a("s_nop 7")
        for r in range(4):
            t = 112 + 4 * (r & 1)
            for q in range(4 if not OPT.get('k1nocomp') else 1):
                a(f"v_cvt_pk_bf16_f32 v{t+q}, v{32+4*(2*q)+r}, v{32+4*(2*q+1)+r}")
            if not OPT.get('k1nost'):
                a(f"buffer_store_dwordx4 v[{t}:{t+3}], v120, s[20:23], s25 offen{NTF('ntxs')}")
            if not (rb == 3 and r == 3):
                a(f"s_add_u32 s25, s25, {1024 if OPT.get('k1lin') else 2*2*XFB}")
    stamp_end(a, O, 0)
    a("s_endpgm")

    a.lab("K1_W")
    a.c("w-type workgroup: CPW consecutive input channels c', wave = column quarter nq")
    srd(a, 16, 6, None, 31 * 524288)
    srd(a, 20, 8, O['WT'], 128 * WSTR)
    a(f"s_mul_i32 s11, s2, {CPW}")
    a("s_lshr_b32 s12, s11, 9")
    a("s_and_b32 s13, s11, 511")
    a("s_lshl_b32 s14, s12, 19")
    a("s_lshl_b32 s15, s13, 10")
    a("s_add_u32 s14, s14, s15")
    a("s_lshl_b32 s15, s3, 8")
    a("s_add_u32 s14, s14, s15")
    a("v_and_b32 v126, 1, v123")
    a("v_lshlrev_b32 v126, 23, v126")
    a("v_lshl_add_u32 v126, v122, 4, v126")
    def wloads():
        a("s_mov_b32 s15, s14")
        for e in range(8):
            if not OPT.get('k1nold'):
                a(f"buffer_load_dwordx4 v[{4*e}:{4*e+3}], v126, s[16:19], s15 offen{NTF('ntw')}")
            if e < 7:
                a("s_add_u32 s15, s15, 0x100000")
    wloads()
    a("v_and_b32 v127, 1, v123")
    a("v_lshlrev_b32 v127, 3, v127")
    a("v_mul_u32_u24 v112, 96, v125")
    a("v_mad_u32_u24 v113, v124, v127, v112")
    trig(a, 124, 113, 64, 72, 76, 80)
    a("v_cmp_lt_u32 vcc, 1, v123")
    a("s_lshl_b32 s24, s3, 10")
    a("v_add_u32 v114, s24, v121")
    for q in range(4):
        a(f"v_cndmask_b32 v{72+q}, v{72+q}, v{76+q}, vcc")
    a("ds_write_b128 v114, v[72:75]")
    a("v_lshrrev_b32 v112, 1, v123")
    a(f"s_mov_b32 s24, {4*WSTR}")
    a("v_mul_lo_u32 v112, v112, s24")
    a("v_and_b32 v113, 1, v123")
    a("v_lshl_add_u32 v112, v113, 8, v112")
    a("v_and_b32 v113, 1, v122")
    a("v_lshl_add_u32 v124, v113, 4, v112")
    a("v_lshrrev_b32 v125, 1, v122")
    a(f"s_mul_i32 s26, s3, {WSTR}")
    a("s_lshl_b32 s24, s11, 9")
    a("s_add_u32 s26, s26, s24")
    a("s_waitcnt lgkmcnt(0)")
    a("s_barrier")
    for rb in range(4):
        a(f"ds_read_b128 v[{96+4*rb}:{99+4*rb}], v121 offset:{rb*1024}")
    a("s_mov_b32 s27, 0")
    a("s_waitcnt vmcnt(0) lgkmcnt(0)")
    stamp_mid(a)
    a.lab("K1_W_LOOP")
    a("s_add_u32 s24, s11, s27")
    a("s_and_b32 s30, s24, 3")
    a("s_lshr_b32 s24, s24, 1")
    a("s_and_b32 s24, s24, 4")
    a("s_or_b32 s30, s30, s24")
    a("v_xor_b32 v112, s30, v125")
    a("v_lshl_add_u32 v120, v112, 5, v124")
    a("s_lshl_b32 s25, s27, 9")
    a("s_add_u32 s25, s25, s26")
    if OPT.get('k1lin'):
        a("v_mov_b32 v120, v121")
        a(f"s_add_u32 s25, s11, s27")
        a("s_lshl_b32 s25, s25, 2")
        a("s_add_u32 s25, s25, s3")
        a("s_lshl_b32 s25, s25, 14")
    interleave_perm(a, 0, 32, 28, 29)
    a("s_add_u32 s27, s27, 1")
    a("s_add_u32 s14, s14, 1024")
    a(f"s_cmp_ge_u32 s27, {CPW}")
    a("s_cbranch_scc1 K1_W_NOLOAD")
    wloads()
    a.lab("K1_W_NOLOAD")
    for rb in range(4):
        for i in range(8 if not OPT.get('k1nocomp') else 0):
            a(f"v_mfma_f32_16x16x32_bf16 v[{64+4*i}:{67+4*i}], v[{96+4*rb}:{99+4*rb}], v[{32+4*i}:{35+4*i}], 0")
        a("s_nop 7")
        for r in range(4):
            t = 112 + 4 * (r & 1)
            for q in range(4 if not OPT.get('k1nocomp') else 1):
                a(f"v_cvt_pk_bf16_f32 v{t+q}, v{64+4*(2*q)+r}, v{64+4*(2*q+1)+r}")
            if not OPT.get('k1nost'):
                a(f"buffer_store_dwordx4 v[{t}:{t+3}], v120, s[20:23], s25 offen{NTF('ntws')}")
            if not (rb == 3 and r == 3):
                a(f"s_add_u32 s25, s25, {1024 if OPT.get('k1lin') else 2*4*WSTR}")
    a("s_waitcnt vmcnt(16)")
    a(f"s_cmp_lt_u32 s27, {CPW}")
    a("s_cbranch_scc1 K1_W_LOOP")
    stamp_end(a, O, 0)
    a.lab("K1_END")
    a("s_endpgm")
    return NW + NX

def descriptor(a, name, vgpr, sgpr=96):
    a.raw(".p2align 6")
    a.raw(f".amdhsa_kernel {name}")
    a.raw(f"  .amdhsa_next_free_vgpr {vgpr}")
    a.raw(f"  .amdhsa_next_free_sgpr {sgpr}")
    a.raw(f"  .amdhsa_accum_offset {min(256, (vgpr+3)//4*4)}")
    a.raw("  .amdhsa_group_segment_fixed_size 0")
    a.raw("  .amdhsa_kernarg_size 56")
    a.raw("  .amdhsa_user_sgpr_count 2")
    a.raw("  .amdhsa_user_sgpr_kernarg_segment_ptr 1")
    a.raw("  .amdhsa_system_sgpr_workgroup_id_x 1")
    a.raw(".end_amdhsa_kernel")

HEADER = """; Kernarg layout for this problem (56 bytes, ptrs only, base s[0:1]):
"""

def main():
    out = NAME + ".s"
    for arg in sys.argv[1:]:
        if "=" in arg:
            k, v = arg.split("=")
            OPT[k] = int(v)
        else:
            out = arg
    O = layout()
    import kernels2
    a = A()
    body = A()
    launches = []
    if OPT.get('fused'):
        import kernels4
        import gen as _g
        _g.OPT.update(OPT)
        if OPT.get('kpre') and OPT.get('kamix', 0):
            launches.append(kernels4.k1mix(body, O, OPT))
        elif OPT.get('kpre'):
            g1 = k1(body, O)
            launches.append(("k1_xform_kernel", g1, 256, OPT.get('k1lds', 16384), 128))
        launches.append(kernels4.k12(body, O, OPT))
        launches += kernels2.emit(body, O, OPT)
    else:
        g1 = k1(body, O)
        launches.append(("k1_xform_kernel", g1, 256, OPT.get('k1lds', 16384), 128))
        launches += kernels2.emit(body, O, OPT)
    only = OPT.get('only', 0)
    a.raw(HEADER.rstrip("\n"))
    for (n, g, b, lds, v) in launches:
        a.raw(f"; @launch kernel={n} grid=({g},1,1) block=({b},1,1) lds={lds}")
    a.raw('.amdgcn_target "amdgcn-amd-amdhsa--gfx950"')
    a.raw(".text")
    for (n, g, b, lds, v) in launches:
        a.raw(f".globl {n}")
    body.lab("TEXT_END")
    txt = a.text() + body.text()
    d = A()
    d.raw('.section .rodata,"a"')
    for (n, g, b, lds, v) in launches:
        descriptor(d, n, v)
    txt += d.text()
    open(out, "w").write(txt)
    print("wrote", out, len(txt), "bytes;", {k: hex(v) for k, v in O.items()})

if __name__ == "__main__":
    main()
```

```python
from gen import *
import gen
from kernels3 import BOFF2, SB2, NBUF2, SYNC

PCNT = SYNC + 32
ISSUED = SYNC + 16
MIRROR = SYNC + 64
ONES = MIRROR + 32
DUMMY = MIRROR + 64
PBAR = DUMMY + 64
LDS12 = PBAR + 32
TABX = 0
TABW = 16384
SPIN = 16384

def k12(a, O, OPT):
    global TABX, TABW
    WSTR = O['WSTR']
    if OPT.get('kpre'):
        TABX = 3 * SB2
        TABW = TABX + 16384
    a.raw(".p2align 8")
    a.raw(".type k12_fused_kernel,@function")
    a.lab("k12_fused_kernel")
    a("s_cmp_ge_u32 s2, 256")
    a("s_cbranch_scc1 K12_END")
    a("s_load_dwordx4 s[52:55], s[0:1], 0")
    a("s_load_dwordx4 s[56:59], s[0:1], 40")
    code_prefetch(a, "k12_fused_kernel", "K12", 0, 8, 8)
    if OPT.get('stamp'):
        a("s_memtime s[80:81]")
        a("s_memrealtime s[82:83]")
    a("v_lshrrev_b32 v1, 6, v0")
    a("v_and_b32 v2, 63, v0")
    a("v_readfirstlane_b32 s3, v1")
    a("s_waitcnt lgkmcnt(0)")
    if OPT.get('kpre'):
        a("s_cmp_lt_u32 s3, 4")
        a("s_cbranch_scc1 K12_CONS")
    producer(a, O, OPT)
    a.lab("K12_CONS")
    consumer(a, O, OPT)
    a.lab("K12_END")
    a("s_endpgm")
    return ("k12_fused_kernel", 256, 512, LDS12, 256)

def PLF(OPT):
    return {0: "", 1: " sc1", 2: " nt", 3: " sc1 nt", 4: " sc0 sc1"}[OPT.get('plf', 0)]

def table_params(a, vRho, sRb, vA, vRi, tmp, st=36):
    a(f"v_and_b32 v{vA}, 3, v{vRho}")
    a(f"v_lshlrev_b32 v{vA}, 2, v{vA}")
    a(f"v_lshrrev_b32 v{tmp}, 3, v{vRho}")
    a(f"v_lshl_add_u32 v{vA}, v{tmp}, 1, v{vA}")
    a(f"s_lshl_b32 s{st}, s{sRb}, 4")
    a(f"s_add_u32 s{st}, s{st}, 1")
    a(f"v_add_u32 v{vA}, s{st}, v{vA}")
    a(f"v_bfe_u32 v{vRi}, v{vRho}, 2, 1")

def lds_init(a, sw, vLane16, z):
    for k in range(4): a(f"v_mov_b32 v{z+k}, 0")
    a(f"s_mul_i32 s28, s{sw}, {SB2}")
    if gen.OPT.get('b21'):
        a(f"s_add_u32 s28, s28, {174*128}")
        a(f"v_add_u32 v{z+4}, s28, v{vLane16}")
        a("s_mov_b64 exec, 0xffff")
        a(f"ds_write_b128 v{z+4}, v[{z}:{z+3}]")
        a("s_mov_b64 exec, -1")
    else:
        a(f"s_add_u32 s28, s28, {167*128}")
        a(f"v_add_u32 v{z+4}, s28, v{vLane16}")
        a(f"ds_write_b128 v{z+4}, v[{z}:{z+3}]")
        a("s_mov_b64 exec, 0xff")
        a(f"ds_write_b128 v{z+4}, v[{z}:{z+3}] offset:1024")
        a("s_mov_b64 exec, -1")
    for base, sh, wide in ((SYNC, 2, False), (PCNT, 3, True), (MIRROR, 3, True), (PBAR, 3, True)):
        a(f"s_lshl_b32 s28, s{sw}, {sh}")
        a(f"s_add_u32 s28, s28, {base}")
        a(f"v_mov_b32 v{z+4}, s28")
        a(f"ds_write_b64 v{z+4}, v[{z}:{z+1}]" if wide else f"ds_write_b32 v{z+4}, v{z}")
    a(f"v_mov_b32 v{z+4}, {ISSUED}")
    a(f"ds_write_b32 v{z+4}, v{z}")
    a(f"v_mov_b32 v{z+4}, {ONES}")
    a(f"v_mov_b32 v{z+5}, 1")
    a(f"ds_write_b32 v{z+4}, v{z+5}")

def consumer(a, O, OPT):
    WSTR = O['WSTR']
    AF, BP, BQ, NW, ACC = 8, 40, 56, 72, 80
    vT, vL, vAr, vAi, vB, vPA, vWA = 0, 1, 2, 3, 4, 5, 7
    sc = " sc1" if OPT.get('dmasc1', 1) else ""
    a("s_and_b32 s6, s2, 7")
    a("s_lshl_b32 s6, s6, 2")
    a("s_lshr_b32 s7, s2, 6")
    a("s_add_u32 s6, s6, s7")
    a("s_mov_b32 s51, s6")
    a("s_mov_b32 s27, s6")
    a("s_lshr_b32 s7, s2, 3")
    a("s_and_b32 s7, s7, 7")
    a("s_lshr_b32 s20, s7, 2")
    a("s_and_b32 s21, s7, 3")
    a("s_lshl_b32 s22, s6, 1")
    a("s_add_u32 s22, s22, s20")
    a("s_lshl_b32 s23, s6, 2")
    a("s_add_u32 s23, s23, s21")
    a(f"s_mul_i32 s24, s22, {XFB}")
    a(f"s_mul_i32 s25, s23, {WSTR}")
    a(f"s_add_u32 s25, s25, {O['WT']}")
    a(f"s_mul_i32 s26, s22, {YFB}")
    a(f"s_add_u32 s26, s26, {O['YT']}")
    if O['XT']:
        a(f"s_add_u32 s24, s24, {O['XT']}")
    srd(a, 8, 58, "s24", XFB)
    srd(a, 12, 58, "s25", 524288)
    srd(a, 16, 58, "s26", YFB)
    if OPT.get('kpre'):
        a(f"s_add_u32 s4, s58, {O['SY'] + 16384}")
        a("s_addc_u32 s5, s59, 0")
    else:
        a("s_add_u32 s4, s56, 128")
        a("s_addc_u32 s5, s57, 0")
    a("s_and_b32 s5, s5, 0xffff")
    a("s_cmp_eq_u32 s3, 0")
    a("s_cselect_b32 s6, 128, 0")
    a("s_mov_b32 s7, 0x00020000")
    a(f"s_mov_b32 s46, {MIRROR}")
    a(f"s_cselect_b32 s46, s46, {DUMMY}")
    a(f"s_mov_b32 s47, {MIRROR}")
    a(f"s_cselect_b32 s47, s47, {ONES}")
    a("s_cselect_b32 s45, 4, 0")
    a("s_mov_b32 s50, s45")
    KP = OPT.get('kpre', 0)
    if not KP:
        a(f"v_lshrrev_b32 v2, 4, v254")
    a("v_and_b32 v8, 15, v2")
    a("v_lshrrev_b32 v9, 4, v2")
    a(f"v_lshlrev_b32 v{vL}, 4, v2")
    a("s_mul_i32 s30, s3, 5120")
    a("s_mov_b32 s36, s30")
    a("s_lshl_b32 s31, s3, 12")
    a(f"s_add_u32 s37, s31, {BOFF2}")
    B21 = OPT.get('b21', 0)
    if B21:
        a("s_lshr_b32 s28, s3, 1")
        a("s_and_b32 s29, s3, 1")
        a("s_lshl_b32 s33, s29, 9")
        a("s_add_u32 s33, s33, 20480")
        a("s_mul_i32 s38, s28, 896")
        a("s_add_u32 s38, s38, s33")
        a("s_lshl_b32 s34, s6x, 1".replace("s6x", "s51"))
        a("s_add_u32 s34, s34, s28")
        a(f"s_mul_i32 s34, s34, {XFB}")
        if O['XT']: a(f"s_add_u32 s34, s34, {O['XT']}")
        srd(a, 64, 58, "s34", XFB)
        a("s_mov_b32 s44, 0xffffff")
        a("s_cmp_eq_u32 s29, 0")
        a("s_cselect_b32 s44, -1, s44")
        a("s_mov_b32 s45, 0")
    else:
      a("s_lshl_b32 s33, s3, 8")
      a("s_add_u32 s33, s33, 20480")
      a("s_mov_b32 s38, s33")
      a("s_mov_b32 s44, 0xffff")
    if not B21:
      a("s_cmp_eq_u32 s3, 3")
      a("s_cselect_b32 s44, 0xff, s44")
      a("s_mov_b32 s45, 0")
    def dma_groups(sbuf):
        g = []
        g.append([f"s_add_u32 m0, s{sbuf}, s36", "s_nop 0", f"buffer_load_dwordx4 v{vL}, s[8:11], s30 offen{sc} lds"])
        for k in range(1, 4):
            g.append([f"buffer_load_dwordx4 v{vL}, s[8:11], s30 offen offset:{1024*k}{sc} lds"])
        g.append(["s_add_u32 m0, m0, 4096", "s_add_u32 s34, s30, 4096", f"buffer_load_dwordx4 v{vL}, s[8:11], s34 offen{sc} lds"])
        g.append([f"s_add_u32 m0, s{sbuf}, s37", f"s_add_u32 s30, s30, {XBLK}", f"buffer_load_dwordx4 v{vL}, s[12:15], s31 offen{sc} lds"])
        for k in range(1, 4):
            g.append([f"buffer_load_dwordx4 v{vL}, s[12:15], s31 offen offset:{1024*k}{sc} lds"])
        g.append([f"s_add_u32 m0, s{sbuf}, s38", "s_mov_b64 exec, s[44:45]",
                  f"buffer_load_dwordx4 v{vL}, {'s[64:67]' if B21 else 's[8:11]'}, s33 offen{sc} lds", "s_mov_b64 exec, -1",
                  "s_add_u32 s31, s31, 16384", f"s_add_u32 s33, s33, {XBLK}"])
        return g
    def mirror_dma():
        return ["s_mov_b32 m0, s46", "s_mov_b64 exec, 0xff", f"buffer_load_dword v{vL}, s[4:7], 0 offen sc1 lds", "s_mov_b64 exec, -1"]
    a("v_lshrrev_b32 v10, 1, v8")
    a("v_xor_b32 v10, v10, v9")
    a("v_lshlrev_b32 v10, 4, v10")
    a(f"v_lshl_add_u32 v{vAr}, v8, 7, v10")
    a(f"v_xor_b32 v{vAi}, 64, v{vAr}")
    a("v_lshrrev_b32 v10, 2, v8")
    a("v_lshl_add_u32 v11, v9, 3, v10")
    a("v_lshlrev_b32 v11, 9, v11")
    a("v_and_b32 v12, 1, v9")
    a("v_lshl_or_b32 v10, v12, 2, v10")
    a("s_lshl_b32 s28, s3, 1")
    a("v_xor_b32 v10, s28, v10")
    a("v_lshl_add_u32 v11, v10, 5, v11")
    a("v_and_b32 v10, 3, v8")
    a("v_lshl_add_u32 v11, v10, 3, v11")
    a(f"v_add_u32 v{vB}, {BOFF2}, v11")
    if B21:
        a("s_lshl_b32 s28, s20, 5")
        a(f"v_xor_b32 v{vB}, s28, v{vB}")
    a("v_and_b32 v10, 3, v8")
    a("v_lshlrev_b32 v10, 2, v10")
    a(f"v_add_u32 v{vPA}, {SYNC}, v10")
    a("s_lshl_b32 s28, s3, 2")
    a(f"s_add_u32 s28, s28, {SYNC}")
    a(f"v_mov_b32 v{vWA}, s28")
    a("s_mov_b32 s35, 0x80008000")

    slow = []
    nlab = [0]
    def flag_wait_loop(lab, saddr, back):
        r = [f"{lab}:", f"s_mov_b32 s61, {SPIN}", "s_add_u32 s63, s63, 1", f"{lab}_L:"] + mirror_dma() + ["s_waitcnt vmcnt(0)",
             f"v_mov_b32 v{vT}, s{saddr}", f"ds_read_b32 v{vT}, v{vT}", "s_waitcnt lgkmcnt(0)",
             f"v_cmp_eq_u32 vcc, 0, v{vT}", "s_sub_u32 s61, s61, 1", "s_cmp_eq_u32 s61, 0",
             f"s_cbranch_scc1 {lab}_X", f"s_cbranch_vccz {lab}_X", f"s_sleep {OPT.get('fsleep', 2)}", f"s_branch {lab}_L", f"{lab}_X:"]
        if back: r.append(f"s_branch {back}")
        return r
    def emit(ins):
        if ins.endswith(":"): a.lab(ins[:-1])
        else: a(ins)
    def poll_slow(vP, sv=40):
        n = nlab[0]; nlab[0] += 1
        slow.extend([f"K12_S{n}:", f"s_mov_b32 s61, {SPIN}", "s_add_u32 s62, s62, 1", f"K12_S{n}_L:", f"ds_read_b32 v{vP}, v{vPA}", "s_waitcnt lgkmcnt(0)",
                     f"v_cmp_gt_u32 vcc, s{sv}, v{vP}", "s_sub_u32 s61, s61, 1", "s_cmp_eq_u32 s61, 0", f"s_cbranch_scc1 K12_Q{n}",
                     f"s_cbranch_vccz K12_Q{n}"] + ([f"s_sleep {OPT['lsleep']}"] if OPT.get('lsleep') else []) + [f"s_branch K12_S{n}_L"])
        return n
    a("s_mov_b32 s62, 0"); a("s_mov_b32 s63, 0")
    if OPT.get('noncons'):
        a("s_endpgm")
    if KP:
        pre_prologue = True
    else:
      for r in range(176):
        a(f"v_mov_b32 v{ACC+r}, 0")
      for ins in flag_wait_loop("K12_W0", 47, None): emit(ins)
    if not KP:
        a("s_mov_b32 s40, 1")
        a(f"v_mov_b32 v{vT}, s40")
        a(f"ds_write_b32 v{vWA}, v{vT}")
        n0 = poll_slow(BQ)
        a(f"s_branch K12_S{n0}")
        a.lab(f"K12_Q{n0}")
    if OPT.get('stamp'):
        a("s_memtime s[84:85]")
        a("s_memrealtime s[86:87]")
    a("s_mov_b32 s39, 0")
    for st in range(3):
        for grp in dma_groups(39):
            for ins in grp: a(ins)
        a(f"s_add_u32 s39, s39, {SB2}")
    for ins in mirror_dma(): a(ins)
    if KP:
        a(f"v_lshrrev_b32 v9, 4, v{vL}"); a("v_and_b32 v8, 15, v9"); a("v_lshrrev_b32 v9, 4, v9")
        table_params(a, 8, 3, 10, 11, 12, st=28)
        a("v_and_b32 v13, 1, v9")
        a("v_lshlrev_b32 v13, 3, v13")
        a("v_mul_u32_u24 v14, 96, v11")
        a("v_mad_u32_u24 v15, v10, v13, v14")
        trig(a, 10, 15, 16, 24, 28, 32)
        a("v_cmp_lt_u32 vcc, 1, v9")
        a("s_lshl_b32 s28, s3, 10")
        a(f"s_add_u32 s28, s28, {TABW}")
        a(f"v_add_u32 v14, s28, v{vL}")
        for q in range(4):
            a(f"v_cndmask_b32 v{24+q}, v{24+q}, v{28+q}, vcc")
        a("ds_write_b128 v14, v[24:27]")
        lds_init(a, 3, vL, 12)
        a("s_waitcnt lgkmcnt(0)")
        a("s_barrier")
        for r in range(176):
            a(f"v_mov_b32 v{ACC+r}, 0")
        a("s_barrier")

    def a_reads(rb):
        s = AF + 8 * (rb % 4)
        return [f"ds_read_b128 v[{s}:{s+3}], v{vAr} offset:{rb*2048}",
                f"ds_read_b128 v[{s+4}:{s+7}], v{vAi} offset:{rb*2048}"]
    def b_reads(B):
        r = []
        for cb in range(2):
            for ri in range(2):
                d = B + 8 * cb + 4 * ri
                for t in range(2):
                    r.append(f"ds_read_b64_tr_b16 v[{d+2*t}:{d+2*t+1}], v{vB} offset:{ri*256+t*2048}")
            r.append(f"v_xor_b32 v{vB}, 32, v{vB}")
        return r
    def b_xor(B, cb):
        return [f"v_xor_b32 v{NW+4*cb+q}, s35, v{B+8*cb+4+q}" for q in range(4)]
    def mfmas(rb, B):
        s = AF + 8 * (rb % 4)
        Ar, Ai = s, s + 4
        def acc(cb, ri): return ACC + ((rb * 2 + cb) * 2 + ri) * 4
        def m(d, x, y): return f"v_mfma_f32_16x16x32_bf16 v[{d}:{d+3}], v[{x}:{x+3}], v[{y}:{y+3}], v[{d}:{d+3}]"
        Wr = lambda cb: B + 8 * cb
        Wi = lambda cb: B + 8 * cb + 4
        nWi = lambda cb: NW + 4 * cb
        if B21 and rb == 10:
            return [m(acc(0,0), Ar, Wr(0)), m(acc(0,1), Ar, Wi(0)), m(acc(0,0), Ai, nWi(0)), m(acc(0,1), Ai, Wr(0))]
        return [m(acc(0,0), Ar, Wr(0)), m(acc(0,1), Ar, Wi(0)), m(acc(1,0), Ar, Wr(1)), m(acc(1,1), Ar, Wi(1)),
                m(acc(0,0), Ai, nWi(0)), m(acc(0,1), Ai, Wr(0)), m(acc(1,0), Ai, nWi(1)), m(acc(1,1), Ai, Wr(1))]
    a("s_mov_b32 s40, 2")
    a(f"v_mov_b32 v{vT}, s40")
    a("s_waitcnt vmcnt(21)")
    a(f"ds_write_b32 v{vWA}, v{vT}")
    n = poll_slow(BQ)
    a(f"s_branch K12_S{n}")
    a.lab(f"K12_Q{n}")
    if OPT.get('stamp'):
        a("s_memtime s[88:89]")
        a("s_memrealtime s[90:91]")
    for ins in b_reads(BP): a(ins)
    for rb in (0, 1, 3):
        for ins in a_reads(rb): a(ins)
    QD = 12 if B21 else 4
    a(f"ds_read_b32 v{BQ+QD}, v{vPA}")
    a("s_waitcnt lgkmcnt(7)")
    for cb in range(2):
        for ins in b_xor(BP, cb): a(ins)
    a("s_mov_b32 s41, 0")
    a(f"s_mov_b32 s42, {SB2}")
    a("s_mov_b32 s39, 0")
    a(f"s_mov_b32 s29, {3*SB2}")
    def emit_stage(half, last=False):
        nslow = len(slow)
        Bc, Bn = (BP, BQ) if half == 0 else (BQ, BP)
        side = {k: [] for k in range(88)}
        lds_issue = {}
        def put(k, ins, tag=None):
            side[k].append(ins)
            if tag: lds_issue.setdefault(k, []).append(tag)
        def put_a(k, rb, tag):
            r = a_reads(rb)
            put(k, r[0], tag); put(k + 1, r[1], tag)
        put_a(0, 2, "A2")
        for rb in range(4, 11):
            put_a(8 * (rb - 3), rb, f"A{rb}")
        P = OPT.get('parr', 58)
        K1 = OPT.get('parr1', 44)
        put(2, "s_waitcnt lgkmcnt(2)")
        put(2, f"v_cmp_gt_u32 vcc, s40, v{Bn+QD}")
        n2 = poll_slow(Bn + QD, 40)
        put(3, f"s_cbranch_vccnz K12_S{n2}"); put(3, f"K12_Q{n2}:")
        put(K1 - 1, "s_add_u32 s40, s40, 1"); put(K1 - 1, "s_mov_b32 s51, s40")
        put(K1 - 1, f"v_mov_b32 v{vT}, s40") if half == 1 or True else None
        nd = sum(1 for d_ in [4, 10, 14, 20, 26, 30, 36, 42, 46, 52] if d_ < K1)
        if not OPT.get('novmw'): put(K1, f"s_waitcnt vmcnt({11 + nd})")
        put(K1, f"ds_write_b32 v{vWA}, v{vT}", "W")
        put(P, "s_sub_u32 s43, s42, s41"); put(P, "s_add_u32 s40, s40, 1")
        put(P, f"v_add_u32 v{vAr}, s43, v{vAr}")
        put(P + 1, f"v_add_u32 v{vAi}, s43, v{vAi}"); put(P + 1, f"v_add_u32 v{vB}, s43, v{vB}")
        put(P + 1, f"v_mov_b32 v{vT}, s40")
        put(P + 2, f"ds_write_b32 v{vWA}, v{vT}", "W")
        pd = P + OPT.get('pdly', 5)
        put(pd, f"ds_read_b32 v{Bn}, v{vPA}", "P")
        if half == 0:
            put(2, "s_add_u32 s49, s39, 2"); put(2, "s_lshr_b32 s49, s49, 1")
            put(3, "s_mul_i32 s48, s49, s50"); put(3, "s_add_u32 s48, s48, s47")
            put(5, f"s_cmp_lt_u32 s49, {8 if not OPT.get('noprod') else 0}"); put(5, f"s_cselect_b32 s48, s48, {ONES}")
            if KP > 1:
                put(6, f"s_cmp_ge_u32 s49, {KP}"); put(6, f"s_cselect_b32 s48, s48, {ONES}")
            put(P - 9, f"v_mov_b32 v{vT}, s48")
            put(P - 8, f"ds_read_b32 v{vT}, v{vT}", "M")
            put(P - 3, "s_waitcnt lgkmcnt(0)")
            put(P - 3, f"v_cmp_eq_u32 vcc, 0, v{vT}")
            m = nlab[0]; nlab[0] += 1
            put(P - 1, f"s_cbranch_vccnz K12_F{m}"); put(P - 1, f"K12_G{m}:")
            slow.extend(flag_wait_loop(f"K12_F{m}", 48, f"K12_G{m}"))
        C = OPT.get('pchk', 69)
        put(C - 2, "s_waitcnt lgkmcnt(0)")
        put(C - 2, f"v_cmp_gt_u32 vcc, s51, v{Bn}")
        n = poll_slow(Bn, 51)
        put(C, f"s_cbranch_vccnz K12_S{n}"); put(C, f"K12_Q{n}:")
        br = b_reads(Bn)
        for i_, ins in enumerate(br): put(C + 1 + i_ if C + 1 + i_ < 78 else 77, ins, "B" if ins.startswith("ds_") else None)
        if B21:
            put_a(72, 0, "N0"); put_a(74, 3, "N3"); put_a(80, 1, "N1")
            put(76, f"ds_read_b32 v{Bc+QD}, v{vPA}", "Q")
        else:
            put_a(78, 0, "N0"); put_a(80, 1, "N1"); put_a(82, 3, "N3")
            put(83, f"ds_read_b32 v{Bc+4}, v{vPA}", "Q")
        dl = dma_groups(29)
        dpos = [4, 10, 14, 20, 26, 30, 36, 42, 46, 52]
        for i_, grp in enumerate(dl):
            for ins in grp:
                if OPT.get('k2nodma') and ins.startswith("buffer_load"): continue
                put(dpos[i_], ins)
        if half == 1:
            for ins in mirror_dma(): put(54, ins)
        if B21:
            xr0, xr1 = b_xor(Bc, 0), b_xor(Bc, 1)
            for q in range(4): put(q // 2, xr0[q]); put(2 + q // 2, xr1[q])
            for ins in ["s_mov_b32 s29, s41", "s_mov_b32 s41, s42", f"s_add_u32 s42, s42, {SB2}"]: put(82, ins)
            for ins in [f"s_cmp_eq_u32 s42, {NBUF2*SB2}", "s_cselect_b32 s42, 0, s42"]: put(83, ins)
            q = ["A0"] + ["A1"] * 2
        else:
            xr0, xr1 = b_xor(Bn, 0), b_xor(Bn, 1)
            put(84, "s_waitcnt lgkmcnt(7)")
            for q in range(4): put(84 + q // 2, xr0[q]); put(86 + q // 2, xr1[q])
            for ins in ["s_mov_b32 s29, s41", "s_mov_b32 s41, s42", f"s_add_u32 s42, s42, {SB2}"]: put(83, ins)
            for ins in [f"s_cmp_eq_u32 s42, {NBUF2*SB2}", "s_cselect_b32 s42, 0, s42"]: put(85, ins)
            q = ["A0"] * 2 + ["A1"] * 2 + ["A3"] * 2 + ["Q"]
        pre = {}
        for k in range(88):
            if k % 8 == 0:
                need = f"A{k // 8}"
                if need in q:
                    idx = max(i_ for i_, x in enumerate(q) if x == need)
                    pre[k] = len(q) - 1 - idx
                    q = q[idx + 1:]
            q += lds_issue.get(k, [])
            if k == 2: q = q[-2:]
            if k == C - 2 or (half == 0 and k == P - 3): q = []
        if last:
            del slow[nslow:]
            side = {k: [x for x in side[k] if (x.startswith("ds_read_b128") and k < 58) or (B21 and k < 4 and x.startswith("v_xor_b32") and "s35" in x)] for k in range(88)}
            q = (["A0"] + ["A1"] * 2) if B21 else (["A0"] * 2 + ["A1"] * 2 + ["A3"] * 2 + ["Q"])
            pre = {}
            for k in range(88):
                if k % 8 == 0:
                    need = f"A{k // 8}"
                    if need in q:
                        idx = max(i_ for i_, x in enumerate(q) if x == need)
                        pre[k] = len(q) - 1 - idx
                        q = q[idx + 1:]
                q += [t for t in lds_issue.get(k, []) if t.startswith("A")]
            st_setup = [f"v_lshrrev_b32 v{vT}, 4, v{vL}", f"v_and_b32 v{vPA}, 15, v{vT}", f"v_lshrrev_b32 v{vT}, 4, v{vT}",
                        "s_lshl_b32 s28, s21, 7", "s_lshl_b32 s29, s3, 5", "s_add_u32 s28, s28, s29",
                        f"v_add_u32 v{vPA}, s28, v{vPA}", f"v_lshlrev_b32 v{vPA}, 2, v{vPA}", f"v_lshl_add_u32 v{vPA}, v{vT}, 13, v{vPA}"]
            if B21:
                st_setup += ["s_lshl_b32 s28, s20, 6", f"v_xor_b32 v{vPA}, s28, v{vPA}", f"v_xor_b32 v{vWA}, 64, v{vPA}"]
            for i_, ins in enumerate(st_setup): side[4 + i_ // 2].append(ins)
            tmps = [Bn + ((x + 8) & 15) for x in range(16)]
            n_ = 0
            for rb in range(10):
                k0 = 8 * (rb + 1) + 3
                seq = []
                for i in range(4):
                    for cb in range(2):
                        t = tmps[n_ % 16]; n_ += 1
                        yr = ACC + ((rb * 2 + cb) * 2 + 0) * 4 + i
                        yi = ACC + ((rb * 2 + cb) * 2 + 1) * 4 + i
                        so = (16 * rb + (i & 2)) * 2048
                        pre_ = [f"s_mov_b32 s38, {so}"] if (cb == 0 and i % 2 == 0) else []
                        seq.append(pre_ + [f"v_cvt_pk_bf16_f32 v{t}, v{yr}, v{yi}",
                                           (f"buffer_store_dword v{t}, v{vWA if cb else vPA}, s[16:19], s38 offen offset:{(i&1)*2048}{NTF('ntys')}" if B21 else
                                            f"buffer_store_dword v{t}, v{vPA}, s[16:19], s38 offen offset:{(i&1)*2048+cb*64}{NTF('ntys')}")])
                for e_, grp in enumerate(seq):
                    kk = min(k0 + e_ * 3 // 4, 83 if B21 else 87)
                    side[kk] += grp
        k = 0
        for rb in range(11):
            for ins in mfmas(rb, Bc):
                if k in pre:
                    a(f"s_waitcnt lgkmcnt({min(pre[k], 15)})")
                emit(ins)
                for s_ in side[k]: emit(s_)
                k += 1
    ovl = OPT.get('epiovl', 1)
    a.lab("K12_LOOP")
    emit_stage(0); emit_stage(1)
    a("s_add_u32 s39, s39, 1")
    a(f"s_cmp_lt_u32 s39, {15 if ovl else 16}")
    a("s_cbranch_scc1 K12_LOOP")
    if ovl:
        emit_stage(0); emit_stage(1, last=True)
    if OPT.get('stamp'):
        a("s_memtime s[92:93]")
        a("s_memrealtime s[94:95]")
    if not ovl:
        a(f"v_lshrrev_b32 v8, 4, v{vL}")
        a("v_and_b32 v9, 15, v8")
        a("v_lshrrev_b32 v8, 4, v8")
        a("s_lshl_b32 s28, s21, 7")
        a("s_lshl_b32 s29, s3, 5")
        a("s_add_u32 s28, s28, s29")
        a("v_add_u32 v9, s28, v9")
        a("v_lshlrev_b32 v9, 2, v9")
        a(f"v_lshl_add_u32 v{vPA}, v8, 13, v9")
    a("s_nop 7")
    n = 0
    if B21:
        assert ovl
        a("s_lshl_b32 s34, s27, 1")
        a(f"s_mul_i32 s34, s34, {YFB}")
        a(f"s_add_u32 s34, s34, {O['YT']}")
        srd(a, 64, 58, "s34", 2 * YFB)
        a(f"v_lshrrev_b32 v8, 8, v{vL}")
        a(f"v_lshlrev_b32 v9, 13, v8")
        a(f"v_sub_u32 v9, v{vPA}, v9")
        a("v_lshlrev_b32 v8, 2, v8")
        a("v_add_u32 v8, 160, v8")
        for i in range(4):
            a(f"v_add_u32 v10, {i}, v8")
            a("v_add_u32 v11, 160, v10")
            a("v_cmp_gt_u32 vcc, 167, v10")
            a("s_nop 1")
            a("v_cndmask_b32 v11, v11, v10, vcc")
            a("v_cmp_gt_u32 vcc, 174, v10")
            a("v_mov_b32 v12, 0x7ffff")
            a("s_nop 0")
            a("v_cndmask_b32 v11, v12, v11, vcc")
            a(f"v_lshl_add_u32 v{16+i}, v11, 11, v9")
        for i in range(4):
            yr = ACC + ((10 * 2 + 0) * 2 + 0) * 4 + i
            yi = ACC + ((10 * 2 + 0) * 2 + 1) * 4 + i
            a(f"v_cvt_pk_bf16_f32 v{20+i}, v{yr}, v{yi}")
            a(f"buffer_store_dword v{20+i}, v{16+i}, s[64:67], 0 offen{NTF('ntys')}")
    else:
      for rb in range(10 if ovl else 0, 11):
        for i in range(4):
            if i % 2 == 0:
                a(f"s_mov_b32 s38, {(16*rb+i)*2048}")
            for cb in range(2):
                t = 8 + (n % 8); n += 1
                yr = ACC + ((rb * 2 + cb) * 2 + 0) * 4 + i
                yi = ACC + ((rb * 2 + cb) * 2 + 1) * 4 + i
                a(f"v_cvt_pk_bf16_f32 v{t}, v{yr}, v{yi}")
                a(f"buffer_store_dword v{t}, v{vPA}, s[16:19], s38 offen offset:{(i&1)*2048+cb*64}{NTF('ntys')}")
    if OPT.get('stamp'):
        a("s_waitcnt vmcnt(0)")
        a("s_memtime s[76:77]")
        a("s_memrealtime s[78:79]")
        a("s_waitcnt lgkmcnt(0)")
        srd(a, 64, 58, O['ST'] + (1 << 20), 1 << 20)
        order = [62, 63, 82, 83] + ([92, 93] if OPT.get('kpre') else [80, 81]) + [94, 95, 86, 87, 78, 79, 88, 89, 90, 91]
        for k, sreg in enumerate(order):
            a(f"v_mov_b32 v{16+k}, s{sreg}")
        a("s_lshl_b32 s38, s2, 3")
        a("s_add_u32 s38, s38, s3")
        a("s_lshl_b32 s38, s38, 6")
        a("v_mov_b32 v40, 0")
        a("s_mov_b64 exec, 1")
        for k in range(4):
            a(f"buffer_store_dwordx4 v[{16+4*k}:{19+4*k}], v40, s[64:67], s38 offen offset:{16*k}")
    a("s_endpgm")
    for ins in slow: emit(ins)

def producer(a, O, OPT):
    WSTR = O['WSTR']
    XR, OPS, WR, ACCW, FH, FL, FW, TMP = 0, 64, 96, 128, 160, 192, 224, 240
    vXL, vXS, vWL, vWS0, vXS0, vWS, vLA, vT = 248, 249, 250, 251, 252, 253, 254, 255
    st = {0: "", 1: " sc1", 2: " sc0 sc1", 3: " sc1 nt"}[OPT.get('stsc1', 1)]
    lo = OPT.get('xlo', 1)
    a("v_and_b32 v64, 15, v2")
    a("v_lshrrev_b32 v65, 4, v2")
    a(f"v_lshlrev_b32 v{vLA}, 4, v2")
    a("s_and_b32 s44, s3, 3")
    a("s_and_b32 s20, s44, 1")
    a("s_lshr_b32 s21, s44, 1")
    a("s_lshl_b32 s22, s2, 1")
    a("s_add_u32 s22, s22, s21")
    a("s_and_b32 s23, s22, 3")
    a("s_lshr_b32 s22, s22, 2")
    a("s_and_b32 s24, s2, 7")
    a("s_lshl_b32 s24, s24, 5")
    a("s_lshr_b32 s25, s2, 3")
    a("s_add_u32 s24, s24, s25")
    a(f"s_cmp_ge_u32 s24, {NT}")
    a("s_cselect_b32 s25, 1, 0")
    a(f"s_mul_i32 s26, s25, {NT}")
    a("s_sub_u32 s24, s24, s26")
    a("s_cmp_eq_u32 s21, 0")
    a("s_cselect_b32 s25, s25, 1")
    a("s_mul_i32 s26, s25, 16384000")
    srd(a, 4, 52, "s26", 16384000)
    srd(a, 8, 54, None, 31 * 524288)
    srd(a, 12, 58, O['XT'] if O['XT'] else None, XT_SIZE)
    srd(a, 16, 58, O['WT'], 128 * WSTR)
    if OPT.get('kpre'):
        srd(a, 60, 58, O['SY'], 32768)
    else:
        a("s_mov_b32 s60, s56"); a("s_and_b32 s61, s57, 0xffff"); a("s_mov_b32 s62, 256"); a("s_mov_b32 s63, 0x00020000")
    a("s_mov_b32 s28, 0x05040100")
    a("s_mov_b32 s29, 0x07060302")
    if OPT.get('stamp'):
        srd(a, 64, 58, O['ST'] + (6 << 20), 1 << 20)
        a("s_lshl_b32 s73, s2, 2")
        a("s_add_u32 s73, s73, s44")
        a("s_lshl_b32 s73, s73, 7")
    a(f"v_lshlrev_b32 v{vXL}, 14, v65")
    a(f"v_lshl_add_u32 v{vXL}, v64, 4, v{vXL}")
    a(f"v_and_b32 v{vWL}, 1, v65")
    a(f"v_lshlrev_b32 v{vWL}, 23, v{vWL}")
    a(f"v_lshl_add_u32 v{vWL}, v64, 4, v{vWL}")
    a("v_lshrrev_b32 v66, 1, v65")
    a(f"s_mov_b32 s26, {2*XFB}")
    a("v_mul_lo_u32 v66, v66, s26")
    a("v_lshrrev_b32 v67, 2, v64")
    a(f"s_mov_b32 s26, {XBLK}")
    a("v_mul_lo_u32 v67, v67, s26")
    a("v_add_u32 v66, v66, v67")
    a(f"v_mov_b32 v{vXS0}, v66")
    a("v_lshrrev_b32 v66, 1, v65")
    a(f"s_mov_b32 s26, {4*WSTR}")
    a("v_mul_lo_u32 v66, v66, s26")
    a("v_and_b32 v67, 1, v65")
    a("v_lshl_add_u32 v66, v67, 8, v66")
    a("v_and_b32 v67, 1, v64")
    a(f"v_lshl_add_u32 v{vWS0}, v67, 4, v66")
    a(f"s_mul_i32 s31, s25, {XFB}")
    a(f"s_mul_i32 s32, s23, {WSTR}")
    a("s_lshl_b32 s33, s23, 8")
    def tile_of(sp):
        a(f"s_mul_i32 s36, s{sp}, 85")
        a("s_add_u32 s36, s36, s2")
        a("s_and_b32 s36, s36, 255")
        a("s_mul_hi_u32 s37, s36, 0x55555556")
        a("s_mul_i32 s38, s37, 3")
        a("s_cmp_eq_u32 s38, s36")
        a("s_cselect_b32 s27, 1, 0")
        a("s_cmp_lt_u32 s37, 78")
        a("s_cselect_b32 s27, s27, 0")
        a(f"s_add_u32 s37, s37, {256 - NT}")
        a("s_cmp_eq_u32 s21, 0")
        a("s_cselect_b32 s30, s24, s37")
        a("s_cselect_b32 s27, 1, s27")
        if OPT.get('wonly'):
            a("s_mov_b32 s27, 0")
    def w_loads(sp):
        a(f"s_lshl_b32 s36, s{sp}, 7")
        a("s_add_u32 s36, s36, s22")
        a("s_lshr_b32 s37, s36, 9")
        a("s_lshl_b32 s37, s37, 19")
        a("s_and_b32 s36, s36, 511")
        a("s_lshl_b32 s36, s36, 10")
        a("s_add_u32 s36, s36, s37")
        a("s_add_u32 s36, s36, s33")
        if OPT.get('pldsame'): a("s_mov_b32 s36, s33")
        if OPT.get('wdedup'): a("s_mov_b64 exec, 0xffffffff")
        for e in range(8 if not OPT.get('pnold') else 0):
            a(f"buffer_load_dwordx4 v[{WR+4*e}:{WR+4*e+3}], v{vWL}, s[8:11], s36 offen{PLF(OPT)}")
            if OPT.get('dspacel'): a(f"s_sleep {OPT['dspacel']}")
            if e < 7: a("s_add_u32 s36, s36, 0x100000")
        if OPT.get('wdedup'): a("s_mov_b64 exec, -1")
    def x_loads(sp):
        a(f"s_lshl_b32 s36, s{sp}, 8")
        a(f"s_mul_i32 s37, s30, {48*2048}")
        a("s_add_u32 s36, s36, s37")
        if OPT.get('pldsame'): a("s_mov_b32 s36, 0")
        for ks in range(2 if not OPT.get('pnold') else 0):
            for e2 in range(4):
                r = XR + 32 * ks + 8 * e2
                a(f"buffer_load_dwordx4 v[{r}:{r+3}], v{vXL}, s[4:7], s36 offen{PLF(OPT)}")
                a(f"buffer_load_dwordx4 v[{r+4}:{r+7}], v{vXL}, s[4:7], s36 offen offset:2048{PLF(OPT)}")
                if OPT.get('dspacel'): a(f"s_sleep {OPT['dspacel']}")
                if not (ks == 1 and e2 == 3):
                    a(f"s_add_u32 s36, s36, {4096 if e2 < 3 else 32*2048 - 3*4096}")
    nsig = [0]
    def signal(sp):
        n = nsig[0]; nsig[0] += 1
        a("s_mov_b32 s34, -1")
        a(f"s_cmp_ge_u32 s{sp}, 8")
        a(f"s_cbranch_scc1 K12_SG{n}")
        if OPT.get('stamp'):
            a("s_memrealtime s[70:71]")
            a("s_waitcnt lgkmcnt(0)")
            a(f"s_lshl_b32 s72, s{sp}, 3")
            a("s_add_u32 s72, s72, s73")
            a("v_mov_b32 v240, s70"); a("v_mov_b32 v241, s71"); a("v_mov_b32 v242, 0")
            a("s_mov_b64 exec, 1")
            a("buffer_store_dwordx2 v[240:241], v242, s[64:67], s72 offen")
            a("s_mov_b64 exec, -1")
        a(f"s_lshl_b32 s36, s{sp}, 2")
        a(f"s_add_u32 s37, s36, {PCNT}")
        a("s_mov_b64 exec, 1")
        a(f"v_mov_b32 v{vT}, s37")
        a(f"v_mov_b32 v{TMP}, 1")
        a(f"ds_add_rtn_u32 v{TMP}, v{vT}, v{TMP}")
        a("s_waitcnt lgkmcnt(0)")
        a(f"v_readfirstlane_b32 s37, v{TMP}")
        a("s_nop 3")
        a("s_cmp_eq_u32 s37, 3")
        a(f"s_cbranch_scc0 K12_SH{n}")
        if OPT.get('wbl2'):
            a("buffer_wbl2 sc1")
            a("s_waitcnt vmcnt(0)")
        if OPT.get('kpre'):
            a("s_lshl_b32 s36, s36, 8")
        a(f"v_mov_b32 v{vT}, 1")
        a(f"v_mov_b32 v{TMP}, s36")
        a(f"buffer_atomic_add v{vT}, v{TMP}, s[60:63], 0 offen sc0 sc1")
        a(f"s_mov_b32 s34, s{sp}")
        a.lab(f"K12_SH{n}")
        a("s_mov_b64 exec, -1")
        a.lab(f"K12_SG{n}")
    def publish():
        n = nsig[0]; nsig[0] += 1
        a("s_cmp_ge_u32 s34, 8")
        a(f"s_cbranch_scc1 K12_PB{n}")
        a(f"v_readfirstlane_b32 s37, v{vT}")
        a("s_nop 3")
        a("s_cmp_eq_u32 s37, 255")
        a(f"s_cbranch_scc0 K12_PB{n}")
        a("s_lshl_b32 s36, s34, 4")
        a(f"s_add_u32 s36, s36, {16384 if OPT.get('kpre') else 128}")
        a("s_mov_b64 exec, 1")
        a(f"v_mov_b32 v{vT}, 1")
        a(f"v_mov_b32 v{TMP}, s36")
        a(f"buffer_store_dword v{vT}, v{TMP}, s[60:63], 0 offen sc1")
        a("s_mov_b64 exec, -1")
        a.lab(f"K12_PB{n}")
    nsub = [0]
    def subgate(rb):
        if not OPT.get('subg', 1) or rb == 0: return
        G = OPT.get('gateg', 17)
        n = nsub[0]; nsub[0] += 1
        a(f"s_cmp_lt_u32 s40, {max(OPT.get('gatep', 3), OPT.get('kpre', 0) + OPT.get('subskip', 1))}")
        a(f"s_cbranch_scc1 K12_UT{n}")
        a("s_lshl_b32 s36, s40, 3")
        a(f"s_sub_i32 s36, s36, {2 * (G - rb * OPT.get('substep', 1)) + 2}")
        a("s_max_i32 s36, s36, 1")
        a(f"s_mov_b32 s37, {SPIN * 8}")
        a.lab(f"K12_UL{n}")
        a(f"v_mov_b32 v{vT}, {SYNC}")
        a(f"ds_read_b32 v{vT}, v{vT}")
        a("s_waitcnt lgkmcnt(0)")
        a(f"v_cmp_gt_u32 vcc, s36, v{vT}")
        a("s_sub_u32 s37, s37, 1")
        a("s_cmp_eq_u32 s37, 0")
        a(f"s_cbranch_scc1 K12_UT{n}")
        a(f"s_cbranch_vccz K12_UT{n}")
        a(f"s_sleep {OPT.get('gsleep', 2)}")
        a(f"s_branch K12_UL{n}")
        a.lab(f"K12_UT{n}")
    def w_compute(sp):
        a(f"s_lshl_b32 s36, s{sp}, 7")
        a("s_add_u32 s36, s36, s22")
        a("s_and_b32 s37, s36, 3")
        a("s_lshr_b32 s38, s36, 1")
        a("s_and_b32 s38, s38, 4")
        a("s_or_b32 s37, s37, s38")
        a(f"v_bfe_u32 v{vWS}, v{vLA}, 5, 3")
        a(f"v_xor_b32 v{vWS}, s37, v{vWS}")
        a(f"v_lshl_add_u32 v{vWS}, v{vWS}, 5, v{vWS0}")
        a("s_lshl_b32 s36, s36, 9")
        a("s_add_u32 s39, s36, s32")
        if OPT.get('plin'):
            a(f"v_mov_b32 v{vWS}, v{vLA}")
            a(f"s_lshl_b32 s39, s{sp}, 10"); a("s_lshl_b32 s36, s2, 2"); a("s_add_u32 s39, s39, s36"); a("s_add_u32 s39, s39, s3"); a("s_lshl_b32 s39, s39, 14"); a("s_and_b32 s39, s39, 0x3ffffff")
        for rb in range(4):
            subgate(rb)
            if OPT.get('dynprio'): a(f"s_setprio {OPT['dynprio']}")
            for i in range(8 if not OPT.get('pnocomp') else 0):
                a(f"v_mfma_f32_16x16x32_bf16 v[{ACCW+4*i}:{ACCW+4*i+3}], v[{FW+4*rb}:{FW+4*rb+3}], v[{OPS+4*i}:{OPS+4*i+3}], 0")
            if OPT.get('dynprio'): a(f"s_setprio {OPT.get('lowprio', 0)}")
            a("s_nop 7")
            for r in range(4):
                t = TMP + 4 * (r & 1)
                for q in range(4 if not OPT.get('pnocomp') else 0):
                    a(f"v_cvt_pk_bf16_f32 v{t+q}, v{ACCW+4*(2*q)+r}, v{ACCW+4*(2*q+1)+r}")
                if not OPT.get('pnost'): a(f"buffer_store_dwordx4 v[{t}:{t+3}], v{vWS}, s[16:19], s39 offen{st}")
                if OPT.get('dspace'): a(f"s_sleep {OPT['dspace']}")
                if not (rb == 3 and r == 3):
                    a(f"s_add_u32 s39, s39, {1024 if OPT.get('plin') else 2*4*WSTR}")
    def x_compute(sp):
        ACCX = XR + 32
        a(f"s_mul_i32 s39, s{sp}, {4*XBLK}")
        a("s_add_u32 s39, s39, s31")
        a("s_lshl_b32 s36, s30, 7")
        a("s_add_u32 s39, s39, s36")
        a(f"v_bfe_u32 v{vXS}, v{vLA}, 4, 2")
        a(f"v_bfe_u32 v{TMP}, v{vLA}, 8, 1")
        a(f"v_lshl_add_u32 v{vXS}, v{TMP}, 2, v{vXS}")
        if OPT.get('b21'):
            a("s_add_u32 s36, s30, 7")
            a("s_cmp_ge_u32 s30, 160")
            a("s_cselect_b32 s36, s36, s30")
            a("s_cmp_eq_u32 s25, 1")
            a("s_cselect_b32 s36, s36, s30")
            a("s_lshr_b32 s36, s36, 1")
        else:
            a("s_lshr_b32 s36, s30, 1")
        a("s_and_b32 s36, s36, 7")
        a(f"v_xor_b32 v{vXS}, s36, v{vXS}")
        a(f"v_lshl_add_u32 v{vXS}, v{vXS}, 4, v{vXS0}")
        if OPT.get('plin'):
            a(f"s_lshl_b32 s39, s{sp}, 9"); a("s_lshl_b32 s36, s2, 1"); a("s_add_u32 s39, s39, s36"); a("s_add_u32 s39, s39, s21"); a("s_lshl_b32 s39, s39, 14"); a("s_and_b32 s39, s39, 0x1ffffff")
        for rb in range(4):
            subgate(rb)
            terms = [(FH + (rb * 2) * 4, OPS), (FH + (rb * 2 + 1) * 4, XR)]
            if lo:
                terms = [terms[0], (FL + (rb * 2) * 4, OPS), terms[1], (FL + (rb * 2 + 1) * 4, XR)]
            if OPT.get('dynprio'): a(f"s_setprio {OPT['dynprio']}")
            for ti, (F, ops) in enumerate(terms if not OPT.get('pnocomp') else []):
                for i in range(8):
                    c = "0" if ti == 0 else f"v[{ACCX+4*i}:{ACCX+4*i+3}]"
                    a(f"v_mfma_f32_16x16x32_bf16 v[{ACCX+4*i}:{ACCX+4*i+3}], v[{F}:{F+3}], v[{ops+4*i}:{ops+4*i+3}], {c}")
            if OPT.get('dynprio'): a(f"s_setprio {OPT.get('lowprio', 0)}")
            a("s_nop 7")
            for r in range(4):
                t = TMP + 4 * (r & 1)
                for q in range(4 if not OPT.get('pnocomp') else 0):
                    a(f"v_cvt_pk_bf16_f32 v{t+q}, v{ACCX+4*(2*q)+r}, v{ACCX+4*(2*q+1)+r}")
                if not OPT.get('pnost'): a(f"buffer_store_dwordx4 v[{t}:{t+3}], v{vLA if OPT.get('plin') else vXS}, s[12:15], s39 offen{st}")
                if OPT.get('dspace'): a(f"s_sleep {OPT['dspace']}")
                if not (rb == 3 and r == 3):
                    a(f"s_add_u32 s39, s39, {1024 if OPT.get('plin') else 2*2*XFB}")
    nst = [0]
    def ustamp(slot):
        if not OPT.get('stamp'): return
        n = nst[0]; nst[0] += 1
        a("s_and_b32 s72, s40, 6")
        a(f"s_cmp_eq_u32 s72, {OPT.get('ustph', 4)}")
        a(f"s_cbranch_scc0 K12_US{n}")
        a(f"s_memrealtime s[{74+0}:{75}]")
        a("s_waitcnt lgkmcnt(0)")
        a(f"s_add_u32 s72, s73, {(8+slot)*8}")
        a("v_mov_b32 v240, s74"); a("v_mov_b32 v241, s75"); a("v_mov_b32 v242, 0")
        a("s_mov_b64 exec, 1")
        a("buffer_store_dwordx2 v[240:241], v242, s[64:67], s72 offen")
        a("s_mov_b64 exec, -1")
        a.lab(f"K12_US{n}")
    def eager_publish():
        n = nsig[0]; nsig[0] += 1
        a("s_cmp_ge_u32 s34, 8")
        a(f"s_cbranch_scc1 K12_EP{n}")
        a("s_waitcnt vmcnt(0)")
        publish()
        a("s_mov_b32 s34, -1")
        a.lab(f"K12_EP{n}")
    def early_signal():
        if not OPT.get('early', 1): return
        n = nsig[0]; nsig[0] += 1
        a(f"s_cmp_eq_u32 s41, {OPT.get('kpre', 0) or 1}")
        a(f"s_cbranch_scc0 K12_ES{n}")
        a("s_waitcnt vmcnt(0)")
        signal(41)
        a("s_waitcnt vmcnt(0)")
        publish()
        a("s_mov_b32 s34, -1")
        a("s_mov_b32 s41, -1")
        a.lab(f"K12_ES{n}")
    ngate = [0]
    def gate():
        G = OPT.get('gateg', 17); GP = OPT.get('gatep', 3)
        n = ngate[0]; ngate[0] += 1
        a("s_lshl_b32 s36, s40, 3")
        a(f"s_sub_i32 s36, s36, {2 * G + 2}")
        a("s_max_i32 s36, s36, 1")
        a(f"s_mov_b32 s38, {SYNC}")
        a(f"s_cmp_eq_u32 s40, {1 if not OPT.get('kpre') else 99}")
        a(f"s_cselect_b32 s36, {4 if OPT.get('ord1', 1) else 0}, s36")
        a(f"s_cselect_b32 s38, {ISSUED}, s38")
        a(f"s_cbranch_scc1 K12_GS{n}")
        a(f"s_cmp_lt_u32 s40, {GP}")
        a(f"s_cbranch_scc1 K12_GT{n}")
        a.lab(f"K12_GS{n}")
        a(f"s_mov_b32 s37, {SPIN * 8}")
        a.lab(f"K12_GL{n}")
        a(f"v_mov_b32 v{TMP}, s38")
        a(f"ds_read_b32 v{TMP}, v{TMP}")
        a("s_waitcnt lgkmcnt(0)")
        a(f"v_cmp_gt_u32 vcc, s36, v{TMP}")
        a("s_sub_u32 s37, s37, 1")
        a("s_cmp_eq_u32 s37, 0")
        a(f"s_cbranch_scc1 K12_GT{n}")
        a(f"s_cbranch_vccz K12_GT{n}")
        a(f"s_sleep {OPT.get('gsleep', 2)}")
        a(f"s_branch K12_GL{n}")
        a.lab(f"K12_GT{n}")
    xs = 1 if OPT.get('stamp') else 0
    ntch = [0]
    def touch_block():
        n_ = ntch[0]; ntch[0] += 1
        a(f"v_lshrrev_b32 v128, 4, v{vLA}")
        a("v_lshlrev_b32 v129, 11, v128")
        a("v_lshrrev_b32 v130, 1, v128")
        a("v_lshlrev_b32 v130, 20, v130")
        a("v_and_b32 v131, 1, v128")
        a("v_lshl_add_u32 v130, v131, 7, v130")
        a("s_mov_b32 s45, s27"); a("s_mov_b32 s46, s30")
        a("s_add_u32 s47, s40, 1")
        a.lab(f"K12_TCH{n_}")
        a("s_xor_b32 s48, s47, s20")
        a("s_and_b32 s48, s48, 1")
        a("s_cmp_eq_u32 s48, 0")
        a(f"s_cbranch_scc1 K12_TCHW{n_}")
        tile_of(47)
        a("s_cmp_eq_u32 s27, 0")
        a(f"s_cbranch_scc1 K12_TCHN{n_}")
        a("s_lshl_b32 s36, s47, 8")
        a(f"s_mul_i32 s37, s30, {48*2048}")
        a("s_add_u32 s36, s36, s37")
        if OPT.get('touch', 1) in (1, 2):
            a("buffer_load_dword v244, v129, s[4:7], s36 offen")
            a("buffer_load_dword v245, v129, s[4:7], s36 offen offset:128")
        a(f"s_branch K12_TCHN{n_}")
        a.lab(f"K12_TCHW{n_}")
        a("s_lshl_b32 s36, s47, 7")
        a("s_add_u32 s36, s36, s22")
        a("s_lshr_b32 s37, s36, 9")
        a("s_lshl_b32 s37, s37, 19")
        a("s_and_b32 s36, s36, 511")
        a("s_lshl_b32 s36, s36, 10")
        a("s_add_u32 s36, s36, s37")
        a("s_add_u32 s36, s36, s33")
        a("s_mov_b64 exec, 0xffffffff")
        if OPT.get('touch', 1) in (1, 3):
            a("buffer_load_dword v246, v130, s[8:11], s36 offen")
        a("s_mov_b64 exec, -1")
        a.lab(f"K12_TCHN{n_}")
        a("s_add_u32 s47, s47, 1")
        a("s_cmp_lt_u32 s47, 8")
        a(f"s_cbranch_scc1 K12_TCH{n_}")
        a("s_mov_b32 s27, s45"); a("s_mov_b32 s30, s46")
    nadv = [0]
    def advance():
        a("s_mov_b32 s41, s40"); a("s_add_u32 s40, s40, 1")
        if OPT.get('kpre') and OPT.get('touch', 1) and OPT.get('tlate') == 99:
            n_ = nadv[0]; nadv[0] += 1
            a(f"s_cmp_eq_u32 s41, {OPT['kpre']}")
            a(f"s_cbranch_scc0 K12_NT{n_}")
            touch_block()
            a.lab(f"K12_NT{n_}")
        early_signal()
    def gate_at(thr_expr_G, tagn):
        n = ngate[0]; ngate[0] += 1
        a("s_lshl_b32 s36, s40, 3")
        a(f"s_sub_i32 s36, s36, {thr_expr_G}")
        a("s_max_i32 s36, s36, 1")
        a(f"s_mov_b32 s37, {SPIN * 8}")
        a.lab(f"K12_GL{n}")
        a(f"v_mov_b32 v{TMP}, {SYNC}")
        a(f"ds_read_b32 v{TMP}, v{TMP}")
        a("s_waitcnt lgkmcnt(0)")
        a(f"v_cmp_gt_u32 vcc, s36, v{TMP}")
        a("s_sub_u32 s37, s37, 1")
        a("s_cmp_eq_u32 s37, 0")
        a(f"s_cbranch_scc1 K12_GT{n}")
        a(f"s_cbranch_vccz K12_GT{n}")
        a(f"s_sleep {OPT.get('gsleep', 2)}")
        a(f"s_branch K12_GL{n}")
        a.lab(f"K12_GT{n}")
        if OPT.get('pbar'):
            a("s_lshl_b32 s36, s40, 2")
            a(f"s_add_u32 s36, s36, {PBAR}")
            a("s_mov_b64 exec, 1")
            a(f"v_mov_b32 v{TMP}, s36")
            a(f"v_mov_b32 v{TMP+1}, 1")
            a(f"ds_add_u32 v{TMP}, v{TMP+1}")
            a("s_mov_b64 exec, -1")
            a(f"s_mov_b32 s37, {SPIN * 8}")
            a.lab(f"K12_BL{n}")
            a(f"v_mov_b32 v{TMP}, s36")
            a(f"ds_read_b32 v{TMP}, v{TMP}")
            a("s_waitcnt lgkmcnt(0)")
            a(f"v_cmp_gt_u32 vcc, 4, v{TMP}")
            a("s_sub_u32 s37, s37, 1")
            a("s_cmp_eq_u32 s37, 0")
            a(f"s_cbranch_scc1 K12_BT{n}")
            a(f"s_cbranch_vccz K12_BT{n}")
            a("s_sleep 1")
            a(f"s_branch K12_BL{n}")
            a.lab(f"K12_BT{n}")
    LG = OPT.get('lgate', 0)
    def w_phase(tag):
        ustamp(0)
        if LG:
            a("s_waitcnt vmcnt(0)")
            signal(41)
            if not OPT.get('defpub'): eager_publish()
            if OPT.get('gfirst'): gate_at(2 * OPT.get('gateg', 13) + 2, tag)
        interleave_perm(a, WR, OPS, 28, 29, OPT.get('pnocomp'))
        if OPT.get('wdedup'):
            for h in range(4):
                for q in range(8): a(f"v_mov_b32 v{ACCW+q}, v{OPS+8*h+q}")
                a("s_nop 0")
                for q in range(8): a(f"v_permlane32_swap_b32 v{OPS+8*h+q}, v{ACCW+q}")
        if LG and not OPT.get('gfirst'): gate_at(2 * OPT.get('gateg', 13) + 2, tag)
        a("s_add_u32 s42, s40, 1")
        tile_of(42)
        a("s_cmp_eq_u32 s27, 0")
        a(f"s_cbranch_scc1 {tag}_N")
        x_loads(42)
        ustamp(1)
        if not LG: a(f"s_waitcnt vmcnt({16 + xs})")
        a(f"s_branch {tag}_M")
        a.lab(f"{tag}_N")
        if not LG: a("s_waitcnt vmcnt(0)")
        a.lab(f"{tag}_M")
        if not LG:
            signal(41)
            eager_publish()
            gate()
        ustamp(2)
        w_compute(40)
        ustamp(3)
        advance()
        a("s_waitcnt vmcnt(16)")
        publish()
    def x_phase(tag):
        ustamp(4)
        if LG:
            a("s_waitcnt vmcnt(0)")
            signal(41)
            if not OPT.get('defpub'): eager_publish()
            if OPT.get('gfirst'): gate_at(2 * OPT.get('gateg', 13) + 2, tag)
        a("s_cmp_eq_u32 s27, 0")
        a(f"s_cbranch_scc1 {tag}_N")
        interleave_perm(a, XR, OPS, 28, 29, OPT.get('pnocomp'))
        interleave_perm(a, XR + 32, XR, 28, 29, OPT.get('pnocomp'))
        a.lab(f"{tag}_N")
        if LG and not OPT.get('gfirst'): gate_at(2 * OPT.get('gateg', 13) + 2, tag)
        a("s_add_u32 s42, s40, 1")
        w_loads(42)
        ustamp(5)
        if not LG:
            a(f"s_waitcnt vmcnt({8 + xs})")
            signal(41)
            eager_publish()
        a("s_cmp_eq_u32 s27, 0")
        a(f"s_cbranch_scc1 {tag}_E")
        if not LG: gate()
        ustamp(6)
        x_compute(40)
        ustamp(7)
        advance()
        a("s_waitcnt vmcnt(16)")
        a(f"s_branch {tag}_F")
        a.lab(f"{tag}_E")
        advance()
        a("s_waitcnt vmcnt(0)")
        a.lab(f"{tag}_F")
        publish()

    KP = OPT.get('kpre', 0)
    if KP:
        a(f"s_mov_b32 s40, {KP}")
    else:
        a("s_lshr_b32 s40, s3, 2")
    a("s_xor_b32 s43, s40, s20")
    a("s_and_b32 s43, s43, 1")
    tile_of(40)
    a("s_cmp_eq_u32 s43, 0")
    a("s_cbranch_scc0 K12_PL1")
    w_loads(40)
    a("s_branch K12_PL2")
    a.lab("K12_PL1")
    a("s_cmp_eq_u32 s27, 0")
    a("s_cbranch_scc1 K12_PL2")
    x_loads(40)
    a.lab("K12_PL2")
    if KP and OPT.get('touch', 1) and not OPT.get('tlate'):
        touch_block()
    if OPT.get('stamp'):
        a("s_memrealtime s[84:85]")
    if KP:
        table_params(a, 64, 44, 128, 129, 130)
        a("v_lshlrev_b32 v131, 3, v65")
        for ks in range(2):
            if ks: a("v_add_u32 v131, 32, v131")
            a("v_lshlrev_b32 v132, 5, v129")
            a("v_mad_u32_u24 v133, v128, v131, v132")
            trig(a, 128, 133, 136, 144, 148, 152)
            a("s_lshl_b32 s37, s44, 12")
            a(f"s_add_u32 s37, s37, {TABX + ks*2048}")
            a(f"v_add_u32 v132, s37, v{vLA}")
            a("ds_write_b128 v132, v[144:147]")
            a("ds_write_b128 v132, v[148:151] offset:1024")
    else:
        table_params(a, 64, 44, 128, 129, 130)
        a("v_lshlrev_b32 v131, 3, v65")
        a("s_lshr_b32 s36, s3, 2")
        a("s_lshl_b32 s37, s36, 5")
        a("v_add_u32 v131, s37, v131")
        a("v_lshlrev_b32 v132, 5, v129")
        a("v_mad_u32_u24 v133, v128, v131, v132")
        trig(a, 128, 133, 136, 144, 148, 152)
        a("s_lshl_b32 s37, s44, 12")
        a("s_lshl_b32 s36, s36, 11")
        a("s_add_u32 s37, s37, s36")
        a(f"v_add_u32 v132, s37, v{vLA}")
        a(f"ds_write_b128 v132, v[144:147] offset:{TABX}")
        a(f"ds_write_b128 v132, v[148:151] offset:{TABX + 1024}")
        a("s_cmp_ge_u32 s3, 4")
        a("s_cbranch_scc1 K12_TB")
        a("v_and_b32 v131, 1, v65")
        a("v_lshlrev_b32 v131, 3, v131")
        a("v_mul_u32_u24 v132, 96, v129")
        a("v_mad_u32_u24 v133, v128, v131, v132")
        trig(a, 128, 133, 136, 144, 148, 152)
        a("v_cmp_lt_u32 vcc, 1, v65")
        a("s_lshl_b32 s37, s44, 10")
        a(f"v_add_u32 v132, s37, v{vLA}")
        for q in range(4):
            a(f"v_cndmask_b32 v{144+q}, v{144+q}, v{148+q}, vcc")
        a(f"ds_write_b128 v132, v[144:147] offset:{TABW}")
        a("v_mov_b32 v136, 0"); a("v_mov_b32 v137, 0"); a("v_mov_b32 v138, 0"); a("v_mov_b32 v139, 0")
        a(f"s_mul_i32 s36, s44, {SB2}")
        a(f"s_add_u32 s36, s36, {167*128}")
        a(f"v_add_u32 v132, s36, v{vLA}")
        a("ds_write_b128 v132, v[136:139]")
        a("s_mov_b64 exec, 0xff")
        a("ds_write_b128 v132, v[136:139] offset:1024")
        a("s_mov_b64 exec, -1")
        a("s_lshl_b32 s36, s44, 2")
        a(f"s_add_u32 s36, s36, {SYNC}")
        a("v_mov_b32 v132, s36")
        a("ds_write_b32 v132, v136")
        a("s_lshl_b32 s36, s44, 3")
        a(f"s_add_u32 s36, s36, {PCNT}")
        a("v_mov_b32 v132, s36")
        a("ds_write_b64 v132, v[136:137]")
        a("s_lshl_b32 s36, s44, 3")
        a(f"s_add_u32 s36, s36, {MIRROR}")
        a("v_mov_b32 v132, s36")
        a("ds_write_b64 v132, v[136:137]")
        a(f"v_mov_b32 v132, {ISSUED}")
        a("ds_write_b32 v132, v136")
        a(f"v_mov_b32 v132, {ONES}")
        a("v_mov_b32 v133, 1")
        a("ds_write_b32 v132, v133")
    a.lab("K12_TB")
    a("s_waitcnt lgkmcnt(0)")
    a("s_barrier")
    if OPT.get('stamp'):
        a("s_memrealtime s[86:87]")
    a(f"v_add_u32 v{vT}, {TABX}, v{vLA}")
    for fr in range(8):
        a(f"ds_read_b128 v[{FH+4*fr}:{FH+4*fr+3}], v{vT} offset:{(fr>>1)*4096 + (fr&1)*2048}")
        a(f"ds_read_b128 v[{FL+4*fr}:{FL+4*fr+3}], v{vT} offset:{(fr>>1)*4096 + (fr&1)*2048 + 1024}")
        if fr == 3: a("s_waitcnt lgkmcnt(0)")
    for rb in range(4):
        a(f"ds_read_b128 v[{FW+4*rb}:{FW+4*rb+3}], v{vT} offset:{16384 + rb*1024}")
    if KP:
        a("s_waitcnt lgkmcnt(0)")
        a("s_barrier")
    a("s_waitcnt vmcnt(0) lgkmcnt(0)")
    if OPT.get('stamp'):
        a("s_memrealtime s[88:89]")
    a("s_mov_b32 s41, -1")
    a("s_mov_b32 s34, -1")
    if KP:
        a("s_branch K12_PROD")
    a("s_cmp_lt_u32 s3, 4")
    a("s_cbranch_scc0 K12_PROD")
    a("s_cmp_eq_u32 s43, 0")
    a("s_cbranch_scc0 K12_H1")
    interleave_perm(a, WR, OPS, 28, 29, OPT.get('pnocomp'))
    w_compute(40)
    a("s_branch K12_H2")
    a.lab("K12_H1")
    a("s_cmp_eq_u32 s27, 0")
    a("s_cbranch_scc1 K12_H2")
    interleave_perm(a, XR, OPS, 28, 29, OPT.get('pnocomp'))
    interleave_perm(a, XR + 32, XR, 28, 29, OPT.get('pnocomp'))
    x_compute(40)
    a.lab("K12_H2")
    a("s_mov_b64 exec, 1")
    a(f"v_mov_b32 v{vT}, {ISSUED}")
    a(f"v_mov_b32 v{OPS}, 1")
    a(f"ds_add_u32 v{vT}, v{OPS}")
    a("s_mov_b64 exec, -1")
    if OPT.get('stamp'):
        a("s_memrealtime s[90:91]")
    a("s_waitcnt vmcnt(0)")
    if OPT.get('stamp'):
        a("s_memrealtime s[92:93]")
        a("s_waitcnt lgkmcnt(0)")
        srd(a, 68, 58, O['ST'] + (7 << 20), 1 << 20)
        for k in range(10):
            a(f"v_mov_b32 v{128+k}, s{84+k}")
        a("v_mov_b32 v138, s82"); a("v_mov_b32 v139, s83"); a("v_mov_b32 v140, 0")
        a("s_lshl_b32 s72, s2, 2"); a("s_add_u32 s72, s72, s3"); a("s_lshl_b32 s72, s72, 6")
        a("s_mov_b64 exec, 1")
        for k in range(3):
            a(f"buffer_store_dwordx4 v[{128+4*k}:{131+4*k}], v140, s[68:71], s72 offen offset:{16*k}")
        a("s_mov_b64 exec, -1")
    a("s_mov_b32 s41, 0")
    signal(41)
    a("s_waitcnt vmcnt(0)")
    publish()
    if OPT.get('stamp'):
        a("s_memrealtime s[80:81]")
    a("s_branch K12_CONS")
    a.lab("K12_PROD")
    if KP and OPT.get('touch', 1) and OPT.get('tlate') and OPT.get('tlate') != 99:
        a(f"s_mov_b32 s37, {SPIN * 8}")
        a.lab("K12_TW")
        a(f"v_mov_b32 v{TMP}, {SYNC}")
        a(f"ds_read_b32 v{TMP}, v{TMP}")
        a("s_waitcnt lgkmcnt(0)")
        a(f"v_cmp_gt_u32 vcc, {OPT.get('tlate')}, v{TMP}")
        a("s_sub_u32 s37, s37, 1")
        a("s_cmp_eq_u32 s37, 0")
        a("s_cbranch_scc1 K12_TX")
        a("s_cbranch_vccz K12_TX")
        a("s_sleep 2")
        a("s_branch K12_TW")
        a.lab("K12_TX")
        touch_block()
    if OPT.get('noprod') == 1:
        a("s_endpgm")
    if OPT.get('noprod') == 2:
        a("s_mov_b32 s37, 4000")
        a.lab("K12_IDLE")
        a("s_sleep 64")
        a(f"v_mov_b32 v{TMP}, {SYNC}")
        a(f"ds_read_b32 v{TMP}, v{TMP}")
        a("s_waitcnt lgkmcnt(0)")
        a(f"v_cmp_gt_u32 vcc, 34, v{TMP}")
        a("s_sub_u32 s37, s37, 1")
        a("s_cmp_eq_u32 s37, 0")
        a("s_cbranch_scc1 K12_IDLE_X")
        a("s_cbranch_vccnz K12_IDLE")
        a.lab("K12_IDLE_X")
        a("s_endpgm")
    if OPT.get('pprio', 1) and not OPT.get('dynprio'):
        a(f"s_setprio {OPT.get('pprio', 1)}")
    a("s_cmp_eq_u32 s43, 0")
    a("s_cbranch_scc1 K12_WENTRY")
    a.lab("K12_XW")
    x_phase("K12_XP")
    a("s_cmp_ge_u32 s40, 8")
    a("s_cbranch_scc1 K12_PFIN")
    a.lab("K12_WENTRY")
    w_phase("K12_WP")
    a("s_cmp_lt_u32 s40, 8")
    a("s_cbranch_scc1 K12_XW")
    a.lab("K12_PFIN")
    a("s_waitcnt vmcnt(0)")
    signal(41)
    a("s_waitcnt vmcnt(0)")
    publish()
    a("s_endpgm")


def k1mix(a, O, OPT):
    WSTR = O['WSTR']; KP = OPT['kpre']; lo = OPT.get('xlo', 1)
    NWG = 256 * KP
    TX, TW = 0, (16384 if lo else 8192)
    a.raw(".p2align 8")
    a.raw(".type k1_xform_kernel,@function")
    a.lab("k1_xform_kernel")
    a(f"s_cmp_ge_u32 s2, {NWG}")
    a("s_cbranch_scc1 K1_END")
    stamp_begin(a)
    a("s_load_dwordx4 s[4:7], s[0:1], 0")
    a("s_load_dwordx2 s[8:9], s[0:1], 48")
    a("v_lshrrev_b32 v120, 6, v0")
    a("v_and_b32 v121, 63, v0")
    a("v_readfirstlane_b32 s3, v120")
    a("v_and_b32 v122, 15, v121")
    a("v_lshrrev_b32 v123, 4, v121")
    a("v_lshlrev_b32 v121, 4, v121")
    a("s_mov_b32 s28, 0x05040100")
    a("s_mov_b32 s29, 0x07060302")
    if OPT.get('kaorder', 0) == 0:
        a("s_lshr_b32 s40, s2, 8")
        a("s_and_b32 s41, s2, 255")
    else:
        a(f"s_mul_hi_u32 s41, s2, {(2**32 + KP - 1) // KP}")
        a(f"s_mul_i32 s40, s41, {KP}")
        a("s_sub_u32 s40, s2, s40")
    a("s_and_b32 s20, s3, 1")
    a("s_lshr_b32 s21, s3, 1")
    a("s_xor_b32 s43, s40, s20")
    a("s_and_b32 s43, s43, 1")
    a("s_waitcnt lgkmcnt(0)")
    a("s_or_b32 s10, s2, s3")
    a("s_cmp_eq_u32 s10, 0")
    a("s_cbranch_scc0 K1_NOCLR")
    srd(a, 12, 8, O['SY'], 32768)
    a("v_lshrrev_b32 v118, 4, v121")
    a("v_lshlrev_b32 v119, 10, v118")
    a("v_mov_b32 v117, 0")
    a("s_mov_b64 exec, 0xffff")
    a("buffer_store_dword v117, v119, s[12:15], 0 offen")
    a("v_lshlrev_b32 v119, 4, v118")
    a("v_add_u32 v119, 16384, v119")
    a("buffer_store_dword v117, v119, s[12:15], 0 offen")
    a("s_mov_b64 exec, -1")
    a.lab("K1_NOCLR")
    if OPT.get('k34'):
        a("s_cmp_lt_u32 s2, 32")
        a("s_cbranch_scc0 K1_NOFILL")
        srd(a, 12, 8, O['PART'], 256 * 512)
        a("s_lshl_b32 s10, s2, 2")
        a("s_add_u32 s10, s10, s3")
        a("s_lshl_b32 s10, s10, 10")
        for k in range(4): a(f"v_mov_b32 v{112+k}, -1")
        a("buffer_store_dwordx4 v[112:115], v121, s[12:15], s10 offen")
        a.lab("K1_NOFILL")
    a("s_cmp_eq_u32 s43, 0")
    a("s_cbranch_scc1 K1_WL")
    a("s_and_b32 s24, s41, 7")
    a("s_lshl_b32 s24, s24, 5")
    a("s_lshr_b32 s25, s41, 3")
    a("s_add_u32 s24, s24, s25")
    a("s_mul_i32 s36, s40, 85")
    a("s_add_u32 s36, s36, s41")
    a("s_and_b32 s36, s36, 255")
    a("s_mul_hi_u32 s37, s36, 0x55555556")
    a("s_mul_i32 s38, s37, 3")
    a("s_cmp_eq_u32 s38, s36")
    a("s_cselect_b32 s27, 1, 0")
    a("s_cmp_lt_u32 s37, 78")
    a("s_cselect_b32 s27, s27, 0")
    a("s_add_u32 s37, s37, 256")
    a("s_cmp_eq_u32 s21, 0")
    a("s_cselect_b32 s24, s24, s37")
    a("s_cselect_b32 s27, 1, s27")
    a(f"s_cmp_ge_u32 s24, {NT}")
    a("s_cselect_b32 s13, 1, 0")
    a(f"s_mul_i32 s26, s13, {NT}")
    a("s_sub_u32 s11, s24, s26")
    a("s_mul_i32 s14, s13, 16384000")
    srd(a, 16, 4, "s14", 16384000)
    srd(a, 20, 8, O['XT'] if O['XT'] else None, XT_SIZE)
    a("v_lshlrev_b32 v126, 14, v123")
    a("v_lshl_add_u32 v126, v122, 4, v126")
    a(f"s_mul_i32 s15, s11, {48*2048}")
    a("s_lshl_b32 s24, s40, 8")
    a("s_add_u32 s15, s15, s24")
    a("s_cmp_eq_u32 s27, 0")
    a("s_cbranch_scc1 K1_TAB")
    for ks in range(2):
        for e2 in range(4):
            r = 32 * ks + 8 * e2
            a(f"buffer_load_dwordx4 v[{r}:{r+3}], v126, s[16:19], s15 offen")
            a(f"buffer_load_dwordx4 v[{r+4}:{r+7}], v126, s[16:19], s15 offen offset:2048")
            if not (ks == 1 and e2 == 3):
                a(f"s_add_u32 s15, s15, {4096 if e2 < 3 else 32*2048 - 3*4096}")
    a("s_branch K1_TAB")
    a.lab("K1_WL")
    a("s_lshl_b32 s22, s41, 1")
    a("s_add_u32 s22, s22, s21")
    a("s_and_b32 s44, s22, 3")
    a("s_lshr_b32 s22, s22, 2")
    a("s_lshl_b32 s11, s40, 7")
    a("s_add_u32 s11, s11, s22")
    srd(a, 16, 6, None, 31 * 524288)
    srd(a, 20, 8, O['WT'], 128 * WSTR)
    a("s_lshr_b32 s12, s11, 9")
    a("s_and_b32 s13, s11, 511")
    a("s_lshl_b32 s14, s12, 19")
    a("s_lshl_b32 s15, s13, 10")
    a("s_add_u32 s14, s14, s15")
    a("s_lshl_b32 s15, s44, 8")
    a("s_add_u32 s15, s14, s15")
    a("v_and_b32 v126, 1, v123")
    a("v_lshlrev_b32 v126, 23, v126")
    a("v_lshl_add_u32 v126, v122, 4, v126")
    for e in range(8):
        a(f"buffer_load_dwordx4 v[{4*e}:{4*e+3}], v126, s[16:19], s15 offen")
        if e < 7: a("s_add_u32 s15, s15, 0x100000")
    a.lab("K1_TAB")
    table_params(a, 122, 3, 124, 125, 112, st=10)
    a("v_lshlrev_b32 v127, 3, v123")
    for ks in range(2):
        if ks: a("v_add_u32 v127, 32, v127")
        a("v_lshlrev_b32 v112, 5, v125")
        a("v_mad_u32_u24 v113, v124, v127, v112")
        trig(a, 124, 113, 64, 72, 76, 80)
        a(f"s_lshl_b32 s10, s3, {12 if lo else 11}")
        a("v_add_u32 v114, s10, v121")
        if lo:
            a(f"ds_write_b128 v114, v[72:75] offset:{TX + ks*2048}")
            a(f"ds_write_b128 v114, v[76:79] offset:{TX + ks*2048 + 1024}")
        else:
            a(f"ds_write_b128 v114, v[72:75] offset:{TX + ks*1024}")
    a("v_and_b32 v127, 1, v123")
    a("v_lshlrev_b32 v127, 3, v127")
    a("v_mul_u32_u24 v112, 96, v125")
    a("v_mad_u32_u24 v113, v124, v127, v112")
    trig(a, 124, 113, 64, 72, 76, 80)
    a("v_cmp_lt_u32 vcc, 1, v123")
    a("s_lshl_b32 s10, s3, 10")
    a("v_add_u32 v114, s10, v121")
    for q in range(4):
        a(f"v_cndmask_b32 v{72+q}, v{72+q}, v{76+q}, vcc")
    a(f"ds_write_b128 v114, v[72:75] offset:{TW}")
    a("s_waitcnt lgkmcnt(0)")
    a("s_barrier")
    a("s_cmp_eq_u32 s43, 0")
    a("s_cbranch_scc1 K1_WC")
    a("s_cmp_eq_u32 s27, 0")
    a("s_cbranch_scc1 K1_END")
    a("v_lshrrev_b32 v112, 1, v123")
    a(f"s_mov_b32 s24, {2*XFB}")
    a("v_mul_lo_u32 v112, v112, s24")
    a("v_lshrrev_b32 v113, 2, v122")
    a(f"s_mov_b32 s24, {XBLK}")
    a("v_mul_lo_u32 v113, v113, s24")
    a("v_add_u32 v112, v112, v113")
    a("v_and_b32 v113, 3, v122")
    a("v_and_b32 v114, 1, v123")
    a("v_lshl_add_u32 v113, v114, 2, v113")
    if OPT.get('b21'):
        a("s_add_u32 s24, s11, 7")
        a("s_cmp_ge_u32 s11, 160")
        a("s_cselect_b32 s24, s24, s11")
        a("s_cmp_eq_u32 s13, 1")
        a("s_cselect_b32 s24, s24, s11")
        a("s_lshr_b32 s24, s24, 1")
    else:
        a("s_lshr_b32 s24, s11, 1")
    a("s_and_b32 s24, s24, 7")
    a("v_xor_b32 v113, s24, v113")
    a("v_lshl_add_u32 v120, v113, 4, v112")
    a(f"s_mul_i32 s25, s13, {XFB}")
    a(f"s_mul_i32 s24, s40, {4*XBLK}")
    a("s_add_u32 s25, s25, s24")
    a("s_lshl_b32 s24, s11, 7")
    a("s_add_u32 s25, s25, s24")
    if OPT.get('mixlin'):
        a("v_mov_b32 v120, v121"); a("s_lshl_b32 s25, s2, 2"); a("s_add_u32 s25, s25, s3"); a("s_lshl_b32 s25, s25, 14"); a("s_and_b32 s25, s25, 0x1ffffff")
    a("s_waitcnt vmcnt(8)")
    interleave_perm(a, 0, 64, 28, 29)
    a("s_waitcnt vmcnt(0)")
    stamp_mid(a)
    interleave_perm(a, 32, 0, 28, 29)
    for rb in range(4):
        nfr = 4 if lo else 2
        for fr in range(nfr):
            off = TX + (rb*4096 + fr*1024 if lo else rb*2048 + fr*1024)
            a(f"ds_read_b128 v[{96+4*fr}:{99+4*fr}], v121 offset:{off}")
        for term in range(nfr):
            a(f"s_waitcnt lgkmcnt({nfr-1-term})")
            ops = (64 if term < 2 else 0) if lo else (64 if term == 0 else 0)
            for i in range(8):
                c = "0" if term == 0 else f"v[{32+4*i}:{35+4*i}]"
                a(f"v_mfma_f32_16x16x32_bf16 v[{32+4*i}:{35+4*i}], v[{96+4*term}:{99+4*term}], v[{ops+4*i}:{ops+4*i+3}], {c}")
        a("s_nop 7")
        for r in range(4):
            t = 112 + 4 * (r & 1)
            for q in range(4):
                a(f"v_cvt_pk_bf16_f32 v{t+q}, v{32+4*(2*q)+r}, v{32+4*(2*q+1)+r}")
            a(f"buffer_store_dwordx4 v[{t}:{t+3}], v120, s[20:23], s25 offen")
            if not (rb == 3 and r == 3):
                a(f"s_add_u32 s25, s25, {1024 if OPT.get('mixlin') else 2*2*XFB}")
    stamp_end(a, O, 0)
    a("s_endpgm")
    a.lab("K1_WC")
    a("v_lshrrev_b32 v112, 1, v123")
    a(f"s_mov_b32 s24, {4*WSTR}")
    a("v_mul_lo_u32 v112, v112, s24")
    a("v_and_b32 v113, 1, v123")
    a("v_lshl_add_u32 v112, v113, 8, v112")
    a("v_and_b32 v113, 1, v122")
    a("v_lshl_add_u32 v124, v113, 4, v112")
    a("v_lshrrev_b32 v125, 1, v122")
    a("s_and_b32 s30, s11, 3")
    a("s_lshr_b32 s24, s11, 1")
    a("s_and_b32 s24, s24, 4")
    a("s_or_b32 s30, s30, s24")
    a("v_xor_b32 v112, s30, v125")
    a("v_lshl_add_u32 v120, v112, 5, v124")
    a(f"s_mul_i32 s25, s44, {WSTR}")
    a("s_lshl_b32 s24, s11, 9")
    a("s_add_u32 s25, s25, s24")
    for rb in range(4):
        a(f"ds_read_b128 v[{96+4*rb}:{99+4*rb}], v121 offset:{TW + rb*1024}")
    a("s_waitcnt vmcnt(0) lgkmcnt(0)")
    stamp_mid(a)
    interleave_perm(a, 0, 32, 28, 29)
    a("s_nop 1")
    for rb in range(4):
        for i in range(8):
            a(f"v_mfma_f32_16x16x32_bf16 v[{64+4*i}:{67+4*i}], v[{96+4*rb}:{99+4*rb}], v[{32+4*i}:{35+4*i}], 0")
        a("s_nop 7")
        for r in range(4):
            t = 112 + 4 * (r & 1)
            for q in range(4):
                a(f"v_cvt_pk_bf16_f32 v{t+q}, v{64+4*(2*q)+r}, v{64+4*(2*q+1)+r}")
            a(f"buffer_store_dwordx4 v[{t}:{t+3}], v120, s[20:23], s25 offen")
            if not (rb == 3 and r == 3):
                a(f"s_add_u32 s25, s25, {2*4*WSTR}")
    stamp_end(a, O, 0)
    a.lab("K1_END")
    a("s_endpgm")
    return ("k1_xform_kernel", NWG, 256, TW + 4096, 128)
```

```python
from gen import *
import gen
from kernels3 import BOFF2, SB2, NBUF2, SYNC

PCNT = SYNC + 32
ISSUED = SYNC + 16
MIRROR = SYNC + 64
ONES = MIRROR + 32
DUMMY = MIRROR + 64
PBAR = DUMMY + 64
LDS12 = PBAR + 32
TABX = 0
TABW = 16384
SPIN = 16384

def k12(a, O, OPT):
    global TABX, TABW
    WSTR = O['WSTR']
    if OPT.get('kpre'):
        TABX = 3 * SB2
        TABW = TABX + 16384
    a.raw(".p2align 8")
    a.raw(".type k12_fused_kernel,@function")
    a.lab("k12_fused_kernel")
    a("s_cmp_ge_u32 s2, 256")
    a("s_cbranch_scc1 K12_END")
    a("s_load_dwordx4 s[52:55], s[0:1], 0")
    a("s_load_dwordx4 s[56:59], s[0:1], 40")
    code_prefetch(a, "k12_fused_kernel", "K12", 0, 8, 8)
    if OPT.get('stamp'):
        a("s_memtime s[80:81]")
        a("s_memrealtime s[82:83]")
    a("v_lshrrev_b32 v1, 6, v0")
    a("v_and_b32 v2, 63, v0")
    a("v_readfirstlane_b32 s3, v1")
    a("s_waitcnt lgkmcnt(0)")
    if OPT.get('kpre'):
        a("s_cmp_lt_u32 s3, 4")
        a("s_cbranch_scc1 K12_CONS")
    producer(a, O, OPT)
    a.lab("K12_CONS")
    consumer(a, O, OPT)
    a.lab("K12_END")
    a("s_endpgm")
    return ("k12_fused_kernel", 256, 512, LDS12, 256)

def PLF(OPT):
    return {0: "", 1: " sc1", 2: " nt", 3: " sc1 nt", 4: " sc0 sc1"}[OPT.get('plf', 0)]

def table_params(a, vRho, sRb, vA, vRi, tmp, st=36):
    a(f"v_and_b32 v{vA}, 3, v{vRho}")
    a(f"v_lshlrev_b32 v{vA}, 2, v{vA}")
    a(f"v_lshrrev_b32 v{tmp}, 3, v{vRho}")
    a(f"v_lshl_add_u32 v{vA}, v{tmp}, 1, v{vA}")
    a(f"s_lshl_b32 s{st}, s{sRb}, 4")
    a(f"s_add_u32 s{st}, s{st}, 1")
    a(f"v_add_u32 v{vA}, s{st}, v{vA}")
    a(f"v_bfe_u32 v{vRi}, v{vRho}, 2, 1")

def lds_init(a, sw, vLane16, z):
    for k in range(4): a(f"v_mov_b32 v{z+k}, 0")
    a(f"s_mul_i32 s28, s{sw}, {SB2}")
    if gen.OPT.get('b21'):
        a(f"s_add_u32 s28, s28, {174*128}")
        a(f"v_add_u32 v{z+4}, s28, v{vLane16}")
        a("s_mov_b64 exec, 0xffff")
        a(f"ds_write_b128 v{z+4}, v[{z}:{z+3}]")
        a("s_mov_b64 exec, -1")
    else:
        a(f"s_add_u32 s28, s28, {167*128}")
        a(f"v_add_u32 v{z+4}, s28, v{vLane16}")
        a(f"ds_write_b128 v{z+4}, v[{z}:{z+3}]")
        a("s_mov_b64 exec, 0xff")
        a(f"ds_write_b128 v{z+4}, v[{z}:{z+3}] offset:1024")
        a("s_mov_b64 exec, -1")
    for base, sh, wide in ((SYNC, 2, False), (PCNT, 3, True), (MIRROR, 3, True), (PBAR, 3, True)):
        a(f"s_lshl_b32 s28, s{sw}, {sh}")
        a(f"s_add_u32 s28, s28, {base}")
        a(f"v_mov_b32 v{z+4}, s28")
        a(f"ds_write_b64 v{z+4}, v[{z}:{z+1}]" if wide else f"ds_write_b32 v{z+4}, v{z}")
    a(f"v_mov_b32 v{z+4}, {ISSUED}")
    a(f"ds_write_b32 v{z+4}, v{z}")
    a(f"v_mov_b32 v{z+4}, {ONES}")
    a(f"v_mov_b32 v{z+5}, 1")
    a(f"ds_write_b32 v{z+4}, v{z+5}")

def consumer(a, O, OPT):
    WSTR = O['WSTR']
    AF, BP, BQ, NW, ACC = 8, 40, 56, 72, 80
    vT, vL, vAr, vAi, vB, vPA, vWA = 0, 1, 2, 3, 4, 5, 7
    sc = " sc1" if OPT.get('dmasc1', 1) else ""
    a("s_and_b32 s6, s2, 7")
    a("s_lshl_b32 s6, s6, 2")
    a("s_lshr_b32 s7, s2, 6")
    a("s_add_u32 s6, s6, s7")
    a("s_mov_b32 s51, s6")
    a("s_mov_b32 s27, s6")
    a("s_lshr_b32 s7, s2, 3")
    a("s_and_b32 s7, s7, 7")
    a("s_lshr_b32 s20, s7, 2")
    a("s_and_b32 s21, s7, 3")
    a("s_lshl_b32 s22, s6, 1")
    a("s_add_u32 s22, s22, s20")
    a("s_lshl_b32 s23, s6, 2")
    a("s_add_u32 s23, s23, s21")
    a(f"s_mul_i32 s24, s22, {XFB}")
    a(f"s_mul_i32 s25, s23, {WSTR}")
    a(f"s_add_u32 s25, s25, {O['WT']}")
    a(f"s_mul_i32 s26, s22, {YFB}")
    a(f"s_add_u32 s26, s26, {O['YT']}")
    if O['XT']:
        a(f"s_add_u32 s24, s24, {O['XT']}")
    srd(a, 8, 58, "s24", XFB)
    srd(a, 12, 58, "s25", 524288)
    srd(a, 16, 58, "s26", YFB)
    if OPT.get('kpre'):
        a(f"s_add_u32 s4, s58, {O['SY'] + 16384}")
        a("s_addc_u32 s5, s59, 0")
    else:
        a("s_add_u32 s4, s56, 128")
        a("s_addc_u32 s5, s57, 0")
    a("s_and_b32 s5, s5, 0xffff")
    a("s_cmp_eq_u32 s3, 0")
    a("s_cselect_b32 s6, 128, 0")
    a("s_mov_b32 s7, 0x00020000")
    a(f"s_mov_b32 s46, {MIRROR}")
    a(f"s_cselect_b32 s46, s46, {DUMMY}")
    a(f"s_mov_b32 s47, {MIRROR}")
    a(f"s_cselect_b32 s47, s47, {ONES}")
    a("s_cselect_b32 s45, 4, 0")
    a("s_mov_b32 s50, s45")
    KP = OPT.get('kpre', 0)
    if not KP:
        a(f"v_lshrrev_b32 v2, 4, v254")
    a("v_and_b32 v8, 15, v2")
    a("v_lshrrev_b32 v9, 4, v2")
    a(f"v_lshlrev_b32 v{vL}, 4, v2")
    a("s_mul_i32 s30, s3, 5120")
    a("s_mov_b32 s36, s30")
    a("s_lshl_b32 s31, s3, 12")
    a(f"s_add_u32 s37, s31, {BOFF2}")
    B21 = OPT.get('b21', 0)
    if B21:
        a("s_lshr_b32 s28, s3, 1")
        a("s_and_b32 s29, s3, 1")
        a("s_lshl_b32 s33, s29, 9")
        a("s_add_u32 s33, s33, 20480")
        a("s_mul_i32 s38, s28, 896")
        a("s_add_u32 s38, s38, s33")
        a("s_lshl_b32 s34, s6x, 1".replace("s6x", "s51"))
        a("s_add_u32 s34, s34, s28")
        a(f"s_mul_i32 s34, s34, {XFB}")
        if O['XT']: a(f"s_add_u32 s34, s34, {O['XT']}")
        srd(a, 64, 58, "s34", XFB)
        a("s_mov_b32 s44, 0xffffff")
        a("s_cmp_eq_u32 s29, 0")
        a("s_cselect_b32 s44, -1, s44")
        a("s_mov_b32 s45, 0")
    else:
      a("s_lshl_b32 s33, s3, 8")
      a("s_add_u32 s33, s33, 20480")
      a("s_mov_b32 s38, s33")
      a("s_mov_b32 s44, 0xffff")
    if not B21:
      a("s_cmp_eq_u32 s3, 3")
      a("s_cselect_b32 s44, 0xff, s44")
      a("s_mov_b32 s45, 0")
    def dma_groups(sbuf):
        g = []
        g.append([f"s_add_u32 m0, s{sbuf}, s36", "s_nop 0", f"buffer_load_dwordx4 v{vL}, s[8:11], s30 offen{sc} lds"])
        for k in range(1, 4):
            g.append([f"buffer_load_dwordx4 v{vL}, s[8:11], s30 offen offset:{1024*k}{sc} lds"])
        g.append(["s_add_u32 m0, m0, 4096", "s_add_u32 s34, s30, 4096", f"buffer_load_dwordx4 v{vL}, s[8:11], s34 offen{sc} lds"])
        g.append([f"s_add_u32 m0, s{sbuf}, s37", f"s_add_u32 s30, s30, {XBLK}", f"buffer_load_dwordx4 v{vL}, s[12:15], s31 offen{sc} lds"])
        for k in range(1, 4):
            g.append([f"buffer_load_dwordx4 v{vL}, s[12:15], s31 offen offset:{1024*k}{sc} lds"])
        g.append([f"s_add_u32 m0, s{sbuf}, s38", "s_mov_b64 exec, s[44:45]",
                  f"buffer_load_dwordx4 v{vL}, {'s[64:67]' if B21 else 's[8:11]'}, s33 offen{sc} lds", "s_mov_b64 exec, -1",
                  "s_add_u32 s31, s31, 16384", f"s_add_u32 s33, s33, {XBLK}"])
        return g
    def mirror_dma():
        return ["s_mov_b32 m0, s46", "s_mov_b64 exec, 0xff", f"buffer_load_dword v{vL}, s[4:7], 0 offen sc1 lds", "s_mov_b64 exec, -1"]
    a("v_lshrrev_b32 v10, 1, v8")
    a("v_xor_b32 v10, v10, v9")
    a("v_lshlrev_b32 v10, 4, v10")
    a(f"v_lshl_add_u32 v{vAr}, v8, 7, v10")
    a(f"v_xor_b32 v{vAi}, 64, v{vAr}")
    a("v_lshrrev_b32 v10, 2, v8")
    a("v_lshl_add_u32 v11, v9, 3, v10")
    a("v_lshlrev_b32 v11, 9, v11")
    a("v_and_b32 v12, 1, v9")
    a("v_lshl_or_b32 v10, v12, 2, v10")
    a("s_lshl_b32 s28, s3, 1")
    a("v_xor_b32 v10, s28, v10")
    a("v_lshl_add_u32 v11, v10, 5, v11")
    a("v_and_b32 v10, 3, v8")
    a("v_lshl_add_u32 v11, v10, 3, v11")
    a(f"v_add_u32 v{vB}, {BOFF2}, v11")
    if B21:
        a("s_lshl_b32 s28, s20, 5")
        a(f"v_xor_b32 v{vB}, s28, v{vB}")
    a("v_and_b32 v10, 3, v8")
    a("v_lshlrev_b32 v10, 2, v10")
    a(f"v_add_u32 v{vPA}, {SYNC}, v10")
    a("s_lshl_b32 s28, s3, 2")
    a(f"s_add_u32 s28, s28, {SYNC}")
    a(f"v_mov_b32 v{vWA}, s28")
    a("s_mov_b32 s35, 0x80008000")

    slow = []
    nlab = [0]
    def flag_wait_loop(lab, saddr, back):
        r = [f"{lab}:", f"s_mov_b32 s61, {SPIN}", "s_add_u32 s63, s63, 1", f"{lab}_L:"] + mirror_dma() + ["s_waitcnt vmcnt(0)",
             f"v_mov_b32 v{vT}, s{saddr}", f"ds_read_b32 v{vT}, v{vT}", "s_waitcnt lgkmcnt(0)",
             f"v_cmp_eq_u32 vcc, 0, v{vT}", "s_sub_u32 s61, s61, 1", "s_cmp_eq_u32 s61, 0",
             f"s_cbranch_scc1 {lab}_X", f"s_cbranch_vccz {lab}_X", f"s_sleep {OPT.get('fsleep', 2)}", f"s_branch {lab}_L", f"{lab}_X:"]
        if back: r.append(f"s_branch {back}")
        return r
    def emit(ins):
        if ins.endswith(":"): a.lab(ins[:-1])
        else: a(ins)
    def poll_slow(vP, sv=40):
        n = nlab[0]; nlab[0] += 1
        slow.extend([f"K12_S{n}:", f"s_mov_b32 s61, {SPIN}", "s_add_u32 s62, s62, 1", f"K12_S{n}_L:", f"ds_read_b32 v{vP}, v{vPA}", "s_waitcnt lgkmcnt(0)",
                     f"v_cmp_gt_u32 vcc, s{sv}, v{vP}", "s_sub_u32 s61, s61, 1", "s_cmp_eq_u32 s61, 0", f"s_cbranch_scc1 K12_Q{n}",
                     f"s_cbranch_vccz K12_Q{n}"] + ([f"s_sleep {OPT['lsleep']}"] if OPT.get('lsleep') else []) + [f"s_branch K12_S{n}_L"])
        return n
    a("s_mov_b32 s62, 0"); a("s_mov_b32 s63, 0")
    if OPT.get('noncons'):
        a("s_endpgm")
    if KP:
        pre_prologue = True
    else:
      for r in range(176):
        a(f"v_mov_b32 v{ACC+r}, 0")
      for ins in flag_wait_loop("K12_W0", 47, None): emit(ins)
    if not KP:
        a("s_mov_b32 s40, 1")
        a(f"v_mov_b32 v{vT}, s40")
        a(f"ds_write_b32 v{vWA}, v{vT}")
        n0 = poll_slow(BQ)
        a(f"s_branch K12_S{n0}")
        a.lab(f"K12_Q{n0}")
    if OPT.get('stamp'):
        a("s_memtime s[84:85]")
        a("s_memrealtime s[86:87]")
    a("s_mov_b32 s39, 0")
    for st in range(3):
        for grp in dma_groups(39):
            for ins in grp: a(ins)
        a(f"s_add_u32 s39, s39, {SB2}")
    for ins in mirror_dma(): a(ins)
    if OPT.get('prostamp'):
        a("s_memrealtime s[92:93]"); a("s_waitcnt lgkmcnt(0)"); a("v_writelane_b32 v248, s92, 19")
    if KP:
        a(f"v_lshrrev_b32 v9, 4, v{vL}"); a("v_and_b32 v8, 15, v9"); a("v_lshrrev_b32 v9, 4, v9")
        table_params(a, 8, 3, 10, 11, 12, st=28)
        a("v_and_b32 v13, 1, v9")
        a("v_lshlrev_b32 v13, 3, v13")
        a("v_mul_u32_u24 v14, 96, v11")
        a("v_mad_u32_u24 v15, v10, v13, v14")
        trig(a, 10, 15, 16, 24, 28, 32)
        a("v_cmp_lt_u32 vcc, 1, v9")
        a("s_lshl_b32 s28, s3, 10")
        a(f"s_add_u32 s28, s28, {TABW}")
        a(f"v_add_u32 v14, s28, v{vL}")
        for q in range(4):
            a(f"v_cndmask_b32 v{24+q}, v{24+q}, v{28+q}, vcc")
        a("ds_write_b128 v14, v[24:27]")
        if OPT.get('tsplit'):
            a("v_lshlrev_b32 v13, 3, v9")
            a("v_add_u32 v13, 32, v13")
            a("v_lshlrev_b32 v14, 5, v11")
            a("v_mad_u32_u24 v15, v10, v13, v14")
            trig(a, 10, 15, 16, 24, 28, 32)
            a("s_lshl_b32 s28, s3, 12")
            a(f"s_add_u32 s28, s28, {TABX + 2048}")
            a(f"v_add_u32 v14, s28, v{vL}")
            a("ds_write_b128 v14, v[24:27]")
            a("ds_write_b128 v14, v[28:31] offset:1024")
        lds_init(a, 3, vL, 12)
        a("s_waitcnt lgkmcnt(0)")
        a("s_barrier")
        for r in range(168 if B21 else 176):
            a(f"v_mov_b32 v{ACC+r}, 0")
        a("s_barrier")

    def a_reads(rb):
        s = AF + 8 * (rb % 4)
        return [f"ds_read_b128 v[{s}:{s+3}], v{vAr} offset:{rb*2048}",
                f"ds_read_b128 v[{s+4}:{s+7}], v{vAi} offset:{rb*2048}"]
    def b_reads(B):
        r = []
        for cb in range(2):
            for ri in range(2):
                d = B + 8 * cb + 4 * ri
                for t in range(2):
                    r.append(f"ds_read_b64_tr_b16 v[{d+2*t}:{d+2*t+1}], v{vB} offset:{ri*256+t*2048}")
            r.append(f"v_xor_b32 v{vB}, 32, v{vB}")
        return r
    def b_xor(B, cb):
        return [f"v_xor_b32 v{NW+4*cb+q}, s35, v{B+8*cb+4+q}" for q in range(4)]
    def mfmas(rb, B):
        s = AF + 8 * (rb % 4)
        Ar, Ai = s, s + 4
        def acc(cb, ri): return ACC + ((rb * 2 + cb) * 2 + ri) * 4
        def m(d, x, y): return f"v_mfma_f32_16x16x32_bf16 v[{d}:{d+3}], v[{x}:{x+3}], v[{y}:{y+3}], v[{d}:{d+3}]"
        Wr = lambda cb: B + 8 * cb
        Wi = lambda cb: B + 8 * cb + 4
        nWi = lambda cb: NW + 4 * cb
        if B21 and rb == 10:
            return [m(acc(0,0), Ar, Wr(0)), m(acc(0,1), Ar, Wi(0)), m(acc(0,0), Ai, nWi(0)), m(acc(0,1), Ai, Wr(0))]
        return [m(acc(0,0), Ar, Wr(0)), m(acc(0,1), Ar, Wi(0)), m(acc(1,0), Ar, Wr(1)), m(acc(1,1), Ar, Wi(1)),
                m(acc(0,0), Ai, nWi(0)), m(acc(0,1), Ai, Wr(0)), m(acc(1,0), Ai, nWi(1)), m(acc(1,1), Ai, Wr(1))]
    a("s_mov_b32 s40, 2")
    a(f"v_mov_b32 v{vT}, s40")
    if OPT.get('prostamp'):
        for i_, n_ in enumerate((21, 11, 1)):
            a(f"s_waitcnt vmcnt({n_})")
            a("s_memrealtime s[92:93]"); a("s_waitcnt lgkmcnt(0)")
            a(f"v_writelane_b32 v248, s92, {20+i_}")
    a(f"s_waitcnt vmcnt({OPT.get('prowait', 21)})")
    a(f"ds_write_b32 v{vWA}, v{vT}")
    n = poll_slow(BQ)
    a(f"s_branch K12_S{n}")
    a.lab(f"K12_Q{n}")
    if OPT.get('stamp'):
        a("s_memtime s[88:89]")
        a("s_memrealtime s[90:91]")
    for ins in b_reads(BP): a(ins)
    for rb in (0, 1, 3):
        for ins in a_reads(rb): a(ins)
    QD = 12 if B21 else 4
    a(f"ds_read_b32 v{BQ+QD}, v{vPA}")
    a("s_waitcnt lgkmcnt(7)")
    for cb in range(2):
        for ins in b_xor(BP, cb): a(ins)
    a("s_mov_b32 s41, 0")
    a(f"s_mov_b32 s42, {SB2}")
    a("s_mov_b32 s39, 0")
    a(f"s_mov_b32 s29, {3*SB2}")
    def emit_stage(half, last=False):
        nslow = len(slow)
        Bc, Bn = (BP, BQ) if half == 0 else (BQ, BP)
        side = {k: [] for k in range(88)}
        lds_issue = {}
        def put(k, ins, tag=None):
            side[k].append(ins)
            if tag: lds_issue.setdefault(k, []).append(tag)
        def put_a(k, rb, tag):
            r = a_reads(rb)
            put(k, r[0], tag); put(k + 1, r[1], tag)
        put_a(0, 2, "A2")
        for rb in range(4, 11):
            put_a(8 * (rb - 3), rb, f"A{rb}")
        P = OPT.get('parr', 58)
        K1 = OPT.get('parr1', 44)
        put(2, "s_waitcnt lgkmcnt(2)")
        put(2, f"v_cmp_gt_u32 vcc, s40, v{Bn+QD}")
        n2 = poll_slow(Bn + QD, 40)
        put(3, f"s_cbranch_vccnz K12_S{n2}"); put(3, f"K12_Q{n2}:")
        put(K1 - 1, "s_add_u32 s40, s40, 1"); put(K1 - 1, "s_mov_b32 s51, s40")
        put(K1 - 1, f"v_mov_b32 v{vT}, s40") if half == 1 or True else None
        nd = sum(1 for d_ in [4, 10, 14, 20, 26, 30, 36, 42, 46, 52] if d_ < K1)
        if not OPT.get('novmw'): put(K1, f"s_waitcnt vmcnt({11 + nd})")
        put(K1, f"ds_write_b32 v{vWA}, v{vT}", "W")
        put(P, "s_sub_u32 s43, s42, s41"); put(P, "s_add_u32 s40, s40, 1")
        put(P, f"v_add_u32 v{vAr}, s43, v{vAr}")
        put(P + 1, f"v_add_u32 v{vAi}, s43, v{vAi}"); put(P + 1, f"v_add_u32 v{vB}, s43, v{vB}")
        put(P + 1, f"v_mov_b32 v{vT}, s40")
        put(P + 2, f"ds_write_b32 v{vWA}, v{vT}", "W")
        pd = P + OPT.get('pdly', 5)
        put(pd, f"ds_read_b32 v{Bn}, v{vPA}", "P")
        if half == 0:
            put(2, "s_add_u32 s49, s39, 2"); put(2, "s_lshr_b32 s49, s49, 1")
            put(3, "s_mul_i32 s48, s49, s50"); put(3, "s_add_u32 s48, s48, s47")
            put(5, f"s_cmp_lt_u32 s49, {8 if not OPT.get('noprod') else 0}"); put(5, f"s_cselect_b32 s48, s48, {ONES}")
            if KP > 1:
                put(6, f"s_cmp_ge_u32 s49, {KP}"); put(6, f"s_cselect_b32 s48, s48, {ONES}")
            put(P - 9, f"v_mov_b32 v{vT}, s48")
            put(P - 8, f"ds_read_b32 v{vT}, v{vT}", "M")
            put(P - 3, "s_waitcnt lgkmcnt(0)")
            put(P - 3, f"v_cmp_eq_u32 vcc, 0, v{vT}")
            m = nlab[0]; nlab[0] += 1
            put(P - 1, f"s_cbranch_vccnz K12_F{m}"); put(P - 1, f"K12_G{m}:")
            slow.extend(flag_wait_loop(f"K12_F{m}", 48, f"K12_G{m}"))
        C = OPT.get('pchk', 69)
        put(C - 2, "s_waitcnt lgkmcnt(0)")
        put(C - 2, f"v_cmp_gt_u32 vcc, s51, v{Bn}")
        n = poll_slow(Bn, 51)
        put(C, f"s_cbranch_vccnz K12_S{n}"); put(C, f"K12_Q{n}:")
        br = b_reads(Bn)
        for i_, ins in enumerate(br): put(C + 1 + i_ if C + 1 + i_ < 78 else 77, ins, "B" if ins.startswith("ds_") else None)
        if B21:
            put_a(72, 0, "N0"); put_a(74, 3, "N3"); put_a(80, 1, "N1")
            put(76, f"ds_read_b32 v{Bc+QD}, v{vPA}", "Q")
        else:
            put_a(78, 0, "N0"); put_a(80, 1, "N1"); put_a(82, 3, "N3")
            put(83, f"ds_read_b32 v{Bc+4}, v{vPA}", "Q")
        dl = dma_groups(29)
        dpos = [4, 10, 14, 20, 26, 30, 36, 42, 46, 52]
        for i_, grp in enumerate(dl):
            for ins in grp:
                if OPT.get('k2nodma') and ins.startswith("buffer_load"): continue
                put(dpos[i_], ins)
        if half == 1:
            for ins in mirror_dma(): put(54, ins)
        if B21:
            xr0, xr1 = b_xor(Bc, 0), b_xor(Bc, 1)
            for q in range(4): put(q // 2, xr0[q]); put(2 + q // 2, xr1[q])
            for ins in ["s_mov_b32 s29, s41", "s_mov_b32 s41, s42", f"s_add_u32 s42, s42, {SB2}"]: put(82, ins)
            for ins in [f"s_cmp_eq_u32 s42, {NBUF2*SB2}", "s_cselect_b32 s42, 0, s42"]: put(83, ins)
            q = ["A0"] + ["A1"] * 2
        else:
            xr0, xr1 = b_xor(Bn, 0), b_xor(Bn, 1)
            put(84, "s_waitcnt lgkmcnt(7)")
            for q in range(4): put(84 + q // 2, xr0[q]); put(86 + q // 2, xr1[q])
            for ins in ["s_mov_b32 s29, s41", "s_mov_b32 s41, s42", f"s_add_u32 s42, s42, {SB2}"]: put(83, ins)
            for ins in [f"s_cmp_eq_u32 s42, {NBUF2*SB2}", "s_cselect_b32 s42, 0, s42"]: put(85, ins)
            q = ["A0"] * 2 + ["A1"] * 2 + ["A3"] * 2 + ["Q"]
        pre = {}
        for k in range(88):
            if k % 8 == 0:
                need = f"A{k // 8}"
                if need in q:
                    idx = max(i_ for i_, x in enumerate(q) if x == need)
                    pre[k] = len(q) - 1 - idx
                    q = q[idx + 1:]
            q += lds_issue.get(k, [])
            if k == 2: q = q[-2:]
            if k == C - 2 or (half == 0 and k == P - 3): q = []
        if last:
            del slow[nslow:]
            side = {k: [x for x in side[k] if (x.startswith("ds_read_b128") and k < 58) or (B21 and k < 4 and x.startswith("v_xor_b32") and "s35" in x)] for k in range(88)}
            q = (["A0"] + ["A1"] * 2) if B21 else (["A0"] * 2 + ["A1"] * 2 + ["A3"] * 2 + ["Q"])
            pre = {}
            for k in range(88):
                if k % 8 == 0:
                    need = f"A{k // 8}"
                    if need in q:
                        idx = max(i_ for i_, x in enumerate(q) if x == need)
                        pre[k] = len(q) - 1 - idx
                        q = q[idx + 1:]
                q += [t for t in lds_issue.get(k, []) if t.startswith("A")]
            st_setup = [f"v_lshrrev_b32 v{vT}, 4, v{vL}", f"v_and_b32 v{vPA}, 15, v{vT}", f"v_lshrrev_b32 v{vT}, 4, v{vT}",
                        "s_lshl_b32 s28, s21, 7", "s_lshl_b32 s29, s3, 5", "s_add_u32 s28, s28, s29",
                        f"v_add_u32 v{vPA}, s28, v{vPA}", f"v_lshlrev_b32 v{vPA}, 2, v{vPA}", f"v_lshl_add_u32 v{vPA}, v{vT}, 13, v{vPA}"]
            if B21:
                st_setup += ["s_lshl_b32 s28, s20, 6", f"v_xor_b32 v{vPA}, s28, v{vPA}", f"v_xor_b32 v{vWA}, 64, v{vPA}"]
            for i_, ins in enumerate(st_setup): side[4 + i_ // 2].append(ins)
            tmps = [Bn + ((x + 8) & 15) for x in range(16)]
            n_ = 0
            for rb in range(10):
                k0 = 8 * (rb + 1) + 3
                seq = []
                for i in range(4):
                    for cb in range(2):
                        t = tmps[n_ % 16]; n_ += 1
                        yr = ACC + ((rb * 2 + cb) * 2 + 0) * 4 + i
                        yi = ACC + ((rb * 2 + cb) * 2 + 1) * 4 + i
                        so = (16 * rb + (i & 2)) * 2048
                        pre_ = [f"s_mov_b32 s38, {so}"] if (cb == 0 and i % 2 == 0) else []
                        seq.append(pre_ + [f"v_cvt_pk_bf16_f32 v{t}, v{yr}, v{yi}",
                                           (f"buffer_store_dword v{t}, v{vWA if cb else vPA}, s[16:19], s38 offen offset:{(i&1)*2048}{NTF('ntys')}" if B21 else
                                            f"buffer_store_dword v{t}, v{vPA}, s[16:19], s38 offen offset:{(i&1)*2048+cb*64}{NTF('ntys')}")])
                for e_, grp in enumerate(seq):
                    kk = min(k0 + e_ * 3 // 4, 83 if B21 else 87)
                    side[kk] += grp
        k = 0
        for rb in range(11):
            for ins in mfmas(rb, Bc):
                if k in pre:
                    a(f"s_waitcnt lgkmcnt({min(pre[k], 15)})")
                emit(ins)
                for s_ in side[k]: emit(s_)
                k += 1
    ovl = OPT.get('epiovl', 1)
    a.lab("K12_LOOP")
    if OPT.get('itstamp'):
        a("s_memrealtime s[92:93]")
        a("s_waitcnt lgkmcnt(0)")
        a("s_mov_b32 m0, s39")
        a("v_writelane_b32 v248, s92, m0")
    emit_stage(0); emit_stage(1)
    a("s_add_u32 s39, s39, 1")
    a(f"s_cmp_lt_u32 s39, {15 if ovl else 16}")
    a("s_cbranch_scc1 K12_LOOP")
    if ovl:
        emit_stage(0); emit_stage(1, last=True)
    if OPT.get('stamp'):
        a("s_memtime s[92:93]")
        a("s_memrealtime s[94:95]")
    if not ovl:
        a(f"v_lshrrev_b32 v8, 4, v{vL}")
        a("v_and_b32 v9, 15, v8")
        a("v_lshrrev_b32 v8, 4, v8")
        a("s_lshl_b32 s28, s21, 7")
        a("s_lshl_b32 s29, s3, 5")
        a("s_add_u32 s28, s28, s29")
        a("v_add_u32 v9, s28, v9")
        a("v_lshlrev_b32 v9, 2, v9")
        a(f"v_lshl_add_u32 v{vPA}, v8, 13, v9")
    a("s_nop 7")
    n = 0
    if B21:
        assert ovl
        a("s_lshl_b32 s34, s27, 1")
        a(f"s_mul_i32 s34, s34, {YFB}")
        a(f"s_add_u32 s34, s34, {O['YT']}")
        srd(a, 64, 58, "s34", 2 * YFB)
        a(f"v_lshrrev_b32 v8, 8, v{vL}")
        a(f"v_lshlrev_b32 v9, 13, v8")
        a(f"v_sub_u32 v9, v{vPA}, v9")
        a("v_lshlrev_b32 v8, 2, v8")
        a("v_add_u32 v8, 160, v8")
        for i in range(4):
            a(f"v_add_u32 v10, {i}, v8")
            a("v_add_u32 v11, 160, v10")
            a("v_cmp_gt_u32 vcc, 167, v10")
            a("s_nop 1")
            a("v_cndmask_b32 v11, v11, v10, vcc")
            a("v_cmp_gt_u32 vcc, 174, v10")
            a("v_mov_b32 v12, 0x7ffff")
            a("s_nop 0")
            a("v_cndmask_b32 v11, v12, v11, vcc")
            a(f"v_lshl_add_u32 v{16+i}, v11, 11, v9")
        for i in range(4):
            yr = ACC + ((10 * 2 + 0) * 2 + 0) * 4 + i
            yi = ACC + ((10 * 2 + 0) * 2 + 1) * 4 + i
            a(f"v_cvt_pk_bf16_f32 v{20+i}, v{yr}, v{yi}")
            a(f"buffer_store_dword v{20+i}, v{16+i}, s[64:67], 0 offen{NTF('ntys')}")
    else:
      for rb in range(10 if ovl else 0, 11):
        for i in range(4):
            if i % 2 == 0:
                a(f"s_mov_b32 s38, {(16*rb+i)*2048}")
            for cb in range(2):
                t = 8 + (n % 8); n += 1
                yr = ACC + ((rb * 2 + cb) * 2 + 0) * 4 + i
                yi = ACC + ((rb * 2 + cb) * 2 + 1) * 4 + i
                a(f"v_cvt_pk_bf16_f32 v{t}, v{yr}, v{yi}")
                a(f"buffer_store_dword v{t}, v{vPA}, s[16:19], s38 offen offset:{(i&1)*2048+cb*64}{NTF('ntys')}")
    if OPT.get('stamp'):
        a("s_waitcnt vmcnt(0)")
        a("s_memtime s[76:77]")
        a("s_memrealtime s[78:79]")
        a("s_waitcnt lgkmcnt(0)")
        srd(a, 64, 58, O['ST'] + (1 << 20), 1 << 20)
        if OPT.get('itstamp'):
            srd(a, 68, 58, O['ST'] + (8 << 20), 1 << 20)
            a(f"v_lshrrev_b32 v41, 2, v{vL}")
            a("s_lshl_b32 s38, s2, 2"); a("s_add_u32 s38, s38, s3"); a("s_lshl_b32 s38, s38, 8")
            a("buffer_store_dword v248, v41, s[68:71], s38 offen")
        order = [62, 63, 82, 83] + ([92, 93] if OPT.get('kpre') else [80, 81]) + [94, 95, 86, 87, 78, 79, 88, 89, 90, 91]
        for k, sreg in enumerate(order):
            a(f"v_mov_b32 v{16+k}, s{sreg}")
        a("s_lshl_b32 s38, s2, 3")
        a("s_add_u32 s38, s38, s3")
        a("s_lshl_b32 s38, s38, 6")
        a("v_mov_b32 v40, 0")
        a("s_mov_b64 exec, 1")
        for k in range(4):
            a(f"buffer_store_dwordx4 v[{16+4*k}:{19+4*k}], v40, s[64:67], s38 offen offset:{16*k}")
    a("s_endpgm")
    for ins in slow: emit(ins)

def producer(a, O, OPT):
    WSTR = O['WSTR']
    XR, OPS, WR, ACCW, FH, FL, FW, TMP = 0, 64, 96, 128, 160, 192, 224, 240
    vXL, vXS, vWL, vWS0, vXS0, vWS, vLA, vT = 248, 249, 250, 251, 252, 253, 254, 255
    st = {0: "", 1: " sc1", 2: " sc0 sc1", 3: " sc1 nt"}[OPT.get('stsc1', 1)]
    lo = OPT.get('xlo', 1)
    a("v_and_b32 v64, 15, v2")
    a("v_lshrrev_b32 v65, 4, v2")
    a(f"v_lshlrev_b32 v{vLA}, 4, v2")
    a("s_and_b32 s44, s3, 3")
    a("s_and_b32 s20, s44, 1")
    a("s_lshr_b32 s21, s44, 1")
    a("s_lshl_b32 s22, s2, 1")
    a("s_add_u32 s22, s22, s21")
    a("s_and_b32 s23, s22, 3")
    a("s_lshr_b32 s22, s22, 2")
    a("s_and_b32 s24, s2, 7")
    a("s_lshl_b32 s24, s24, 5")
    a("s_lshr_b32 s25, s2, 3")
    a("s_add_u32 s24, s24, s25")
    a(f"s_cmp_ge_u32 s24, {NT}")
    a("s_cselect_b32 s25, 1, 0")
    a(f"s_mul_i32 s26, s25, {NT}")
    a("s_sub_u32 s24, s24, s26")
    a("s_cmp_eq_u32 s21, 0")
    a("s_cselect_b32 s25, s25, 1")
    a("s_mul_i32 s26, s25, 16384000")
    srd(a, 4, 52, "s26", 16384000)
    srd(a, 8, 54, None, 31 * 524288)
    srd(a, 12, 58, O['XT'] if O['XT'] else None, XT_SIZE)
    srd(a, 16, 58, O['WT'], 128 * WSTR)
    if OPT.get('kpre'):
        srd(a, 60, 58, O['SY'], 32768)
    else:
        a("s_mov_b32 s60, s56"); a("s_and_b32 s61, s57, 0xffff"); a("s_mov_b32 s62, 256"); a("s_mov_b32 s63, 0x00020000")
    a("s_mov_b32 s28, 0x05040100")
    a("s_mov_b32 s29, 0x07060302")
    if OPT.get('stamp'):
        srd(a, 64, 58, O['ST'] + (6 << 20), 1 << 20)
        a("s_lshl_b32 s73, s2, 2")
        a("s_add_u32 s73, s73, s44")
        a("s_lshl_b32 s73, s73, 7")
    a(f"v_lshlrev_b32 v{vXL}, 14, v65")
    a(f"v_lshl_add_u32 v{vXL}, v64, 4, v{vXL}")
    a(f"v_and_b32 v{vWL}, 1, v65")
    a(f"v_lshlrev_b32 v{vWL}, 23, v{vWL}")
    a(f"v_lshl_add_u32 v{vWL}, v64, 4, v{vWL}")
    a("v_lshrrev_b32 v66, 1, v65")
    a(f"s_mov_b32 s26, {2*XFB}")
    a("v_mul_lo_u32 v66, v66, s26")
    a("v_lshrrev_b32 v67, 2, v64")
    a(f"s_mov_b32 s26, {XBLK}")
    a("v_mul_lo_u32 v67, v67, s26")
    a("v_add_u32 v66, v66, v67")
    a(f"v_mov_b32 v{vXS0}, v66")
    a("v_lshrrev_b32 v66, 1, v65")
    a(f"s_mov_b32 s26, {4*WSTR}")
    a("v_mul_lo_u32 v66, v66, s26")
    a("v_and_b32 v67, 1, v65")
    a("v_lshl_add_u32 v66, v67, 8, v66")
    a("v_and_b32 v67, 1, v64")
    a(f"v_lshl_add_u32 v{vWS0}, v67, 4, v66")
    a(f"s_mul_i32 s31, s25, {XFB}")
    a(f"s_mul_i32 s32, s23, {WSTR}")
    a("s_lshl_b32 s33, s23, 8")
    def tile_of(sp):
        a(f"s_mul_i32 s36, s{sp}, 85")
        a("s_add_u32 s36, s36, s2")
        a("s_and_b32 s36, s36, 255")
        a("s_mul_hi_u32 s37, s36, 0x55555556")
        a("s_mul_i32 s38, s37, 3")
        a("s_cmp_eq_u32 s38, s36")
        a("s_cselect_b32 s27, 1, 0")
        a("s_cmp_lt_u32 s37, 78")
        a("s_cselect_b32 s27, s27, 0")
        a(f"s_add_u32 s37, s37, {256 - NT}")
        a("s_cmp_eq_u32 s21, 0")
        a("s_cselect_b32 s30, s24, s37")
        a("s_cselect_b32 s27, 1, s27")
        if OPT.get('wonly'):
            a("s_mov_b32 s27, 0")
    def w_loads(sp):
        a(f"s_lshl_b32 s36, s{sp}, 7")
        a("s_add_u32 s36, s36, s22")
        a("s_lshr_b32 s37, s36, 9")
        a("s_lshl_b32 s37, s37, 19")
        a("s_and_b32 s36, s36, 511")
        a("s_lshl_b32 s36, s36, 10")
        a("s_add_u32 s36, s36, s37")
        a("s_add_u32 s36, s36, s33")
        if OPT.get('pldsame'): a("s_mov_b32 s36, s33")
        if OPT.get('wdedup'): a("s_mov_b64 exec, 0xffffffff")
        for e in range(8 if not OPT.get('pnold') else 0):
            a(f"buffer_load_dwordx4 v[{WR+4*e}:{WR+4*e+3}], v{vWL}, s[8:11], s36 offen{PLF(OPT)}")
            if OPT.get('dspacel'): a(f"s_sleep {OPT['dspacel']}")
            if e < 7: a("s_add_u32 s36, s36, 0x100000")
        if OPT.get('wdedup'): a("s_mov_b64 exec, -1")
    def x_loads(sp):
        a(f"s_lshl_b32 s36, s{sp}, 8")
        a(f"s_mul_i32 s37, s30, {48*2048}")
        a("s_add_u32 s36, s36, s37")
        if OPT.get('pldsame'): a("s_mov_b32 s36, 0")
        for ks in range(2 if not OPT.get('pnold') else 0):
            for e2 in range(4):
                r = XR + 32 * ks + 8 * e2
                a(f"buffer_load_dwordx4 v[{r}:{r+3}], v{vXL}, s[4:7], s36 offen{PLF(OPT)}")
                a(f"buffer_load_dwordx4 v[{r+4}:{r+7}], v{vXL}, s[4:7], s36 offen offset:2048{PLF(OPT)}")
                if OPT.get('dspacel'): a(f"s_sleep {OPT['dspacel']}")
                if not (ks == 1 and e2 == 3):
                    a(f"s_add_u32 s36, s36, {4096 if e2 < 3 else 32*2048 - 3*4096}")
    nsig = [0]
    def signal(sp):
        n = nsig[0]; nsig[0] += 1
        a("s_mov_b32 s34, -1")
        a(f"s_cmp_ge_u32 s{sp}, 8")
        a(f"s_cbranch_scc1 K12_SG{n}")
        if OPT.get('stamp'):
            a("s_memrealtime s[70:71]")
            a("s_waitcnt lgkmcnt(0)")
            a(f"s_lshl_b32 s72, s{sp}, 3")
            a("s_add_u32 s72, s72, s73")
            a("v_mov_b32 v240, s70"); a("v_mov_b32 v241, s71"); a("v_mov_b32 v242, 0")
            a("s_mov_b64 exec, 1")
            a("buffer_store_dwordx2 v[240:241], v242, s[64:67], s72 offen")
            a("s_mov_b64 exec, -1")
        a(f"s_lshl_b32 s36, s{sp}, 2")
        a(f"s_add_u32 s37, s36, {PCNT}")
        a("s_mov_b64 exec, 1")
        a(f"v_mov_b32 v{vT}, s37")
        a(f"v_mov_b32 v{TMP}, 1")
        a(f"ds_add_rtn_u32 v{TMP}, v{vT}, v{TMP}")
        a("s_waitcnt lgkmcnt(0)")
        a(f"v_readfirstlane_b32 s37, v{TMP}")
        a("s_nop 3")
        a("s_cmp_eq_u32 s37, 3")
        a(f"s_cbranch_scc0 K12_SH{n}")
        if OPT.get('wbl2'):
            a("buffer_wbl2 sc1")
            a("s_waitcnt vmcnt(0)")
        if OPT.get('kpre'):
            a("s_lshl_b32 s36, s36, 8")
        a(f"v_mov_b32 v{vT}, 1")
        a(f"v_mov_b32 v{TMP}, s36")
        a(f"buffer_atomic_add v{vT}, v{TMP}, s[60:63], 0 offen sc0 sc1")
        a(f"s_mov_b32 s34, s{sp}")
        a.lab(f"K12_SH{n}")
        a("s_mov_b64 exec, -1")
        a.lab(f"K12_SG{n}")
    def publish():
        n = nsig[0]; nsig[0] += 1
        a("s_cmp_ge_u32 s34, 8")
        a(f"s_cbranch_scc1 K12_PB{n}")
        a(f"v_readfirstlane_b32 s37, v{vT}")
        a("s_nop 3")
        a("s_cmp_eq_u32 s37, 255")
        a(f"s_cbranch_scc0 K12_PB{n}")
        a("s_lshl_b32 s36, s34, 4")
        a(f"s_add_u32 s36, s36, {16384 if OPT.get('kpre') else 128}")
        a("s_mov_b64 exec, 1")
        a(f"v_mov_b32 v{vT}, 1")
        a(f"v_mov_b32 v{TMP}, s36")
        a(f"buffer_store_dword v{vT}, v{TMP}, s[60:63], 0 offen sc1")
        a("s_mov_b64 exec, -1")
        a.lab(f"K12_PB{n}")
    nsub = [0]
    def subgate(rb):
        if not OPT.get('subg', 1) or rb == 0: return
        G = OPT.get('gateg', 17)
        n = nsub[0]; nsub[0] += 1
        a(f"s_cmp_lt_u32 s40, {max(OPT.get('gatep', 3), OPT.get('kpre', 0) + OPT.get('subskip', 1))}")
        a(f"s_cbranch_scc1 K12_UT{n}")
        a("s_lshl_b32 s36, s40, 3")
        a(f"s_sub_i32 s36, s36, {2 * (G - rb * OPT.get('substep', 1)) + 2}")
        a("s_max_i32 s36, s36, 1")
        a(f"s_mov_b32 s37, {SPIN * 8}")
        a.lab(f"K12_UL{n}")
        a(f"v_mov_b32 v{vT}, {SYNC}")
        a(f"ds_read_b32 v{vT}, v{vT}")
        a("s_waitcnt lgkmcnt(0)")
        a(f"v_cmp_gt_u32 vcc, s36, v{vT}")
        a("s_sub_u32 s37, s37, 1")
        a("s_cmp_eq_u32 s37, 0")
        a(f"s_cbranch_scc1 K12_UT{n}")
        a(f"s_cbranch_vccz K12_UT{n}")
        a(f"s_sleep {OPT.get('gsleep', 2)}")
        a(f"s_branch K12_UL{n}")
        a.lab(f"K12_UT{n}")
    def w_compute(sp):
        a(f"s_lshl_b32 s36, s{sp}, 7")
        a("s_add_u32 s36, s36, s22")
        a("s_and_b32 s37, s36, 3")
        a("s_lshr_b32 s38, s36, 1")
        a("s_and_b32 s38, s38, 4")
        a("s_or_b32 s37, s37, s38")
        a(f"v_bfe_u32 v{vWS}, v{vLA}, 5, 3")
        a(f"v_xor_b32 v{vWS}, s37, v{vWS}")
        a(f"v_lshl_add_u32 v{vWS}, v{vWS}, 5, v{vWS0}")
        a("s_lshl_b32 s36, s36, 9")
        a("s_add_u32 s39, s36, s32")
        if OPT.get('plin'):
            a(f"v_mov_b32 v{vWS}, v{vLA}")
            a(f"s_lshl_b32 s39, s{sp}, 10"); a("s_lshl_b32 s36, s2, 2"); a("s_add_u32 s39, s39, s36"); a("s_add_u32 s39, s39, s3"); a("s_lshl_b32 s39, s39, 14"); a("s_and_b32 s39, s39, 0x3ffffff")
        JIT = OPT.get('jit')
        if JIT:
            a(f"s_add_u32 s47, s{sp}, 2")
            a("s_lshl_b32 s36, s47, 7")
            a("s_add_u32 s36, s36, s22")
            a("s_lshr_b32 s37, s36, 9")
            a("s_lshl_b32 s37, s37, 19")
            a("s_and_b32 s36, s36, 511")
            a("s_lshl_b32 s36, s36, 10")
            a("s_add_u32 s36, s36, s37")
            a("s_add_u32 s46, s36, s33")
        njt = [0]
        for rb in range(4):
            subgate(rb)
            if JIT:
                lab = f"K12_JW{rb}_{nsub[0]}_{len(a.l)}"
                a("s_cmp_ge_u32 s47, 8")
                a(f"s_cbranch_scc1 {lab}")
                a(f"v_bfe_u32 v{vT}, v{vLA}, 5, 2")
                a(f"v_lshlrev_b32 v{vT}, 20, v{vT}")
                a(f"v_bfe_u32 v{vXS}, v{vLA}, 4, 1")
                a(f"v_lshl_add_u32 v{vT}, v{vXS}, 7, v{vT}")
                a("s_mov_b64 exec, 0xff")
                a(f"buffer_load_dword v{vXS}, v{vT}, s[8:11], s46 offen")
                a("s_mov_b64 exec, -1")
                a("s_add_u32 s46, s46, 0x400000")
                a.lab(lab)
            if OPT.get('dynprio'): a(f"s_setprio {OPT['dynprio']}")
            for i in range(8 if not OPT.get('pnocomp') else 0):
                a(f"v_mfma_f32_16x16x32_bf16 v[{ACCW+4*i}:{ACCW+4*i+3}], v[{FW+4*rb}:{FW+4*rb+3}], v[{OPS+4*i}:{OPS+4*i+3}], 0")
            if OPT.get('dynprio'): a(f"s_setprio {OPT.get('lowprio', 0)}")
            a("s_nop 7")
            for r in range(4):
                t = TMP + 4 * (r & 1)
                for q in range(4 if not OPT.get('pnocomp') else 0):
                    a(f"v_cvt_pk_bf16_f32 v{t+q}, v{ACCW+4*(2*q)+r}, v{ACCW+4*(2*q+1)+r}")
                if not OPT.get('pnost'): a(f"buffer_store_dwordx4 v[{t}:{t+3}], v{vWS}, s[16:19], s39 offen{st}")
                if OPT.get('dspace'): a(f"s_sleep {OPT['dspace']}")
                if not (rb == 3 and r == 3):
                    a(f"s_add_u32 s39, s39, {1024 if OPT.get('plin') else 2*4*WSTR}")
    def x_compute(sp):
        ACCX = XR + 32
        a(f"s_mul_i32 s39, s{sp}, {4*XBLK}")
        a("s_add_u32 s39, s39, s31")
        a("s_lshl_b32 s36, s30, 7")
        a("s_add_u32 s39, s39, s36")
        a(f"v_bfe_u32 v{vXS}, v{vLA}, 4, 2")
        a(f"v_bfe_u32 v{TMP}, v{vLA}, 8, 1")
        a(f"v_lshl_add_u32 v{vXS}, v{TMP}, 2, v{vXS}")
        if OPT.get('b21'):
            a("s_add_u32 s36, s30, 7")
            a("s_cmp_ge_u32 s30, 160")
            a("s_cselect_b32 s36, s36, s30")
            a("s_cmp_eq_u32 s25, 1")
            a("s_cselect_b32 s36, s36, s30")
            a("s_lshr_b32 s36, s36, 1")
        else:
            a("s_lshr_b32 s36, s30, 1")
        a("s_and_b32 s36, s36, 7")
        a(f"v_xor_b32 v{vXS}, s36, v{vXS}")
        a(f"v_lshl_add_u32 v{vXS}, v{vXS}, 4, v{vXS0}")
        if OPT.get('plin'):
            a(f"s_lshl_b32 s39, s{sp}, 9"); a("s_lshl_b32 s36, s2, 1"); a("s_add_u32 s39, s39, s36"); a("s_add_u32 s39, s39, s21"); a("s_lshl_b32 s39, s39, 14"); a("s_and_b32 s39, s39, 0x1ffffff")
        JIT = OPT.get('jit')
        if JIT:
            a(f"s_add_u32 s47, s{sp}, 2")
            tile_of(47)
            a("s_cmp_lt_u32 s47, 8")
            a("s_cselect_b32 s45, s27, 0")
            a("s_lshl_b32 s36, s47, 8")
            a(f"s_mul_i32 s37, s30, {48*2048}")
            a("s_add_u32 s46, s36, s37")
        for rb in range(4):
            subgate(rb)
            if JIT:
                lab = f"K12_JX{rb}_{nsub[0]}_{len(a.l)}"
                a("s_cmp_eq_u32 s45, 0")
                a(f"s_cbranch_scc1 {lab}")
                a(f"v_bfe_u32 v{vT}, v{vLA}, 4, 4")
                a(f"v_lshlrev_b32 v{vT}, 11, v{vT}")
                a(f"v_bfe_u32 v{vWS}, v{vLA}, 8, 1")
                a(f"v_lshl_add_u32 v{vT}, v{vWS}, 7, v{vT}")
                a("s_mov_b64 exec, 0xffffffff")
                a(f"buffer_load_dword v{vWS}, v{vT}, s[4:7], s46 offen")
                a("s_mov_b64 exec, -1")
                a(f"s_add_u32 s46, s46, {16*2048}")
                a.lab(lab)
            terms = [(FH + (rb * 2) * 4, OPS), (FH + (rb * 2 + 1) * 4, XR)]
            if lo:
                terms = [terms[0], (FL + (rb * 2) * 4, OPS), terms[1], (FL + (rb * 2 + 1) * 4, XR)]
            if OPT.get('dynprio'): a(f"s_setprio {OPT['dynprio']}")
            for ti, (F, ops) in enumerate(terms if not OPT.get('pnocomp') else []):
                for i in range(8):
                    c = "0" if ti == 0 else f"v[{ACCX+4*i}:{ACCX+4*i+3}]"
                    a(f"v_mfma_f32_16x16x32_bf16 v[{ACCX+4*i}:{ACCX+4*i+3}], v[{F}:{F+3}], v[{ops+4*i}:{ops+4*i+3}], {c}")
            if OPT.get('dynprio'): a(f"s_setprio {OPT.get('lowprio', 0)}")
            a("s_nop 7")
            for r in range(4):
                t = TMP + 4 * (r & 1)
                for q in range(4 if not OPT.get('pnocomp') else 0):
                    a(f"v_cvt_pk_bf16_f32 v{t+q}, v{ACCX+4*(2*q)+r}, v{ACCX+4*(2*q+1)+r}")
                if not OPT.get('pnost'): a(f"buffer_store_dwordx4 v[{t}:{t+3}], v{vLA if OPT.get('plin') else vXS}, s[12:15], s39 offen{st}")
                if OPT.get('dspace'): a(f"s_sleep {OPT['dspace']}")
                if not (rb == 3 and r == 3):
                    a(f"s_add_u32 s39, s39, {1024 if OPT.get('plin') else 2*2*XFB}")
    nst = [0]
    def ustamp(slot):
        if not OPT.get('stamp'): return
        n = nst[0]; nst[0] += 1
        a("s_and_b32 s72, s40, 6")
        a(f"s_cmp_eq_u32 s72, {OPT.get('ustph', 4)}")
        a(f"s_cbranch_scc0 K12_US{n}")
        a(f"s_memrealtime s[{74+0}:{75}]")
        a("s_waitcnt lgkmcnt(0)")
        a(f"s_add_u32 s72, s73, {(8+slot)*8}")
        a("v_mov_b32 v240, s74"); a("v_mov_b32 v241, s75"); a("v_mov_b32 v242, 0")
        a("s_mov_b64 exec, 1")
        a("buffer_store_dwordx2 v[240:241], v242, s[64:67], s72 offen")
        a("s_mov_b64 exec, -1")
        a.lab(f"K12_US{n}")
    def eager_publish():
        n = nsig[0]; nsig[0] += 1
        a("s_cmp_ge_u32 s34, 8")
        a(f"s_cbranch_scc1 K12_EP{n}")
        a("s_waitcnt vmcnt(0)")
        publish()
        a("s_mov_b32 s34, -1")
        a.lab(f"K12_EP{n}")
    def early_signal():
        if not OPT.get('early', 1): return
        n = nsig[0]; nsig[0] += 1
        a(f"s_cmp_eq_u32 s41, {OPT.get('kpre', 0) or 1}")
        a(f"s_cbranch_scc0 K12_ES{n}")
        a("s_waitcnt vmcnt(0)")
        signal(41)
        a("s_waitcnt vmcnt(0)")
        publish()
        a("s_mov_b32 s34, -1")
        a("s_mov_b32 s41, -1")
        a.lab(f"K12_ES{n}")
    ngate = [0]
    def gate():
        G = OPT.get('gateg', 17); GP = OPT.get('gatep', 3)
        n = ngate[0]; ngate[0] += 1
        a("s_lshl_b32 s36, s40, 3")
        a(f"s_sub_i32 s36, s36, {2 * G + 2}")
        a("s_max_i32 s36, s36, 1")
        a(f"s_mov_b32 s38, {SYNC}")
        a(f"s_cmp_eq_u32 s40, {1 if not OPT.get('kpre') else 99}")
        a(f"s_cselect_b32 s36, {4 if OPT.get('ord1', 1) else 0}, s36")
        a(f"s_cselect_b32 s38, {ISSUED}, s38")
        a(f"s_cbranch_scc1 K12_GS{n}")
        a(f"s_cmp_lt_u32 s40, {GP}")
        a(f"s_cbranch_scc1 K12_GT{n}")
        a.lab(f"K12_GS{n}")
        a(f"s_mov_b32 s37, {SPIN * 8}")
        a.lab(f"K12_GL{n}")
        a(f"v_mov_b32 v{TMP}, s38")
        a(f"ds_read_b32 v{TMP}, v{TMP}")
        a("s_waitcnt lgkmcnt(0)")
        a(f"v_cmp_gt_u32 vcc, s36, v{TMP}")
        a("s_sub_u32 s37, s37, 1")
        a("s_cmp_eq_u32 s37, 0")
        a(f"s_cbranch_scc1 K12_GT{n}")
        a(f"s_cbranch_vccz K12_GT{n}")
        a(f"s_sleep {OPT.get('gsleep', 2)}")
        a(f"s_branch K12_GL{n}")
        a.lab(f"K12_GT{n}")
    xs = 1 if OPT.get('stamp') else 0
    ntch = [0]
    def touch_block():
        n_ = ntch[0]; ntch[0] += 1
        a(f"v_lshrrev_b32 v128, 4, v{vLA}")
        a("v_lshlrev_b32 v129, 11, v128")
        a("v_lshrrev_b32 v130, 1, v128")
        a("v_lshlrev_b32 v130, 20, v130")
        a("v_and_b32 v131, 1, v128")
        a("v_lshl_add_u32 v130, v131, 7, v130")
        if OPT.get('thalf'):
            a("v_lshlrev_b32 v130, 20, v128")
        a("s_mov_b32 s45, s27"); a("s_mov_b32 s46, s30")
        a("s_add_u32 s47, s40, 1")
        a.lab(f"K12_TCH{n_}")
        a("s_xor_b32 s48, s47, s20")
        a("s_and_b32 s48, s48, 1")
        a("s_cmp_eq_u32 s48, 0")
        a(f"s_cbranch_scc1 K12_TCHW{n_}")
        tile_of(47)
        a("s_cmp_eq_u32 s27, 0")
        a(f"s_cbranch_scc1 K12_TCHN{n_}")
        a("s_lshl_b32 s36, s47, 8")
        a(f"s_mul_i32 s37, s30, {48*2048}")
        a("s_add_u32 s36, s36, s37")
        if OPT.get('touch', 1) in (1, 2):
            a("buffer_load_dword v244, v129, s[4:7], s36 offen")
            if not OPT.get('thalf'): a("buffer_load_dword v245, v129, s[4:7], s36 offen offset:128")
        a(f"s_branch K12_TCHN{n_}")
        a.lab(f"K12_TCHW{n_}")
        a("s_lshl_b32 s36, s47, 7")
        a("s_add_u32 s36, s36, s22")
        a("s_lshr_b32 s37, s36, 9")
        a("s_lshl_b32 s37, s37, 19")
        a("s_and_b32 s36, s36, 511")
        a("s_lshl_b32 s36, s36, 10")
        a("s_add_u32 s36, s36, s37")
        a("s_add_u32 s36, s36, s33")
        a(f"s_mov_b64 exec, {'0xffff' if OPT.get('thalf') else '0xffffffff'}")
        if OPT.get('touch', 1) in (1, 3):
            a("buffer_load_dword v246, v130, s[8:11], s36 offen")
        a("s_mov_b64 exec, -1")
        a.lab(f"K12_TCHN{n_}")
        a("s_add_u32 s47, s47, 1")
        a("s_cmp_lt_u32 s47, 8")
        a(f"s_cbranch_scc1 K12_TCH{n_}")
        a("s_mov_b32 s27, s45"); a("s_mov_b32 s30, s46")
    nadv = [0]
    def advance():
        a("s_mov_b32 s41, s40"); a("s_add_u32 s40, s40, 1")
        if OPT.get('kpre') and OPT.get('touch', 1) and OPT.get('tlate') == 99:
            n_ = nadv[0]; nadv[0] += 1
            a(f"s_cmp_eq_u32 s41, {OPT['kpre']}")
            a(f"s_cbranch_scc0 K12_NT{n_}")
            touch_block()
            a.lab(f"K12_NT{n_}")
        early_signal()
    def gate_at(thr_expr_G, tagn):
        n = ngate[0]; ngate[0] += 1
        a("s_lshl_b32 s36, s40, 3")
        a(f"s_sub_i32 s36, s36, {thr_expr_G}")
        a("s_max_i32 s36, s36, 1")
        a(f"s_mov_b32 s37, {SPIN * 8}")
        a.lab(f"K12_GL{n}")
        a(f"v_mov_b32 v{TMP}, {SYNC}")
        a(f"ds_read_b32 v{TMP}, v{TMP}")
        a("s_waitcnt lgkmcnt(0)")
        a(f"v_cmp_gt_u32 vcc, s36, v{TMP}")
        a("s_sub_u32 s37, s37, 1")
        a("s_cmp_eq_u32 s37, 0")
        a(f"s_cbranch_scc1 K12_GT{n}")
        a(f"s_cbranch_vccz K12_GT{n}")
        a(f"s_sleep {OPT.get('gsleep', 2)}")
        a(f"s_branch K12_GL{n}")
        a.lab(f"K12_GT{n}")
        if OPT.get('pbar'):
            a("s_lshl_b32 s36, s40, 2")
            a(f"s_add_u32 s36, s36, {PBAR}")
            a("s_mov_b64 exec, 1")
            a(f"v_mov_b32 v{TMP}, s36")
            a(f"v_mov_b32 v{TMP+1}, 1")
            a(f"ds_add_u32 v{TMP}, v{TMP+1}")
            a("s_mov_b64 exec, -1")
            a(f"s_mov_b32 s37, {SPIN * 8}")
            a.lab(f"K12_BL{n}")
            a(f"v_mov_b32 v{TMP}, s36")
            a(f"ds_read_b32 v{TMP}, v{TMP}")
            a("s_waitcnt lgkmcnt(0)")
            a(f"v_cmp_gt_u32 vcc, 4, v{TMP}")
            a("s_sub_u32 s37, s37, 1")
            a("s_cmp_eq_u32 s37, 0")
            a(f"s_cbranch_scc1 K12_BT{n}")
            a(f"s_cbranch_vccz K12_BT{n}")
            a("s_sleep 1")
            a(f"s_branch K12_BL{n}")
            a.lab(f"K12_BT{n}")
    LG = OPT.get('lgate', 0)
    def w_phase(tag):
        ustamp(0)
        if LG:
            a("s_waitcnt vmcnt(0)")
            signal(41)
            if not OPT.get('defpub'): eager_publish()
            if OPT.get('gfirst'): gate_at(2 * OPT.get('gateg', 13) + 2, tag)
        interleave_perm(a, WR, OPS, 28, 29, OPT.get('pnocomp'))
        if OPT.get('wdedup'):
            for h in range(4):
                for q in range(8): a(f"v_mov_b32 v{ACCW+q}, v{OPS+8*h+q}")
                a("s_nop 0")
                for q in range(8): a(f"v_permlane32_swap_b32 v{OPS+8*h+q}, v{ACCW+q}")
        if LG and not OPT.get('gfirst'): gate_at(2 * OPT.get('gateg', 13) + 2, tag)
        a("s_add_u32 s42, s40, 1")
        tile_of(42)
        a("s_cmp_eq_u32 s27, 0")
        a(f"s_cbranch_scc1 {tag}_N")
        x_loads(42)
        ustamp(1)
        if not LG: a(f"s_waitcnt vmcnt({16 + xs})")
        a(f"s_branch {tag}_M")
        a.lab(f"{tag}_N")
        if not LG: a("s_waitcnt vmcnt(0)")
        a.lab(f"{tag}_M")
        if not LG:
            signal(41)
            eager_publish()
            gate()
        ustamp(2)
        w_compute(40)
        ustamp(3)
        advance()
        a("s_waitcnt vmcnt(16)")
        publish()
    def x_phase(tag):
        ustamp(4)
        if LG:
            a("s_waitcnt vmcnt(0)")
            signal(41)
            if not OPT.get('defpub'): eager_publish()
            if OPT.get('gfirst'): gate_at(2 * OPT.get('gateg', 13) + 2, tag)
        a("s_cmp_eq_u32 s27, 0")
        a(f"s_cbranch_scc1 {tag}_N")
        interleave_perm(a, XR, OPS, 28, 29, OPT.get('pnocomp'))
        interleave_perm(a, XR + 32, XR, 28, 29, OPT.get('pnocomp'))
        a.lab(f"{tag}_N")
        if LG and not OPT.get('gfirst'): gate_at(2 * OPT.get('gateg', 13) + 2, tag)
        a("s_add_u32 s42, s40, 1")
        w_loads(42)
        ustamp(5)
        if not LG:
            a(f"s_waitcnt vmcnt({8 + xs})")
            signal(41)
            eager_publish()
        a("s_cmp_eq_u32 s27, 0")
        a(f"s_cbranch_scc1 {tag}_E")
        if not LG: gate()
        ustamp(6)
        x_compute(40)
        ustamp(7)
        advance()
        a("s_waitcnt vmcnt(16)")
        a(f"s_branch {tag}_F")
        a.lab(f"{tag}_E")
        advance()
        a("s_waitcnt vmcnt(0)")
        a.lab(f"{tag}_F")
        publish()

    KP = OPT.get('kpre', 0)
    if KP:
        a(f"s_mov_b32 s40, {KP}")
    else:
        a("s_lshr_b32 s40, s3, 2")
    a("s_xor_b32 s43, s40, s20")
    a("s_and_b32 s43, s43, 1")
    tile_of(40)
    a("s_cmp_eq_u32 s43, 0")
    a("s_cbranch_scc0 K12_PL1")
    w_loads(40)
    a("s_branch K12_PL2")
    a.lab("K12_PL1")
    a("s_cmp_eq_u32 s27, 0")
    a("s_cbranch_scc1 K12_PL2")
    x_loads(40)
    a.lab("K12_PL2")
    if KP and OPT.get('touch', 1) and not OPT.get('tlate'):
        touch_block()
    if OPT.get('stamp'):
        a("s_memrealtime s[84:85]")
    if KP:
        table_params(a, 64, 44, 128, 129, 130)
        a("v_lshlrev_b32 v131, 3, v65")
        for ks in range(1 if OPT.get('tsplit') else 2):
            if ks: a("v_add_u32 v131, 32, v131")
            a("v_lshlrev_b32 v132, 5, v129")
            a("v_mad_u32_u24 v133, v128, v131, v132")
            trig(a, 128, 133, 136, 144, 148, 152)
            a("s_lshl_b32 s37, s44, 12")
            a(f"s_add_u32 s37, s37, {TABX + ks*2048}")
            a(f"v_add_u32 v132, s37, v{vLA}")
            a("ds_write_b128 v132, v[144:147]")
            a("ds_write_b128 v132, v[148:151] offset:1024")
    else:
        table_params(a, 64, 44, 128, 129, 130)
        a("v_lshlrev_b32 v131, 3, v65")
        a("s_lshr_b32 s36, s3, 2")
        a("s_lshl_b32 s37, s36, 5")
        a("v_add_u32 v131, s37, v131")
        a("v_lshlrev_b32 v132, 5, v129")
        a("v_mad_u32_u24 v133, v128, v131, v132")
        trig(a, 128, 133, 136, 144, 148, 152)
        a("s_lshl_b32 s37, s44, 12")
        a("s_lshl_b32 s36, s36, 11")
        a("s_add_u32 s37, s37, s36")
        a(f"v_add_u32 v132, s37, v{vLA}")
        a(f"ds_write_b128 v132, v[144:147] offset:{TABX}")
        a(f"ds_write_b128 v132, v[148:151] offset:{TABX + 1024}")
        a("s_cmp_ge_u32 s3, 4")
        a("s_cbranch_scc1 K12_TB")
        a("v_and_b32 v131, 1, v65")
        a("v_lshlrev_b32 v131, 3, v131")
        a("v_mul_u32_u24 v132, 96, v129")
        a("v_mad_u32_u24 v133, v128, v131, v132")
        trig(a, 128, 133, 136, 144, 148, 152)
        a("v_cmp_lt_u32 vcc, 1, v65")
        a("s_lshl_b32 s37, s44, 10")
        a(f"v_add_u32 v132, s37, v{vLA}")
        for q in range(4):
            a(f"v_cndmask_b32 v{144+q}, v{144+q}, v{148+q}, vcc")
        a(f"ds_write_b128 v132, v[144:147] offset:{TABW}")
        a("v_mov_b32 v136, 0"); a("v_mov_b32 v137, 0"); a("v_mov_b32 v138, 0"); a("v_mov_b32 v139, 0")
        a(f"s_mul_i32 s36, s44, {SB2}")
        a(f"s_add_u32 s36, s36, {167*128}")
        a(f"v_add_u32 v132, s36, v{vLA}")
        a("ds_write_b128 v132, v[136:139]")
        a("s_mov_b64 exec, 0xff")
        a("ds_write_b128 v132, v[136:139] offset:1024")
        a("s_mov_b64 exec, -1")
        a("s_lshl_b32 s36, s44, 2")
        a(f"s_add_u32 s36, s36, {SYNC}")
        a("v_mov_b32 v132, s36")
        a("ds_write_b32 v132, v136")
        a("s_lshl_b32 s36, s44, 3")
        a(f"s_add_u32 s36, s36, {PCNT}")
        a("v_mov_b32 v132, s36")
        a("ds_write_b64 v132, v[136:137]")
        a("s_lshl_b32 s36, s44, 3")
        a(f"s_add_u32 s36, s36, {MIRROR}")
        a("v_mov_b32 v132, s36")
        a("ds_write_b64 v132, v[136:137]")
        a(f"v_mov_b32 v132, {ISSUED}")
        a("ds_write_b32 v132, v136")
        a(f"v_mov_b32 v132, {ONES}")
        a("v_mov_b32 v133, 1")
        a("ds_write_b32 v132, v133")
    a.lab("K12_TB")
    a("s_waitcnt lgkmcnt(0)")
    a("s_barrier")
    if OPT.get('stamp'):
        a("s_memrealtime s[86:87]")
    a(f"v_add_u32 v{vT}, {TABX}, v{vLA}")
    for fr in range(8):
        a(f"ds_read_b128 v[{FH+4*fr}:{FH+4*fr+3}], v{vT} offset:{(fr>>1)*4096 + (fr&1)*2048}")
        a(f"ds_read_b128 v[{FL+4*fr}:{FL+4*fr+3}], v{vT} offset:{(fr>>1)*4096 + (fr&1)*2048 + 1024}")
        if fr == 3: a("s_waitcnt lgkmcnt(0)")
    for rb in range(4):
        a(f"ds_read_b128 v[{FW+4*rb}:{FW+4*rb+3}], v{vT} offset:{16384 + rb*1024}")
    if KP:
        a("s_waitcnt lgkmcnt(0)")
        a("s_barrier")
    a("s_waitcnt vmcnt(0) lgkmcnt(0)")
    if OPT.get('stamp'):
        a("s_memrealtime s[88:89]")
    a("s_mov_b32 s41, -1")
    a("s_mov_b32 s34, -1")
    if not KP:
        a("s_cmp_lt_u32 s3, 4")
        a("s_cbranch_scc0 K12_PROD")
        a("s_cmp_eq_u32 s43, 0")
        a("s_cbranch_scc0 K12_H1")
        interleave_perm(a, WR, OPS, 28, 29, OPT.get('pnocomp'))
        w_compute(40)
        a("s_branch K12_H2")
        a.lab("K12_H1")
        a("s_cmp_eq_u32 s27, 0")
        a("s_cbranch_scc1 K12_H2")
        interleave_perm(a, XR, OPS, 28, 29, OPT.get('pnocomp'))
        interleave_perm(a, XR + 32, XR, 28, 29, OPT.get('pnocomp'))
        x_compute(40)
        a.lab("K12_H2")
        a("s_mov_b64 exec, 1")
        a(f"v_mov_b32 v{vT}, {ISSUED}")
        a(f"v_mov_b32 v{OPS}, 1")
        a(f"ds_add_u32 v{vT}, v{OPS}")
        a("s_mov_b64 exec, -1")
        if OPT.get('stamp'):
            a("s_memrealtime s[90:91]")
        a("s_waitcnt vmcnt(0)")
        if OPT.get('stamp'):
            a("s_memrealtime s[92:93]")
            a("s_waitcnt lgkmcnt(0)")
            srd(a, 68, 58, O['ST'] + (7 << 20), 1 << 20)
            for k in range(10):
                a(f"v_mov_b32 v{128+k}, s{84+k}")
            a("v_mov_b32 v138, s82"); a("v_mov_b32 v139, s83"); a("v_mov_b32 v140, 0")
            a("s_lshl_b32 s72, s2, 2"); a("s_add_u32 s72, s72, s3"); a("s_lshl_b32 s72, s72, 6")
            a("s_mov_b64 exec, 1")
            for k in range(3):
                a(f"buffer_store_dwordx4 v[{128+4*k}:{131+4*k}], v140, s[68:71], s72 offen offset:{16*k}")
            a("s_mov_b64 exec, -1")
        a("s_mov_b32 s41, 0")
        signal(41)
        a("s_waitcnt vmcnt(0)")
        publish()
        if OPT.get('stamp'):
            a("s_memrealtime s[80:81]")
        a("s_branch K12_CONS")
    a.lab("K12_PROD")
    if KP and OPT.get('touch', 1) and OPT.get('tlate') and OPT.get('tlate') != 99:
        a(f"s_mov_b32 s37, {SPIN * 8}")
        a.lab("K12_TW")
        a(f"v_mov_b32 v{TMP}, {SYNC}")
        a(f"ds_read_b32 v{TMP}, v{TMP}")
        a("s_waitcnt lgkmcnt(0)")
        a(f"v_cmp_gt_u32 vcc, {OPT.get('tlate')}, v{TMP}")
        a("s_sub_u32 s37, s37, 1")
        a("s_cmp_eq_u32 s37, 0")
        a("s_cbranch_scc1 K12_TX")
        a("s_cbranch_vccz K12_TX")
        a("s_sleep 2")
        a("s_branch K12_TW")
        a.lab("K12_TX")
        touch_block()
    if OPT.get('noprod') == 1:
        a("s_endpgm")
    if OPT.get('noprod') == 2:
        a("s_mov_b32 s37, 4000")
        a.lab("K12_IDLE")
        a("s_sleep 64")
        a(f"v_mov_b32 v{TMP}, {SYNC}")
        a(f"ds_read_b32 v{TMP}, v{TMP}")
        a("s_waitcnt lgkmcnt(0)")
        a(f"v_cmp_gt_u32 vcc, 34, v{TMP}")
        a("s_sub_u32 s37, s37, 1")
        a("s_cmp_eq_u32 s37, 0")
        a("s_cbranch_scc1 K12_IDLE_X")
        a("s_cbranch_vccnz K12_IDLE")
        a.lab("K12_IDLE_X")
        a("s_endpgm")
    if OPT.get('pprio', 1) and not OPT.get('dynprio'):
        a(f"s_setprio {OPT.get('pprio', 1)}")
    a("s_cmp_eq_u32 s43, 0")
    a("s_cbranch_scc1 K12_WENTRY")
    a.lab("K12_XW")
    x_phase("K12_XP")
    a("s_cmp_ge_u32 s40, 8")
    a("s_cbranch_scc1 K12_PFIN")
    a.lab("K12_WENTRY")
    w_phase("K12_WP")
    a("s_cmp_lt_u32 s40, 8")
    a("s_cbranch_scc1 K12_XW")
    a.lab("K12_PFIN")
    a("s_waitcnt vmcnt(0)")
    signal(41)
    a("s_waitcnt vmcnt(0)")
    publish()
    a("s_endpgm")


def k1mix(a, O, OPT):
    WSTR = O['WSTR']; KP = OPT['kpre']; lo = OPT.get('xlo', 1)
    NWG = 256 * KP
    TX, TW = 0, (16384 if lo else 8192)
    a.raw(".p2align 8")
    a.raw(".type k1_xform_kernel,@function")
    a.lab("k1_xform_kernel")
    a(f"s_cmp_ge_u32 s2, {NWG}")
    a("s_cbranch_scc1 K1_END")
    stamp_begin(a)
    a("s_load_dwordx4 s[4:7], s[0:1], 0")
    a("s_load_dwordx2 s[8:9], s[0:1], 48")
    a("v_lshrrev_b32 v120, 6, v0")
    a("v_and_b32 v121, 63, v0")
    a("v_readfirstlane_b32 s3, v120")
    a("v_and_b32 v122, 15, v121")
    a("v_lshrrev_b32 v123, 4, v121")
    a("v_lshlrev_b32 v121, 4, v121")
    a("s_mov_b32 s28, 0x05040100")
    a("s_mov_b32 s29, 0x07060302")
    if OPT.get('kaorder', 0) == 0:
        a("s_lshr_b32 s40, s2, 8")
        a("s_and_b32 s41, s2, 255")
    else:
        a(f"s_mul_hi_u32 s41, s2, {(2**32 + KP - 1) // KP}")
        a(f"s_mul_i32 s40, s41, {KP}")
        a("s_sub_u32 s40, s2, s40")
    a("s_and_b32 s20, s3, 1")
    a("s_lshr_b32 s21, s3, 1")
    a("s_xor_b32 s43, s40, s20")
    a("s_and_b32 s43, s43, 1")
    a("s_waitcnt lgkmcnt(0)")
    a("s_or_b32 s10, s2, s3")
    a("s_cmp_eq_u32 s10, 0")
    a("s_cbranch_scc0 K1_NOCLR")
    srd(a, 12, 8, O['SY'], 32768)
    a("v_lshrrev_b32 v118, 4, v121")
    a("v_lshlrev_b32 v119, 10, v118")
    a("v_mov_b32 v117, 0")
    a("s_mov_b64 exec, 0xffff")
    a("buffer_store_dword v117, v119, s[12:15], 0 offen")
    a("v_lshlrev_b32 v119, 4, v118")
    a("v_add_u32 v119, 16384, v119")
    a("buffer_store_dword v117, v119, s[12:15], 0 offen")
    a("s_mov_b64 exec, -1")
    a.lab("K1_NOCLR")
    if OPT.get('k34'):
        a("s_cmp_lt_u32 s2, 32")
        a("s_cbranch_scc0 K1_NOFILL")
        srd(a, 12, 8, O['PART'], 256 * 512)
        a("s_lshl_b32 s10, s2, 2")
        a("s_add_u32 s10, s10, s3")
        a("s_lshl_b32 s10, s10, 10")
        for k in range(4): a(f"v_mov_b32 v{112+k}, -1")
        a("buffer_store_dwordx4 v[112:115], v121, s[12:15], s10 offen")
        a.lab("K1_NOFILL")
    a("s_cmp_eq_u32 s43, 0")
    a("s_cbranch_scc1 K1_WL")
    a("s_and_b32 s24, s41, 7")
    a("s_lshl_b32 s24, s24, 5")
    a("s_lshr_b32 s25, s41, 3")
    a("s_add_u32 s24, s24, s25")
    a("s_mul_i32 s36, s40, 85")
    a("s_add_u32 s36, s36, s41")
    a("s_and_b32 s36, s36, 255")
    a("s_mul_hi_u32 s37, s36, 0x55555556")
    a("s_mul_i32 s38, s37, 3")
    a("s_cmp_eq_u32 s38, s36")
    a("s_cselect_b32 s27, 1, 0")
    a("s_cmp_lt_u32 s37, 78")
    a("s_cselect_b32 s27, s27, 0")
    a("s_add_u32 s37, s37, 256")
    a("s_cmp_eq_u32 s21, 0")
    a("s_cselect_b32 s24, s24, s37")
    a("s_cselect_b32 s27, 1, s27")
    a(f"s_cmp_ge_u32 s24, {NT}")
    a("s_cselect_b32 s13, 1, 0")
    a(f"s_mul_i32 s26, s13, {NT}")
    a("s_sub_u32 s11, s24, s26")
    a("s_mul_i32 s14, s13, 16384000")
    srd(a, 16, 4, "s14", 16384000)
    srd(a, 20, 8, O['XT'] if O['XT'] else None, XT_SIZE)
    a("v_lshlrev_b32 v126, 14, v123")
    a("v_lshl_add_u32 v126, v122, 4, v126")
    a(f"s_mul_i32 s15, s11, {48*2048}")
    a("s_lshl_b32 s24, s40, 8")
    a("s_add_u32 s15, s15, s24")
    a("s_cmp_eq_u32 s27, 0")
    a("s_cbranch_scc1 K1_TAB")
    for ks in range(2):
        for e2 in range(4):
            r = 32 * ks + 8 * e2
            a(f"buffer_load_dwordx4 v[{r}:{r+3}], v126, s[16:19], s15 offen")
            a(f"buffer_load_dwordx4 v[{r+4}:{r+7}], v126, s[16:19], s15 offen offset:2048")
            if not (ks == 1 and e2 == 3):
                a(f"s_add_u32 s15, s15, {4096 if e2 < 3 else 32*2048 - 3*4096}")
    a("s_branch K1_TAB")
    a.lab("K1_WL")
    a("s_lshl_b32 s22, s41, 1")
    a("s_add_u32 s22, s22, s21")
    a("s_and_b32 s44, s22, 3")
    a("s_lshr_b32 s22, s22, 2")
    a("s_lshl_b32 s11, s40, 7")
    a("s_add_u32 s11, s11, s22")
    srd(a, 16, 6, None, 31 * 524288)
    srd(a, 20, 8, O['WT'], 128 * WSTR)
    a("s_lshr_b32 s12, s11, 9")
    a("s_and_b32 s13, s11, 511")
    a("s_lshl_b32 s14, s12, 19")
    a("s_lshl_b32 s15, s13, 10")
    a("s_add_u32 s14, s14, s15")
    a("s_lshl_b32 s15, s44, 8")
    a("s_add_u32 s15, s14, s15")
    a("v_and_b32 v126, 1, v123")
    a("v_lshlrev_b32 v126, 23, v126")
    a("v_lshl_add_u32 v126, v122, 4, v126")
    for e in range(8):
        a(f"buffer_load_dwordx4 v[{4*e}:{4*e+3}], v126, s[16:19], s15 offen")
        if e < 7: a("s_add_u32 s15, s15, 0x100000")
    a.lab("K1_TAB")
    table_params(a, 122, 3, 124, 125, 112, st=10)
    a("v_lshlrev_b32 v127, 3, v123")
    for ks in range(2):
        if ks: a("v_add_u32 v127, 32, v127")
        a("v_lshlrev_b32 v112, 5, v125")
        a("v_mad_u32_u24 v113, v124, v127, v112")
        trig(a, 124, 113, 64, 72, 76, 80)
        a(f"s_lshl_b32 s10, s3, {12 if lo else 11}")
        a("v_add_u32 v114, s10, v121")
        if lo:
            a(f"ds_write_b128 v114, v[72:75] offset:{TX + ks*2048}")
            a(f"ds_write_b128 v114, v[76:79] offset:{TX + ks*2048 + 1024}")
        else:
            a(f"ds_write_b128 v114, v[72:75] offset:{TX + ks*1024}")
    a("v_and_b32 v127, 1, v123")
    a("v_lshlrev_b32 v127, 3, v127")
    a("v_mul_u32_u24 v112, 96, v125")
    a("v_mad_u32_u24 v113, v124, v127, v112")
    trig(a, 124, 113, 64, 72, 76, 80)
    a("v_cmp_lt_u32 vcc, 1, v123")
    a("s_lshl_b32 s10, s3, 10")
    a("v_add_u32 v114, s10, v121")
    for q in range(4):
        a(f"v_cndmask_b32 v{72+q}, v{72+q}, v{76+q}, vcc")
    a(f"ds_write_b128 v114, v[72:75] offset:{TW}")
    a("s_waitcnt lgkmcnt(0)")
    a("s_barrier")
    a("s_cmp_eq_u32 s43, 0")
    a("s_cbranch_scc1 K1_WC")
    a("s_cmp_eq_u32 s27, 0")
    a("s_cbranch_scc1 K1_END")
    a("v_lshrrev_b32 v112, 1, v123")
    a(f"s_mov_b32 s24, {2*XFB}")
    a("v_mul_lo_u32 v112, v112, s24")
    a("v_lshrrev_b32 v113, 2, v122")
    a(f"s_mov_b32 s24, {XBLK}")
    a("v_mul_lo_u32 v113, v113, s24")
    a("v_add_u32 v112, v112, v113")
    a("v_and_b32 v113, 3, v122")
    a("v_and_b32 v114, 1, v123")
    a("v_lshl_add_u32 v113, v114, 2, v113")
    if OPT.get('b21'):
        a("s_add_u32 s24, s11, 7")
        a("s_cmp_ge_u32 s11, 160")
        a("s_cselect_b32 s24, s24, s11")
        a("s_cmp_eq_u32 s13, 1")
        a("s_cselect_b32 s24, s24, s11")
        a("s_lshr_b32 s24, s24, 1")
    else:
        a("s_lshr_b32 s24, s11, 1")
    a("s_and_b32 s24, s24, 7")
    a("v_xor_b32 v113, s24, v113")
    a("v_lshl_add_u32 v120, v113, 4, v112")
    a(f"s_mul_i32 s25, s13, {XFB}")
    a(f"s_mul_i32 s24, s40, {4*XBLK}")
    a("s_add_u32 s25, s25, s24")
    a("s_lshl_b32 s24, s11, 7")
    a("s_add_u32 s25, s25, s24")
    if OPT.get('mixlin'):
        a("v_mov_b32 v120, v121"); a("s_lshl_b32 s25, s2, 2"); a("s_add_u32 s25, s25, s3"); a("s_lshl_b32 s25, s25, 14"); a("s_and_b32 s25, s25, 0x1ffffff")
    a("s_waitcnt vmcnt(8)")
    interleave_perm(a, 0, 64, 28, 29)
    a("s_waitcnt vmcnt(0)")
    stamp_mid(a)
    interleave_perm(a, 32, 0, 28, 29)
    for rb in range(4):
        nfr = 4 if lo else 2
        for fr in range(nfr):
            off = TX + (rb*4096 + fr*1024 if lo else rb*2048 + fr*1024)
            a(f"ds_read_b128 v[{96+4*fr}:{99+4*fr}], v121 offset:{off}")
        for term in range(nfr):
            a(f"s_waitcnt lgkmcnt({nfr-1-term})")
            ops = (64 if term < 2 else 0) if lo else (64 if term == 0 else 0)
            for i in range(8):
                c = "0" if term == 0 else f"v[{32+4*i}:{35+4*i}]"
                a(f"v_mfma_f32_16x16x32_bf16 v[{32+4*i}:{35+4*i}], v[{96+4*term}:{99+4*term}], v[{ops+4*i}:{ops+4*i+3}], {c}")
        a("s_nop 7")
        for r in range(4):
            t = 112 + 4 * (r & 1)
            for q in range(4):
                a(f"v_cvt_pk_bf16_f32 v{t+q}, v{32+4*(2*q)+r}, v{32+4*(2*q+1)+r}")
            a(f"buffer_store_dwordx4 v[{t}:{t+3}], v120, s[20:23], s25 offen")
            if not (rb == 3 and r == 3):
                a(f"s_add_u32 s25, s25, {1024 if OPT.get('mixlin') else 2*2*XFB}")
    stamp_end(a, O, 0)
    a("s_endpgm")
    a.lab("K1_WC")
    a("v_lshrrev_b32 v112, 1, v123")
    a(f"s_mov_b32 s24, {4*WSTR}")
    a("v_mul_lo_u32 v112, v112, s24")
    a("v_and_b32 v113, 1, v123")
    a("v_lshl_add_u32 v112, v113, 8, v112")
    a("v_and_b32 v113, 1, v122")
    a("v_lshl_add_u32 v124, v113, 4, v112")
    a("v_lshrrev_b32 v125, 1, v122")
    a("s_and_b32 s30, s11, 3")
    a("s_lshr_b32 s24, s11, 1")
    a("s_and_b32 s24, s24, 4")
    a("s_or_b32 s30, s30, s24")
    a("v_xor_b32 v112, s30, v125")
    a("v_lshl_add_u32 v120, v112, 5, v124")
    a(f"s_mul_i32 s25, s44, {WSTR}")
    a("s_lshl_b32 s24, s11, 9")
    a("s_add_u32 s25, s25, s24")
    for rb in range(4):
        a(f"ds_read_b128 v[{96+4*rb}:{99+4*rb}], v121 offset:{TW + rb*1024}")
    a("s_waitcnt vmcnt(0) lgkmcnt(0)")
    stamp_mid(a)
    interleave_perm(a, 0, 32, 28, 29)
    a("s_nop 1")
    for rb in range(4):
        for i in range(8):
            a(f"v_mfma_f32_16x16x32_bf16 v[{64+4*i}:{67+4*i}], v[{96+4*rb}:{99+4*rb}], v[{32+4*i}:{35+4*i}], 0")
        a("s_nop 7")
        for r in range(4):
            t = 112 + 4 * (r & 1)
            for q in range(4):
                a(f"v_cvt_pk_bf16_f32 v{t+q}, v{64+4*(2*q)+r}, v{64+4*(2*q+1)+r}")
            a(f"buffer_store_dwordx4 v[{t}:{t+3}], v120, s[20:23], s25 offen")
            if not (rb == 3 and r == 3):
                a(f"s_add_u32 s25, s25, {2*4*WSTR}")
    stamp_end(a, O, 0)
    a.lab("K1_END")
    a("s_endpgm")
    return ("k1_xform_kernel", NWG, 256, TW + 4096, 128)
```

```python
import sys

NAME = "standalone__self_sup_conv_stem_wavlm__speech"

T2 = 8000
L = 7985
V = 48
NT = 167
XBLK = NT * 128
XFB = 32 * XBLK
XT_SIZE = 64 * XFB
YFB = NT * 2048
YT_SIZE = 64 * YFB

OPT = dict(fused=1, kpre=3, subg=1, gateg=11, k34=1, xlo=1, lgate=1, b21=1, tlate=2, pbar=1, dynprio=1, cpf1=2, xsplit=1, wpad=0, cpw=1, xfirst=1, ntx=0, ntw=0, ntxs=0, ntws=0, ntk2=0, ntys=2, ntyl=0, nto=2)
def NTF(k): return {0: '', 1: ' nt', 2: ' sc1', 3: ' sc0 sc1'}[OPT.get(k, 0)]

class A:
    def __init__(self):
        self.l = []
    def __call__(self, s):
        self.l.append("    " + s)
    def lab(self, s):
        self.l.append(s + ":")
    def raw(self, s):
        self.l.append(s)
    def c(self, s):
        self.l.append("    ; " + s)
    def text(self):
        return "\n".join(self.l) + "\n"

def vr(a, n=1):
    return f"v{a}" if n == 1 else f"v[{a}:{a+n-1}]"
def sr(a, n=1):
    return f"s{a}" if n == 1 else f"s[{a}:{a+n-1}]"

def srd(a, s, base, off, size):
    if off is None:
        a(f"s_mov_b32 s{s}, s{base}")
        a(f"s_mov_b32 s{s+1}, s{base+1}")
    else:
        a(f"s_add_u32 s{s}, s{base}, {off}")
        a(f"s_addc_u32 s{s+1}, s{base+1}, 0")
    a(f"s_and_b32 s{s+1}, s{s+1}, 0xffff")
    a(f"s_mov_b32 s{s+2}, {size}")
    a(f"s_mov_b32 s{s+3}, 0x00020000")

def trig(a, vA, vM0, T, hi, lo, tmp, scale=None):
    if OPT.get('k1nocomp'): return
    for e in range(8):
        a(f"v_mad_u32_u24 v{T+e}, v{vA}, {e}, v{vM0}")
    trig_core(a, T, hi, lo, tmp, scale)

def trig_core(a, T, hi, lo, tmp, scale=None):
    for e in range(8):
        a(f"v_and_b32 v{T+e}, 127, v{T+e}")
    for e in range(8):
        a(f"v_cvt_f32_u32 v{T+e}, v{T+e}")
    for e in range(8):
        a(f"v_mul_f32 v{T+e}, 0x3c000000, v{T+e}")
    for e in range(8):
        a(f"v_cos_f32 v{T+e}, v{T+e}")
    a("s_nop 0")
    if scale is not None:
        for e in range(8):
            a(f"v_mul_f32 v{T+e}, {scale}, v{T+e}")
    for q in range(4):
        a(f"v_cvt_pk_bf16_f32 v{hi+q}, v{T+2*q}, v{T+2*q+1}")
    for q in range(4):
        a(f"v_lshlrev_b32 v{tmp}, 16, v{hi+q}")
        a(f"v_and_b32 v{tmp+1}, 0xffff0000, v{hi+q}")
        a(f"v_sub_f32 v{T+2*q}, v{T+2*q}, v{tmp}")
        a(f"v_sub_f32 v{T+2*q+1}, v{T+2*q+1}, v{tmp+1}")
    for q in range(4):
        a(f"v_cvt_pk_bf16_f32 v{lo+q}, v{T+2*q}, v{T+2*q+1}")

def interleave_perm(a, raw, ops, sLo, sHi, skip=False):
    if OPT.get('k1nocomp') or skip: return
    for q in range(4):
        for m in range(4):
            r0 = raw + 4 * (2 * m) + q
            r1 = raw + 4 * (2 * m + 1) + q
            a(f"v_perm_b32 v{ops+4*(2*q)+m}, v{r1}, v{r0}, s{sLo}")
            a(f"v_perm_b32 v{ops+4*(2*q+1)+m}, v{r1}, v{r0}, s{sHi}")

def stamp_begin(a):
    if OPT.get('stamp'):
        a("s_memtime s[64:65]")
        a("s_memrealtime s[66:67]")
        a("s_load_dwordx2 s[76:77], s[0:1], 48")
        a("s_lshl_b32 s78, s2, 4")

def stamp_mid(a):
    if OPT.get('stamp'):
        a("s_memrealtime s[80:81]")

def stamp_end(a, O, kidx):
    if OPT.get('stamp'):
        a("s_waitcnt vmcnt(0) lgkmcnt(0)")
        a("s_memtime s[68:69]")
        a("s_memrealtime s[70:71]")
        a("s_waitcnt lgkmcnt(0)")
        srd(a, 72, 76, O['ST'] + (2 << 20) + kidx * (1 << 20), 1 << 20)
        a("s_mov_b32 s64, s80")
        a("s_mov_b32 s65, s81")
        for k in range(8):
            a(f"v_mov_b32 v{16+k}, s{64+k}")
        a("s_add_u32 s78, s78, s3")
        a("s_lshl_b32 s78, s78, 5")
        a("v_mov_b32 v30, 0")
        a("s_mov_b64 exec, 1")
        for k in range(2):
            a(f"buffer_store_dwordx4 v[{16+4*k}:{19+4*k}], v30, s[72:75], s78 offen offset:{16*k}")

def code_prefetch(a, entry, tag, vtid=0, tmp=8, nwaves=8, dest=63, rounds=None):
    if not OPT.get('cpf', 1): return
    a(f"s_getpc_b64 s[90:91]")
    a.lab(f"CPF_{tag}")
    a(f"s_sub_u32 s90, s90, CPF_{tag}-{entry}")
    a("s_subb_u32 s91, s91, 0")
    per = nwaves * 64 * 128
    a(f"v_lshlrev_b32 v{tmp}, 7, v{vtid}")
    a(f"v_mov_b32 v{tmp+3}, s91")
    rounds = rounds or OPT.get('cpfn', 1)
    for r in range(rounds):
        a(f"v_min_u32 v{tmp+1}, TEXT_END-{entry}-4, v{tmp}")
        a(f"v_add_co_u32 v{tmp+2}, vcc, s90, v{tmp+1}")
        a(f"v_addc_co_u32 v{tmp+3}, vcc, 0, v{tmp+3}, vcc")
        a(f"global_load_dword v{dest}, v[{tmp+2}:{tmp+3}], off")
        if r + 1 < rounds:
            a(f"v_mov_b32 v{tmp+3}, s91")
            a(f"v_add_u32 v{tmp}, {per}, v{tmp}")

def layout():
    O = {}
    O['WSTR'] = 524288 + OPT['wpad']
    O['XT'] = 0
    O['WT'] = 48 << 20
    O['YT'] = O['WT'] + ((128 * O['WSTR'] + (1 << 20) - 1) >> 20 << 20) + (1 << 20)
    O['ST'] = O['YT'] + (24 << 20)
    O['PART'] = O['ST'] + (9 << 20) + (1 << 19)
    O['SY'] = O['ST'] + (9 << 20)
    assert O['ST'] + (10 << 20) <= (256 << 20)
    return O

def k1(a, O):
    CPW = OPT['cpw']
    KP = OPT.get('kpre', 0) or 8
    NW = 128 * KP // CPW
    if OPT.get('wonly'): KP = 8
    if OPT.get('kx'): KP = OPT['kx']
    NX = 2 * KP * 42
    WSTR = O['WSTR']
    a.raw(".p2align 8")
    a.raw(".type k1_xform_kernel,@function")
    a.lab("k1_xform_kernel")
    a(f"s_cmp_ge_u32 s2, {NW+NX}")
    a("s_cbranch_scc1 K1_END")
    stamp_begin(a)
    a("s_load_dwordx4 s[4:7], s[0:1], 0")
    a("s_load_dwordx2 s[8:9], s[0:1], 48")
    if OPT.get('cpf1') == 1:
        code_prefetch(a, "k1_xform_kernel", "K1", 0, 8, 4)
    if OPT.get('cpf1') == 2:
        a("s_cmp_lt_u32 s2, 8")
        a("s_cbranch_scc0 K1_NOCPF")
        code_prefetch(a, "k1_xform_kernel", "K1", 0, 8, 4, rounds=2)
        a.lab("K1_NOCPF")
    a("v_lshrrev_b32 v120, 6, v0")
    a("v_and_b32 v121, 63, v0")
    a("v_readfirstlane_b32 s3, v120")
    a("v_and_b32 v122, 15, v121")
    a("v_lshrrev_b32 v123, 4, v121")
    a("s_mov_b32 s28, 0x05040100")
    a("s_mov_b32 s29, 0x07060302")
    a("v_and_b32 v124, 3, v122")
    a("v_lshlrev_b32 v124, 2, v124")
    a("v_lshrrev_b32 v125, 3, v122")
    a("v_lshl_add_u32 v124, v125, 1, v124")
    a("s_lshl_b32 s10, s3, 4")
    a("s_add_u32 s10, s10, 1")
    a("v_add_u32 v124, s10, v124")
    a("v_bfe_u32 v125, v122, 2, 1")
    a("v_lshlrev_b32 v121, 4, v121")
    a("s_waitcnt lgkmcnt(0)")
    if OPT.get('fused') and OPT.get('kpre'):
        a("s_or_b32 s10, s2, s3")
        a("s_cmp_eq_u32 s10, 0")
        a("s_cbranch_scc0 K1_NOCLR")
        srd(a, 12, 8, O['SY'], 32768)
        a("v_lshrrev_b32 v118, 4, v121")
        a("v_lshlrev_b32 v119, 10, v118")
        a("v_mov_b32 v117, 0")
        a("s_mov_b64 exec, 0xffff")
        a("buffer_store_dword v117, v119, s[12:15], 0 offen")
        a("v_lshlrev_b32 v119, 4, v118")
        a("v_add_u32 v119, 16384, v119")
        a("buffer_store_dword v117, v119, s[12:15], 0 offen")
        a("s_mov_b64 exec, -1")
        a.lab("K1_NOCLR")
    if OPT.get('k34'):
        a("s_cmp_lt_u32 s2, 32")
        a("s_cbranch_scc0 K1_NOFILL")
        srd(a, 12, 8, O['PART'], 256 * 512)
        a("s_lshl_b32 s10, s2, 2")
        a("s_add_u32 s10, s10, s3")
        a("s_lshl_b32 s10, s10, 10")
        for k in range(4): a(f"v_mov_b32 v{112+k}, -1")
        a("buffer_store_dwordx4 v[112:115], v121, s[12:15], s10 offen")
        a.lab("K1_NOFILL")
    if OPT.get('xfirst'):
        a(f"s_add_u32 s10, s2, {NW}")
        a(f"s_sub_u32 s11, s2, {NX}")
        a(f"s_cmp_lt_u32 s2, {NX}")
        a("s_cselect_b32 s2, s10, s11")
    a(f"s_cmp_lt_u32 s2, {NW}")
    if OPT.get('skipw'):
        a("s_cbranch_scc1 K1_END")
    else:
        a("s_cbranch_scc1 K1_W")
    if OPT.get('skipx'):
        a("s_endpgm")

    a.c("x-type workgroup: 4 consecutive tiles, one 128-channel group")
    a(f"s_sub_u32 s11, s2, {NW}")
    if KP & (KP - 1) == 0:
        a(f"s_and_b32 s12, s11, {KP - 1}")
        a(f"s_lshr_b32 s11, s11, {KP.bit_length() - 1}")
    else:
        a(f"s_mul_hi_u32 s13, s11, {(2**32 + KP - 1) // KP}")
        a(f"s_mul_i32 s12, s13, {KP}")
        a("s_sub_u32 s12, s11, s12")
        a("s_mov_b32 s11, s13")
    a("s_cmp_ge_u32 s11, 42")
    a("s_cselect_b32 s13, 1, 0")
    a("s_mul_i32 s14, s13, 42")
    a("s_sub_u32 s11, s11, s14")
    a("s_lshl_b32 s11, s11, 2")
    a("s_add_u32 s11, s11, s3")
    a("s_mul_i32 s14, s13, 16384000")
    srd(a, 16, 4, "s14", 16384000)
    srd(a, 20, 8, O['XT'] if O['XT'] else None, XT_SIZE)
    a("v_lshlrev_b32 v126, 14, v123")
    a("v_lshl_add_u32 v126, v122, 4, v126")
    a(f"s_mul_i32 s15, s11, {48*2048}")
    a("s_lshl_b32 s24, s12, 8")
    a("s_add_u32 s15, s15, s24")
    for ks in range(2):
        for e2 in range(4):
            e = 2 * e2
            r = 32 * ks + 4 * e
            if not OPT.get('k1nold'):
                a(f"buffer_load_dwordx4 v[{r}:{r+3}], v126, s[16:19], s15 offen{NTF('ntx')}")
                a(f"buffer_load_dwordx4 v[{r+4}:{r+7}], v126, s[16:19], s15 offen offset:2048{NTF('ntx')}")
            if not (ks == 1 and e2 == 3):
                a(f"s_add_u32 s15, s15, {4096 if e2 < 3 else 32*2048 - 3*4096}")
    if OPT.get('katouch') and OPT.get('kpre'):
        KP_ = OPT['kpre']; nl = (8 - KP_) * 2; tot = 48 * nl; per = (tot + KP_ - 1) // KP_
        a("v_lshrrev_b32 v112, 4, v121")
        a(f"s_mul_i32 s24, s12, {per}")
        a("v_add_u32 v112, s24, v112")
        a(f"s_mul_i32 s26, s11, {48*2048}")
        a(f"s_add_u32 s26, s26, {KP_*256}")
        a(f"s_mov_b32 s27, {(2**32 + nl - 1) // nl}")
        for k in range((per + 63) // 64):
            a("v_mul_hi_u32 v113, v112, s27")
            a(f"v_mul_u32_u24 v114, {nl}, v113")
            a("v_sub_u32 v114, v112, v114")
            a("v_lshlrev_b32 v113, 11, v113")
            a("v_lshl_add_u32 v113, v114, 7, v113")
            a(f"s_add_u32 s25, s24, {per}")
            a(f"s_min_u32 s25, s25, {tot}")
            a("v_cmp_gt_u32 vcc, s25, v112")
            a("s_nop 1")
            a("s_and_saveexec_b64 s[30:31], vcc")
            a(f"s_cbranch_execz K1_XT{k}")
            a("buffer_load_dword v119, v113, s[16:19], s26 offen")
            a.lab(f"K1_XT{k}")
            a("s_mov_b64 exec, s[30:31]")
            a("v_add_u32 v112, 64, v112")
    a("v_lshlrev_b32 v127, 3, v123")
    for ks in range(2):
        if ks == 1:
            a("v_add_u32 v127, 32, v127")
        a("v_lshlrev_b32 v112, 5, v125")
        a("v_mad_u32_u24 v113, v124, v127, v112")
        trig(a, 124, 113, 64, 72, 76, 80)
        a(f"s_lshl_b32 s24, s3, 12")
        a(f"v_add_u32 v114, s24, v121")
        a(f"ds_write_b128 v114, v[72:75] offset:{ks*2048}")
        a(f"ds_write_b128 v114, v[76:79] offset:{ks*2048+1024}")
    a("v_lshrrev_b32 v112, 1, v123")
    a(f"s_mov_b32 s24, {2*XFB}")
    a("v_mul_lo_u32 v112, v112, s24")
    a("v_lshrrev_b32 v113, 2, v122")
    a(f"s_mov_b32 s24, {XBLK}")
    a("v_mul_lo_u32 v113, v113, s24")
    a("v_add_u32 v112, v112, v113")
    a("v_and_b32 v113, 3, v122")
    a("v_and_b32 v114, 1, v123")
    a("v_lshl_add_u32 v113, v114, 2, v113")
    if OPT.get('b21'):
        a("s_add_u32 s24, s11, 7")
        a("s_cmp_ge_u32 s11, 160")
        a("s_cselect_b32 s24, s24, s11")
        a("s_cmp_eq_u32 s13, 1")
        a("s_cselect_b32 s24, s24, s11")
        a("s_lshr_b32 s24, s24, 1")
    else:
        a("s_lshr_b32 s24, s11, 1")
    a("s_and_b32 s24, s24, 7")
    a("v_xor_b32 v113, s24, v113")
    a("v_lshl_add_u32 v120, v113, 4, v112")
    a(f"s_mul_i32 s25, s13, {XFB}")
    a(f"s_mul_i32 s24, s12, {4*XBLK}")
    a("s_add_u32 s25, s25, s24")
    a("s_lshl_b32 s24, s11, 7")
    a("s_add_u32 s25, s25, s24")
    if OPT.get('k1lin'):
        a("v_mov_b32 v120, v121")
        a(f"s_sub_u32 s25, s2, {NW}")
        a("s_lshl_b32 s25, s25, 2")
        a("s_add_u32 s25, s25, s3")
        a("s_lshl_b32 s25, s25, 14")
    a("s_waitcnt lgkmcnt(0)")
    a("s_barrier")
    a(f"s_cmp_ge_u32 s11, {NT}")
    a("s_cbranch_scc1 K1_END")
    a("s_waitcnt vmcnt(8)")
    interleave_perm(a, 0, 64, 28, 29)
    a("s_waitcnt vmcnt(0)")
    stamp_mid(a)
    interleave_perm(a, 32, 0, 28, 29)
    for rb in range(4):
        for fr in range(4):
            a(f"ds_read_b128 v[{96+4*fr}:{99+4*fr}], v121 offset:{rb*4096+fr*1024}")
        for term in range(4):
            a(f"s_waitcnt lgkmcnt({3-term})")
            ops = 64 if term < 2 else 0
            for i in range(8 if not OPT.get('k1nocomp') else 0):
                c = "0" if term == 0 else f"v[{32+4*i}:{35+4*i}]"
                a(f"v_mfma_f32_16x16x32_bf16 v[{32+4*i}:{35+4*i}], v[{96+4*term}:{99+4*term}], v[{ops+4*i}:{ops+4*i+3}], {c}")
        a("s_nop 7")
        for r in range(4):
            t = 112 + 4 * (r & 1)
            for q in range(4 if not OPT.get('k1nocomp') else 1):
                a(f"v_cvt_pk_bf16_f32 v{t+q}, v{32+4*(2*q)+r}, v{32+4*(2*q+1)+r}")
            if not OPT.get('k1nost'):
                a(f"buffer_store_dwordx4 v[{t}:{t+3}], v120, s[20:23], s25 offen{NTF('ntxs')}")
            if not (rb == 3 and r == 3):
                a(f"s_add_u32 s25, s25, {1024 if OPT.get('k1lin') else 2*2*XFB}")
    stamp_end(a, O, 0)
    a("s_endpgm")

    a.lab("K1_W")
    a.c("w-type workgroup: CPW consecutive input channels c', wave = column quarter nq")
    srd(a, 16, 6, None, 31 * 524288)
    srd(a, 20, 8, O['WT'], 128 * WSTR)
    a(f"s_mul_i32 s11, s2, {CPW}")
    a("s_lshr_b32 s12, s11, 9")
    a("s_and_b32 s13, s11, 511")
    a("s_lshl_b32 s14, s12, 19")
    a("s_lshl_b32 s15, s13, 10")
    a("s_add_u32 s14, s14, s15")
    a("s_lshl_b32 s15, s3, 8")
    a("s_add_u32 s14, s14, s15")
    a("v_and_b32 v126, 1, v123")
    a("v_lshlrev_b32 v126, 23, v126")
    a("v_lshl_add_u32 v126, v122, 4, v126")
    def wloads():
        a("s_mov_b32 s15, s14")
        for e in range(8):
            if not OPT.get('k1nold'):
                a(f"buffer_load_dwordx4 v[{4*e}:{4*e+3}], v126, s[16:19], s15 offen{NTF('ntw')}")
            if e < 7:
                a("s_add_u32 s15, s15, 0x100000")
    wloads()
    if OPT.get('katouch') and OPT.get('kpre'):
        KP_ = OPT['kpre']
        a("v_lshrrev_b32 v112, 4, v121")
        a("v_lshrrev_b32 v113, 1, v112")
        a("v_lshlrev_b32 v113, 20, v113")
        a("v_and_b32 v114, 1, v112")
        a("v_lshl_add_u32 v113, v114, 7, v113")
        a(f"s_add_u32 s24, s11, {128*KP_}")
        a.lab("K1_WT")
        a("s_lshr_b32 s25, s24, 9")
        a("s_lshl_b32 s25, s25, 19")
        a("s_and_b32 s26, s24, 511")
        a("s_lshl_b32 s26, s26, 10")
        a("s_add_u32 s25, s25, s26")
        a("s_lshl_b32 s26, s3, 8")
        a("s_add_u32 s25, s25, s26")
        a("s_mov_b64 exec, 0xffffffff")
        a("buffer_load_dword v119, v113, s[16:19], s25 offen")
        a("s_mov_b64 exec, -1")
        a(f"s_add_u32 s24, s24, {128*KP_}")
        a("s_cmp_lt_u32 s24, 1024")
        a("s_cbranch_scc1 K1_WT")
    a("v_and_b32 v127, 1, v123")
    a("v_lshlrev_b32 v127, 3, v127")
    a("v_mul_u32_u24 v112, 96, v125")
    a("v_mad_u32_u24 v113, v124, v127, v112")
    trig(a, 124, 113, 64, 72, 76, 80)
    a("v_cmp_lt_u32 vcc, 1, v123")
    a("s_lshl_b32 s24, s3, 10")
    a("v_add_u32 v114, s24, v121")
    for q in range(4):
        a(f"v_cndmask_b32 v{72+q}, v{72+q}, v{76+q}, vcc")
    a("ds_write_b128 v114, v[72:75]")
    a("v_lshrrev_b32 v112, 1, v123")
    a(f"s_mov_b32 s24, {4*WSTR}")
    a("v_mul_lo_u32 v112, v112, s24")
    a("v_and_b32 v113, 1, v123")
    a("v_lshl_add_u32 v112, v113, 8, v112")
    a("v_and_b32 v113, 1, v122")
    a("v_lshl_add_u32 v124, v113, 4, v112")
    a("v_lshrrev_b32 v125, 1, v122")
    a(f"s_mul_i32 s26, s3, {WSTR}")
    a("s_lshl_b32 s24, s11, 9")
    a("s_add_u32 s26, s26, s24")
    a("s_waitcnt lgkmcnt(0)")
    a("s_barrier")
    for rb in range(4):
        a(f"ds_read_b128 v[{96+4*rb}:{99+4*rb}], v121 offset:{rb*1024}")
    a("s_mov_b32 s27, 0")
    a("s_waitcnt vmcnt(0) lgkmcnt(0)")
    stamp_mid(a)
    a.lab("K1_W_LOOP")
    a("s_add_u32 s24, s11, s27")
    a("s_and_b32 s30, s24, 3")
    a("s_lshr_b32 s24, s24, 1")
    a("s_and_b32 s24, s24, 4")
    a("s_or_b32 s30, s30, s24")
    a("v_xor_b32 v112, s30, v125")
    a("v_lshl_add_u32 v120, v112, 5, v124")
    a("s_lshl_b32 s25, s27, 9")
    a("s_add_u32 s25, s25, s26")
    if OPT.get('k1lin'):
        a("v_mov_b32 v120, v121")
        a(f"s_add_u32 s25, s11, s27")
        a("s_lshl_b32 s25, s25, 2")
        a("s_add_u32 s25, s25, s3")
        a("s_lshl_b32 s25, s25, 14")
    interleave_perm(a, 0, 32, 28, 29)
    a("s_add_u32 s27, s27, 1")
    a("s_add_u32 s14, s14, 1024")
    a(f"s_cmp_ge_u32 s27, {CPW}")
    a("s_cbranch_scc1 K1_W_NOLOAD")
    wloads()
    a.lab("K1_W_NOLOAD")
    for rb in range(4):
        for i in range(8 if not OPT.get('k1nocomp') else 0):
            a(f"v_mfma_f32_16x16x32_bf16 v[{64+4*i}:{67+4*i}], v[{96+4*rb}:{99+4*rb}], v[{32+4*i}:{35+4*i}], 0")
        a("s_nop 7")
        for r in range(4):
            t = 112 + 4 * (r & 1)
            for q in range(4 if not OPT.get('k1nocomp') else 1):
                a(f"v_cvt_pk_bf16_f32 v{t+q}, v{64+4*(2*q)+r}, v{64+4*(2*q+1)+r}")
            if not OPT.get('k1nost'):
                a(f"buffer_store_dwordx4 v[{t}:{t+3}], v120, s[20:23], s25 offen{NTF('ntws')}")
            if not (rb == 3 and r == 3):
                a(f"s_add_u32 s25, s25, {1024 if OPT.get('k1lin') else 2*4*WSTR}")
    a("s_waitcnt vmcnt(16)")
    a(f"s_cmp_lt_u32 s27, {CPW}")
    a("s_cbranch_scc1 K1_W_LOOP")
    stamp_end(a, O, 0)
    a.lab("K1_END")
    a("s_endpgm")
    return NW + NX

def descriptor(a, name, vgpr, sgpr=96):
    a.raw(".p2align 6")
    a.raw(f".amdhsa_kernel {name}")
    a.raw(f"  .amdhsa_next_free_vgpr {vgpr}")
    a.raw(f"  .amdhsa_next_free_sgpr {sgpr}")
    a.raw(f"  .amdhsa_accum_offset {min(256, (vgpr+3)//4*4)}")
    a.raw("  .amdhsa_group_segment_fixed_size 0")
    a.raw("  .amdhsa_kernarg_size 56")
    a.raw("  .amdhsa_user_sgpr_count 2")
    a.raw("  .amdhsa_user_sgpr_kernarg_segment_ptr 1")
    a.raw("  .amdhsa_system_sgpr_workgroup_id_x 1")
    a.raw(".end_amdhsa_kernel")

HEADER = """; Kernarg layout for this problem (56 bytes, ptrs only, base s[0:1]):
"""

def main():
    out = NAME + ".s"
    for arg in sys.argv[1:]:
        if "=" in arg:
            k, v = arg.split("=")
            OPT[k] = int(v)
        else:
            out = arg
    O = layout()
    import kernels2
    a = A()
    body = A()
    launches = []
    if OPT.get('fused'):
        import kernels4
        import gen as _g
        _g.OPT.update(OPT)
        if OPT.get('kpre') and OPT.get('kamix', 0):
            launches.append(kernels4.k1mix(body, O, OPT))
        elif OPT.get('kpre'):
            g1 = k1(body, O)
            launches.append(("k1_xform_kernel", g1, 256, OPT.get('k1lds', 16384), 128))
        launches.append(kernels4.k12(body, O, OPT))
        launches += kernels2.emit(body, O, OPT)
    else:
        g1 = k1(body, O)
        launches.append(("k1_xform_kernel", g1, 256, OPT.get('k1lds', 16384), 128))
        launches += kernels2.emit(body, O, OPT)
    only = OPT.get('only', 0)
    a.raw(HEADER.rstrip("\n"))
    for (n, g, b, lds, v) in launches:
        a.raw(f"; @launch kernel={n} grid=({g},1,1) block=({b},1,1) lds={lds}")
    a.raw('.amdgcn_target "amdgcn-amd-amdhsa--gfx950"')
    a.raw(".text")
    for (n, g, b, lds, v) in launches:
        a.raw(f".globl {n}")
    body.lab("TEXT_END")
    txt = a.text() + body.text()
    d = A()
    d.raw('.section .rodata,"a"')
    for (n, g, b, lds, v) in launches:
        descriptor(d, n, v)
    txt += d.text()
    open(out, "w").write(txt)
    print("wrote", out, len(txt), "bytes;", {k: hex(v) for k, v in O.items()})

if __name__ == "__main__":
    main()
```

```python
from gen import *
import gen
from kernels3 import BOFF2, SB2, NBUF2, SYNC

PCNT = SYNC + 32
ISSUED = SYNC + 16
MIRROR = SYNC + 64
ONES = MIRROR + 32
DUMMY = MIRROR + 64
PBAR = DUMMY + 64
LDS12 = PBAR + 32
TABX = 0
TABW = 16384
SPIN = 16384

def k12(a, O, OPT):
    global TABX, TABW
    WSTR = O['WSTR']
    if OPT.get('kpre'):
        TABX = 3 * SB2
        TABW = TABX + 16384
    a.raw(".p2align 8")
    a.raw(".type k12_fused_kernel,@function")
    a.lab("k12_fused_kernel")
    a("s_cmp_ge_u32 s2, 256")
    a("s_cbranch_scc1 K12_END")
    a("s_load_dwordx4 s[52:55], s[0:1], 0")
    a("s_load_dwordx4 s[56:59], s[0:1], 40")
    code_prefetch(a, "k12_fused_kernel", "K12", 0, 8, 8)
    if OPT.get('stamp'):
        a("s_memtime s[80:81]")
        a("s_memrealtime s[82:83]")
    a("v_lshrrev_b32 v1, 6, v0")
    a("v_and_b32 v2, 63, v0")
    a("v_readfirstlane_b32 s3, v1")
    a("s_waitcnt lgkmcnt(0)")
    if OPT.get('kpre'):
        a("s_cmp_lt_u32 s3, 4")
        a("s_cbranch_scc1 K12_CONS")
    producer(a, O, OPT)
    a.lab("K12_CONS")
    consumer(a, O, OPT)
    a.lab("K12_END")
    a("s_endpgm")
    return ("k12_fused_kernel", 256, 512, LDS12, 256)

def PLF(OPT):
    return {0: "", 1: " sc1", 2: " nt", 3: " sc1 nt", 4: " sc0 sc1"}[OPT.get('plf', 0)]

def table_params(a, vRho, sRb, vA, vRi, tmp, st=36):
    a(f"v_and_b32 v{vA}, 3, v{vRho}")
    a(f"v_lshlrev_b32 v{vA}, 2, v{vA}")
    a(f"v_lshrrev_b32 v{tmp}, 3, v{vRho}")
    a(f"v_lshl_add_u32 v{vA}, v{tmp}, 1, v{vA}")
    a(f"s_lshl_b32 s{st}, s{sRb}, 4")
    a(f"s_add_u32 s{st}, s{st}, 1")
    a(f"v_add_u32 v{vA}, s{st}, v{vA}")
    a(f"v_bfe_u32 v{vRi}, v{vRho}, 2, 1")

def lds_init(a, sw, vLane16, z):
    for k in range(4): a(f"v_mov_b32 v{z+k}, 0")
    a(f"s_mul_i32 s28, s{sw}, {SB2}")
    if gen.OPT.get('b21'):
        a(f"s_add_u32 s28, s28, {174*128}")
        a(f"v_add_u32 v{z+4}, s28, v{vLane16}")
        a("s_mov_b64 exec, 0xffff")
        a(f"ds_write_b128 v{z+4}, v[{z}:{z+3}]")
        a("s_mov_b64 exec, -1")
    else:
        a(f"s_add_u32 s28, s28, {167*128}")
        a(f"v_add_u32 v{z+4}, s28, v{vLane16}")
        a(f"ds_write_b128 v{z+4}, v[{z}:{z+3}]")
        a("s_mov_b64 exec, 0xff")
        a(f"ds_write_b128 v{z+4}, v[{z}:{z+3}] offset:1024")
        a("s_mov_b64 exec, -1")
    for base, sh, wide in ((SYNC, 2, False), (PCNT, 3, True), (MIRROR, 3, True), (PBAR, 3, True)):
        a(f"s_lshl_b32 s28, s{sw}, {sh}")
        a(f"s_add_u32 s28, s28, {base}")
        a(f"v_mov_b32 v{z+4}, s28")
        a(f"ds_write_b64 v{z+4}, v[{z}:{z+1}]" if wide else f"ds_write_b32 v{z+4}, v{z}")
    a(f"v_mov_b32 v{z+4}, {ISSUED}")
    a(f"ds_write_b32 v{z+4}, v{z}")
    a(f"v_mov_b32 v{z+4}, {ONES}")
    a(f"v_mov_b32 v{z+5}, 1")
    a(f"ds_write_b32 v{z+4}, v{z+5}")

def consumer(a, O, OPT):
    WSTR = O['WSTR']
    AF, BP, BQ, NW, ACC = 8, 40, 56, 72, 80
    vT, vL, vAr, vAi, vB, vPA, vWA = 0, 1, 2, 3, 4, 5, 7
    sc = " sc1" if OPT.get('dmasc1', 1) else ""
    a("s_and_b32 s6, s2, 7")
    a("s_lshl_b32 s6, s6, 2")
    a("s_lshr_b32 s7, s2, 6")
    a("s_add_u32 s6, s6, s7")
    a("s_mov_b32 s51, s6")
    a("s_mov_b32 s27, s6")
    a("s_lshr_b32 s7, s2, 3")
    a("s_and_b32 s7, s7, 7")
    a("s_lshr_b32 s20, s7, 2")
    a("s_and_b32 s21, s7, 3")
    a("s_lshl_b32 s22, s6, 1")
    a("s_add_u32 s22, s22, s20")
    a("s_lshl_b32 s23, s6, 2")
    a("s_add_u32 s23, s23, s21")
    a(f"s_mul_i32 s24, s22, {XFB}")
    a(f"s_mul_i32 s25, s23, {WSTR}")
    a(f"s_add_u32 s25, s25, {O['WT']}")
    a(f"s_mul_i32 s26, s22, {YFB}")
    a(f"s_add_u32 s26, s26, {O['YT']}")
    if O['XT']:
        a(f"s_add_u32 s24, s24, {O['XT']}")
    srd(a, 8, 58, "s24", XFB)
    srd(a, 12, 58, "s25", 524288)
    srd(a, 16, 58, "s26", YFB)
    if OPT.get('kpre'):
        a(f"s_add_u32 s4, s58, {O['SY'] + 16384}")
        a("s_addc_u32 s5, s59, 0")
    else:
        a("s_add_u32 s4, s56, 128")
        a("s_addc_u32 s5, s57, 0")
    a("s_and_b32 s5, s5, 0xffff")
    a("s_cmp_eq_u32 s3, 0")
    a("s_cselect_b32 s6, 128, 0")
    a("s_mov_b32 s7, 0x00020000")
    a(f"s_mov_b32 s46, {MIRROR}")
    a(f"s_cselect_b32 s46, s46, {DUMMY}")
    a(f"s_mov_b32 s47, {MIRROR}")
    a(f"s_cselect_b32 s47, s47, {ONES}")
    a("s_cselect_b32 s45, 4, 0")
    a("s_mov_b32 s50, s45")
    KP = OPT.get('kpre', 0)
    if not KP:
        a(f"v_lshrrev_b32 v2, 4, v254")
    a("v_and_b32 v8, 15, v2")
    a("v_lshrrev_b32 v9, 4, v2")
    a(f"v_lshlrev_b32 v{vL}, 4, v2")
    a("s_mul_i32 s30, s3, 5120")
    a("s_mov_b32 s36, s30")
    a("s_lshl_b32 s31, s3, 12")
    a(f"s_add_u32 s37, s31, {BOFF2}")
    B21 = OPT.get('b21', 0)
    if B21:
        a("s_lshr_b32 s28, s3, 1")
        a("s_and_b32 s29, s3, 1")
        a("s_lshl_b32 s33, s29, 9")
        a("s_add_u32 s33, s33, 20480")
        a("s_mul_i32 s38, s28, 896")
        a("s_add_u32 s38, s38, s33")
        a("s_lshl_b32 s34, s6x, 1".replace("s6x", "s51"))
        a("s_add_u32 s34, s34, s28")
        a(f"s_mul_i32 s34, s34, {XFB}")
        if O['XT']: a(f"s_add_u32 s34, s34, {O['XT']}")
        srd(a, 64, 58, "s34", XFB)
        a("s_mov_b32 s44, 0xffffff")
        a("s_cmp_eq_u32 s29, 0")
        a("s_cselect_b32 s44, -1, s44")
        a("s_mov_b32 s45, 0")
    else:
      a("s_lshl_b32 s33, s3, 8")
      a("s_add_u32 s33, s33, 20480")
      a("s_mov_b32 s38, s33")
      a("s_mov_b32 s44, 0xffff")
    if not B21:
      a("s_cmp_eq_u32 s3, 3")
      a("s_cselect_b32 s44, 0xff, s44")
      a("s_mov_b32 s45, 0")
    def dma_groups(sbuf):
        g = []
        g.append([f"s_add_u32 m0, s{sbuf}, s36", "s_nop 0", f"buffer_load_dwordx4 v{vL}, s[8:11], s30 offen{sc} lds"])
        for k in range(1, 4):
            g.append([f"buffer_load_dwordx4 v{vL}, s[8:11], s30 offen offset:{1024*k}{sc} lds"])
        g.append(["s_add_u32 m0, m0, 4096", "s_add_u32 s34, s30, 4096", f"buffer_load_dwordx4 v{vL}, s[8:11], s34 offen{sc} lds"])
        g.append([f"s_add_u32 m0, s{sbuf}, s37", f"s_add_u32 s30, s30, {XBLK}", f"buffer_load_dwordx4 v{vL}, s[12:15], s31 offen{sc} lds"])
        for k in range(1, 4):
            g.append([f"buffer_load_dwordx4 v{vL}, s[12:15], s31 offen offset:{1024*k}{sc} lds"])
        g.append([f"s_add_u32 m0, s{sbuf}, s38", "s_mov_b64 exec, s[44:45]",
                  f"buffer_load_dwordx4 v{vL}, {'s[64:67]' if B21 else 's[8:11]'}, s33 offen{sc} lds", "s_mov_b64 exec, -1",
                  "s_add_u32 s31, s31, 16384", f"s_add_u32 s33, s33, {XBLK}"])
        return g
    def mirror_dma():
        return ["s_mov_b32 m0, s46", "s_mov_b64 exec, 0xff", f"buffer_load_dword v{vL}, s[4:7], 0 offen sc1 lds", "s_mov_b64 exec, -1"]
    a("v_lshrrev_b32 v10, 1, v8")
    a("v_xor_b32 v10, v10, v9")
    a("v_lshlrev_b32 v10, 4, v10")
    a(f"v_lshl_add_u32 v{vAr}, v8, 7, v10")
    a(f"v_xor_b32 v{vAi}, 64, v{vAr}")
    a("v_lshrrev_b32 v10, 2, v8")
    a("v_lshl_add_u32 v11, v9, 3, v10")
    a("v_lshlrev_b32 v11, 9, v11")
    a("v_and_b32 v12, 1, v9")
    a("v_lshl_or_b32 v10, v12, 2, v10")
    a("s_lshl_b32 s28, s3, 1")
    a("v_xor_b32 v10, s28, v10")
    a("v_lshl_add_u32 v11, v10, 5, v11")
    a("v_and_b32 v10, 3, v8")
    a("v_lshl_add_u32 v11, v10, 3, v11")
    a(f"v_add_u32 v{vB}, {BOFF2}, v11")
    if B21:
        a("s_lshl_b32 s28, s20, 5")
        a(f"v_xor_b32 v{vB}, s28, v{vB}")
    a("v_and_b32 v10, 3, v8")
    a("v_lshlrev_b32 v10, 2, v10")
    a(f"v_add_u32 v{vPA}, {SYNC}, v10")
    a("s_lshl_b32 s28, s3, 2")
    a(f"s_add_u32 s28, s28, {SYNC}")
    a(f"v_mov_b32 v{vWA}, s28")
    a("s_mov_b32 s35, 0x80008000")

    slow = []
    nlab = [0]
    def flag_wait_loop(lab, saddr, back):
        r = [f"{lab}:", f"s_mov_b32 s61, {SPIN}", "s_add_u32 s63, s63, 1", f"{lab}_L:"] + mirror_dma() + ["s_waitcnt vmcnt(0)",
             f"v_mov_b32 v{vT}, s{saddr}", f"ds_read_b32 v{vT}, v{vT}", "s_waitcnt lgkmcnt(0)",
             f"v_cmp_eq_u32 vcc, 0, v{vT}", "s_sub_u32 s61, s61, 1", "s_cmp_eq_u32 s61, 0",
             f"s_cbranch_scc1 {lab}_X", f"s_cbranch_vccz {lab}_X", f"s_sleep {OPT.get('fsleep', 2)}", f"s_branch {lab}_L", f"{lab}_X:"]
        if back: r.append(f"s_branch {back}")
        return r
    def emit(ins):
        if ins.endswith(":"): a.lab(ins[:-1])
        else: a(ins)
    def poll_slow(vP, sv=40):
        n = nlab[0]; nlab[0] += 1
        slow.extend([f"K12_S{n}:", f"s_mov_b32 s61, {SPIN}", "s_add_u32 s62, s62, 1", f"K12_S{n}_L:", f"ds_read_b32 v{vP}, v{vPA}", "s_waitcnt lgkmcnt(0)",
                     f"v_cmp_gt_u32 vcc, s{sv}, v{vP}", "s_sub_u32 s61, s61, 1", "s_cmp_eq_u32 s61, 0", f"s_cbranch_scc1 K12_Q{n}",
                     f"s_cbranch_vccz K12_Q{n}"] + ([f"s_sleep {OPT['lsleep']}"] if OPT.get('lsleep') else []) + [f"s_branch K12_S{n}_L"])
        return n
    a("s_mov_b32 s62, 0"); a("s_mov_b32 s63, 0")
    if OPT.get('noncons'):
        a("s_endpgm")
    if KP:
        pre_prologue = True
    else:
      for r in range(176):
        a(f"v_mov_b32 v{ACC+r}, 0")
      for ins in flag_wait_loop("K12_W0", 47, None): emit(ins)
    if not KP:
        a("s_mov_b32 s40, 1")
        a(f"v_mov_b32 v{vT}, s40")
        a(f"ds_write_b32 v{vWA}, v{vT}")
        n0 = poll_slow(BQ)
        a(f"s_branch K12_S{n0}")
        a.lab(f"K12_Q{n0}")
    if OPT.get('stamp'):
        a("s_memtime s[84:85]")
        a("s_memrealtime s[86:87]")
    a("s_mov_b32 s39, 0")
    for st in range(3):
        for grp in dma_groups(39):
            for ins in grp: a(ins)
        a(f"s_add_u32 s39, s39, {SB2}")
    for ins in mirror_dma(): a(ins)
    if OPT.get('prostamp'):
        a("s_memrealtime s[92:93]"); a("s_waitcnt lgkmcnt(0)"); a("v_writelane_b32 v248, s92, 19")
    if KP:
        a(f"v_lshrrev_b32 v9, 4, v{vL}"); a("v_and_b32 v8, 15, v9"); a("v_lshrrev_b32 v9, 4, v9")
        table_params(a, 8, 3, 10, 11, 12, st=28)
        a("v_and_b32 v13, 1, v9")
        a("v_lshlrev_b32 v13, 3, v13")
        a("v_mul_u32_u24 v14, 96, v11")
        a("v_mad_u32_u24 v15, v10, v13, v14")
        trig(a, 10, 15, 16, 24, 28, 32)
        a("v_cmp_lt_u32 vcc, 1, v9")
        a("s_lshl_b32 s28, s3, 10")
        a(f"s_add_u32 s28, s28, {TABW}")
        a(f"v_add_u32 v14, s28, v{vL}")
        for q in range(4):
            a(f"v_cndmask_b32 v{24+q}, v{24+q}, v{28+q}, vcc")
        a("ds_write_b128 v14, v[24:27]")
        if OPT.get('tsplit'):
            a("v_lshlrev_b32 v13, 3, v9")
            a("v_add_u32 v13, 32, v13")
            a("v_lshlrev_b32 v14, 5, v11")
            a("v_mad_u32_u24 v15, v10, v13, v14")
            trig(a, 10, 15, 16, 24, 28, 32)
            a("s_lshl_b32 s28, s3, 12")
            a(f"s_add_u32 s28, s28, {TABX + 2048}")
            a(f"v_add_u32 v14, s28, v{vL}")
            a("ds_write_b128 v14, v[24:27]")
            a("ds_write_b128 v14, v[28:31] offset:1024")
        lds_init(a, 3, vL, 12)
        a("s_waitcnt lgkmcnt(0)")
        a("s_barrier")
        for r in range(168 if B21 else 176):
            a(f"v_mov_b32 v{ACC+r}, 0")
        a("s_barrier")

    def a_reads(rb):
        s = AF + 8 * (rb % 4)
        return [f"ds_read_b128 v[{s}:{s+3}], v{vAr} offset:{rb*2048}",
                f"ds_read_b128 v[{s+4}:{s+7}], v{vAi} offset:{rb*2048}"]
    def b_reads(B):
        r = []
        for cb in range(2):
            for ri in range(2):
                d = B + 8 * cb + 4 * ri
                for t in range(2):
                    r.append(f"ds_read_b64_tr_b16 v[{d+2*t}:{d+2*t+1}], v{vB} offset:{ri*256+t*2048}")
            r.append(f"v_xor_b32 v{vB}, 32, v{vB}")
        return r
    def b_xor(B, cb):
        return [f"v_xor_b32 v{NW+4*cb+q}, s35, v{B+8*cb+4+q}" for q in range(4)]
    def mfmas(rb, B):
        s = AF + 8 * (rb % 4)
        Ar, Ai = s, s + 4
        def acc(cb, ri): return ACC + ((rb * 2 + cb) * 2 + ri) * 4
        def m(d, x, y): return f"v_mfma_f32_16x16x32_bf16 v[{d}:{d+3}], v[{x}:{x+3}], v[{y}:{y+3}], v[{d}:{d+3}]"
        Wr = lambda cb: B + 8 * cb
        Wi = lambda cb: B + 8 * cb + 4
        nWi = lambda cb: NW + 4 * cb
        if B21 and rb == 10:
            return [m(acc(0,0), Ar, Wr(0)), m(acc(0,1), Ar, Wi(0)), m(acc(0,0), Ai, nWi(0)), m(acc(0,1), Ai, Wr(0))]
        return [m(acc(0,0), Ar, Wr(0)), m(acc(0,1), Ar, Wi(0)), m(acc(1,0), Ar, Wr(1)), m(acc(1,1), Ar, Wi(1)),
                m(acc(0,0), Ai, nWi(0)), m(acc(0,1), Ai, Wr(0)), m(acc(1,0), Ai, nWi(1)), m(acc(1,1), Ai, Wr(1))]
    a("s_mov_b32 s40, 2")
    a(f"v_mov_b32 v{vT}, s40")
    if OPT.get('prostamp'):
        for i_, n_ in enumerate((21, 11, 1)):
            a(f"s_waitcnt vmcnt({n_})")
            a("s_memrealtime s[92:93]"); a("s_waitcnt lgkmcnt(0)")
            a(f"v_writelane_b32 v248, s92, {20+i_}")
    a(f"s_waitcnt vmcnt({OPT.get('prowait', 21)})")
    a(f"ds_write_b32 v{vWA}, v{vT}")
    n = poll_slow(BQ)
    a(f"s_branch K12_S{n}")
    a.lab(f"K12_Q{n}")
    if OPT.get('stamp'):
        a("s_memtime s[88:89]")
        a("s_memrealtime s[90:91]")
    for ins in b_reads(BP): a(ins)
    for rb in (0, 1, 3):
        for ins in a_reads(rb): a(ins)
    QD = 12 if B21 else 4
    a(f"ds_read_b32 v{BQ+QD}, v{vPA}")
    a("s_waitcnt lgkmcnt(7)")
    for cb in range(2):
        for ins in b_xor(BP, cb): a(ins)
    if OPT.get('cprio'): a(f"s_setprio {OPT['cprio']}")
    a("s_mov_b32 s41, 0")
    a(f"s_mov_b32 s42, {SB2}")
    a("s_mov_b32 s39, 0")
    a(f"s_mov_b32 s29, {3*SB2}")
    def emit_stage(half, last=False):
        nslow = len(slow)
        Bc, Bn = (BP, BQ) if half == 0 else (BQ, BP)
        side = {k: [] for k in range(88)}
        lds_issue = {}
        def put(k, ins, tag=None):
            side[k].append(ins)
            if tag: lds_issue.setdefault(k, []).append(tag)
        def put_a(k, rb, tag):
            r = a_reads(rb)
            put(k, r[0], tag); put(k + 1, r[1], tag)
        put_a(0, 2, "A2")
        for rb in range(4, 11):
            put_a(8 * (rb - 3), rb, f"A{rb}")
        P = OPT.get('parr', 58)
        K1 = OPT.get('parr1', 44)
        put(2, "s_waitcnt lgkmcnt(2)")
        put(2, f"v_cmp_gt_u32 vcc, s40, v{Bn+QD}")
        n2 = poll_slow(Bn + QD, 40)
        put(3, f"s_cbranch_vccnz K12_S{n2}"); put(3, f"K12_Q{n2}:")
        put(K1 - 1, "s_add_u32 s40, s40, 1"); put(K1 - 1, "s_mov_b32 s51, s40")
        put(K1 - 1, f"v_mov_b32 v{vT}, s40") if half == 1 or True else None
        nd = sum(1 for d_ in [4, 10, 14, 20, 26, 30, 36, 42, 46, 52] if d_ < K1)
        if not OPT.get('novmw'): put(K1, f"s_waitcnt vmcnt({11 + nd})")
        put(K1, f"ds_write_b32 v{vWA}, v{vT}", "W")
        put(P, "s_sub_u32 s43, s42, s41"); put(P, "s_add_u32 s40, s40, 1")
        put(P, f"v_add_u32 v{vAr}, s43, v{vAr}")
        put(P + 1, f"v_add_u32 v{vAi}, s43, v{vAi}"); put(P + 1, f"v_add_u32 v{vB}, s43, v{vB}")
        put(P + 1, f"v_mov_b32 v{vT}, s40")
        put(P + 2, f"ds_write_b32 v{vWA}, v{vT}", "W")
        pd = P + OPT.get('pdly', 5)
        put(pd, f"ds_read_b32 v{Bn}, v{vPA}", "P")
        if half == 0:
            put(2, "s_add_u32 s49, s39, 2"); put(2, "s_lshr_b32 s49, s49, 1")
            put(3, "s_mul_i32 s48, s49, s50"); put(3, "s_add_u32 s48, s48, s47")
            put(5, f"s_cmp_lt_u32 s49, {8 if not OPT.get('noprod') else 0}"); put(5, f"s_cselect_b32 s48, s48, {ONES}")
            if KP > 1:
                put(6, f"s_cmp_ge_u32 s49, {KP}"); put(6, f"s_cselect_b32 s48, s48, {ONES}")
            put(P - 9, f"v_mov_b32 v{vT}, s48")
            put(P - 8, f"ds_read_b32 v{vT}, v{vT}", "M")
            put(P - 3, "s_waitcnt lgkmcnt(0)")
            put(P - 3, f"v_cmp_eq_u32 vcc, 0, v{vT}")
            m = nlab[0]; nlab[0] += 1
            put(P - 1, f"s_cbranch_vccnz K12_F{m}"); put(P - 1, f"K12_G{m}:")
            slow.extend(flag_wait_loop(f"K12_F{m}", 48, f"K12_G{m}"))
        C = OPT.get('pchk', 69)
        put(C - 2, "s_waitcnt lgkmcnt(0)")
        put(C - 2, f"v_cmp_gt_u32 vcc, s51, v{Bn}")
        n = poll_slow(Bn, 51)
        put(C, f"s_cbranch_vccnz K12_S{n}"); put(C, f"K12_Q{n}:")
        br = b_reads(Bn)
        for i_, ins in enumerate(br): put(C + 1 + i_ if C + 1 + i_ < 78 else 77, ins, "B" if ins.startswith("ds_") else None)
        if B21:
            put_a(72, 0, "N0"); put_a(74, 3, "N3"); put_a(80, 1, "N1")
            put(76, f"ds_read_b32 v{Bc+QD}, v{vPA}", "Q")
        else:
            put_a(78, 0, "N0"); put_a(80, 1, "N1"); put_a(82, 3, "N3")
            put(83, f"ds_read_b32 v{Bc+4}, v{vPA}", "Q")
        dl = dma_groups(29)
        dpos = [4, 10, 14, 20, 26, 30, 36, 42, 46, 52]
        for i_, grp in enumerate(dl):
            for ins in grp:
                if OPT.get('k2nodma') and ins.startswith("buffer_load"): continue
                put(dpos[i_], ins)
        if half == 1:
            for ins in mirror_dma(): put(54, ins)
        if B21:
            xr0, xr1 = b_xor(Bc, 0), b_xor(Bc, 1)
            for q in range(4): put(q // 2, xr0[q]); put(2 + q // 2, xr1[q])
            for ins in ["s_mov_b32 s29, s41", "s_mov_b32 s41, s42", f"s_add_u32 s42, s42, {SB2}"]: put(82, ins)
            for ins in [f"s_cmp_eq_u32 s42, {NBUF2*SB2}", "s_cselect_b32 s42, 0, s42"]: put(83, ins)
            q = ["A0"] + ["A1"] * 2
        else:
            xr0, xr1 = b_xor(Bn, 0), b_xor(Bn, 1)
            put(84, "s_waitcnt lgkmcnt(7)")
            for q in range(4): put(84 + q // 2, xr0[q]); put(86 + q // 2, xr1[q])
            for ins in ["s_mov_b32 s29, s41", "s_mov_b32 s41, s42", f"s_add_u32 s42, s42, {SB2}"]: put(83, ins)
            for ins in [f"s_cmp_eq_u32 s42, {NBUF2*SB2}", "s_cselect_b32 s42, 0, s42"]: put(85, ins)
            q = ["A0"] * 2 + ["A1"] * 2 + ["A3"] * 2 + ["Q"]
        pre = {}
        for k in range(88):
            if k % 8 == 0:
                need = f"A{k // 8}"
                if need in q:
                    idx = max(i_ for i_, x in enumerate(q) if x == need)
                    pre[k] = len(q) - 1 - idx
                    q = q[idx + 1:]
            q += lds_issue.get(k, [])
            if k == 2: q = q[-2:]
            if k == C - 2 or (half == 0 and k == P - 3): q = []
        if last:
            del slow[nslow:]
            side = {k: [x for x in side[k] if (x.startswith("ds_read_b128") and k < 58) or (B21 and k < 4 and x.startswith("v_xor_b32") and "s35" in x)] for k in range(88)}
            q = (["A0"] + ["A1"] * 2) if B21 else (["A0"] * 2 + ["A1"] * 2 + ["A3"] * 2 + ["Q"])
            pre = {}
            for k in range(88):
                if k % 8 == 0:
                    need = f"A{k // 8}"
                    if need in q:
                        idx = max(i_ for i_, x in enumerate(q) if x == need)
                        pre[k] = len(q) - 1 - idx
                        q = q[idx + 1:]
                q += [t for t in lds_issue.get(k, []) if t.startswith("A")]
            st_setup = [f"v_lshrrev_b32 v{vT}, 4, v{vL}", f"v_and_b32 v{vPA}, 15, v{vT}", f"v_lshrrev_b32 v{vT}, 4, v{vT}",
                        "s_lshl_b32 s28, s21, 7", "s_lshl_b32 s29, s3, 5", "s_add_u32 s28, s28, s29",
                        f"v_add_u32 v{vPA}, s28, v{vPA}", f"v_lshlrev_b32 v{vPA}, 2, v{vPA}", f"v_lshl_add_u32 v{vPA}, v{vT}, 13, v{vPA}"]
            if B21:
                st_setup += ["s_lshl_b32 s28, s20, 6", f"v_xor_b32 v{vPA}, s28, v{vPA}", f"v_xor_b32 v{vWA}, 64, v{vPA}"]
            for i_, ins in enumerate(st_setup): side[4 + i_ // 2].append(ins)
            tmps = [Bn + ((x + 8) & 15) for x in range(16)]
            n_ = 0
            for rb in range(10):
                k0 = 8 * (rb + 1) + 3
                seq = []
                for i in range(4):
                    for cb in range(2):
                        t = tmps[n_ % 16]; n_ += 1
                        yr = ACC + ((rb * 2 + cb) * 2 + 0) * 4 + i
                        yi = ACC + ((rb * 2 + cb) * 2 + 1) * 4 + i
                        so = (16 * rb + (i & 2)) * 2048
                        pre_ = [f"s_mov_b32 s38, {so}"] if (cb == 0 and i % 2 == 0) else []
                        seq.append(pre_ + [f"v_cvt_pk_bf16_f32 v{t}, v{yr}, v{yi}",
                                           (f"buffer_store_dword v{t}, v{vWA if cb else vPA}, s[16:19], s38 offen offset:{(i&1)*2048}{NTF('ntys')}" if B21 else
                                            f"buffer_store_dword v{t}, v{vPA}, s[16:19], s38 offen offset:{(i&1)*2048+cb*64}{NTF('ntys')}")])
                for e_, grp in enumerate(seq):
                    kk = min(k0 + e_ * 3 // 4, 83 if B21 else 87)
                    side[kk] += grp
        k = 0
        for rb in range(11):
            for ins in mfmas(rb, Bc):
                if k in pre:
                    a(f"s_waitcnt lgkmcnt({min(pre[k], 15)})")
                emit(ins)
                for s_ in side[k]: emit(s_)
                k += 1
    ovl = OPT.get('epiovl', 1)
    a.lab("K12_LOOP")
    if OPT.get('itstamp'):
        a("s_memrealtime s[92:93]")
        a("s_waitcnt lgkmcnt(0)")
        a("s_mov_b32 m0, s39")
        a("v_writelane_b32 v248, s92, m0")
    emit_stage(0); emit_stage(1)
    a("s_add_u32 s39, s39, 1")
    a(f"s_cmp_lt_u32 s39, {15 if ovl else 16}")
    a("s_cbranch_scc1 K12_LOOP")
    if ovl:
        emit_stage(0); emit_stage(1, last=True)
    if OPT.get('stamp'):
        a("s_memtime s[92:93]")
        a("s_memrealtime s[94:95]")
    if not ovl:
        a(f"v_lshrrev_b32 v8, 4, v{vL}")
        a("v_and_b32 v9, 15, v8")
        a("v_lshrrev_b32 v8, 4, v8")
        a("s_lshl_b32 s28, s21, 7")
        a("s_lshl_b32 s29, s3, 5")
        a("s_add_u32 s28, s28, s29")
        a("v_add_u32 v9, s28, v9")
        a("v_lshlrev_b32 v9, 2, v9")
        a(f"v_lshl_add_u32 v{vPA}, v8, 13, v9")
    a("s_nop 7")
    n = 0
    if B21:
        assert ovl
        a("s_lshl_b32 s34, s27, 1")
        a(f"s_mul_i32 s34, s34, {YFB}")
        a(f"s_add_u32 s34, s34, {O['YT']}")
        srd(a, 64, 58, "s34", 2 * YFB)
        a(f"v_lshrrev_b32 v8, 8, v{vL}")
        a(f"v_lshlrev_b32 v9, 13, v8")
        a(f"v_sub_u32 v9, v{vPA}, v9")
        a("v_lshlrev_b32 v8, 2, v8")
        a("v_add_u32 v8, 160, v8")
        for i in range(4):
            a(f"v_add_u32 v10, {i}, v8")
            a("v_add_u32 v11, 160, v10")
            a("v_cmp_gt_u32 vcc, 167, v10")
            a("s_nop 1")
            a("v_cndmask_b32 v11, v11, v10, vcc")
            a("v_cmp_gt_u32 vcc, 174, v10")
            a("v_mov_b32 v12, 0x7ffff")
            a("s_nop 0")
            a("v_cndmask_b32 v11, v12, v11, vcc")
            a(f"v_lshl_add_u32 v{16+i}, v11, 11, v9")
        for i in range(4):
            yr = ACC + ((10 * 2 + 0) * 2 + 0) * 4 + i
            yi = ACC + ((10 * 2 + 0) * 2 + 1) * 4 + i
            a(f"v_cvt_pk_bf16_f32 v{20+i}, v{yr}, v{yi}")
            a(f"buffer_store_dword v{20+i}, v{16+i}, s[64:67], 0 offen{NTF('ntys')}")
    else:
      for rb in range(10 if ovl else 0, 11):
        for i in range(4):
            if i % 2 == 0:
                a(f"s_mov_b32 s38, {(16*rb+i)*2048}")
            for cb in range(2):
                t = 8 + (n % 8); n += 1
                yr = ACC + ((rb * 2 + cb) * 2 + 0) * 4 + i
                yi = ACC + ((rb * 2 + cb) * 2 + 1) * 4 + i
                a(f"v_cvt_pk_bf16_f32 v{t}, v{yr}, v{yi}")
                a(f"buffer_store_dword v{t}, v{vPA}, s[16:19], s38 offen offset:{(i&1)*2048+cb*64}{NTF('ntys')}")
    if OPT.get('stamp'):
        a("s_waitcnt vmcnt(0)")
        a("s_memtime s[76:77]")
        a("s_memrealtime s[78:79]")
        a("s_waitcnt lgkmcnt(0)")
        srd(a, 64, 58, O['ST'] + (1 << 20), 1 << 20)
        if OPT.get('itstamp'):
            srd(a, 68, 58, O['ST'] + (8 << 20), 1 << 20)
            a(f"v_lshrrev_b32 v41, 2, v{vL}")
            a("s_lshl_b32 s38, s2, 2"); a("s_add_u32 s38, s38, s3"); a("s_lshl_b32 s38, s38, 8")
            a("buffer_store_dword v248, v41, s[68:71], s38 offen")
        order = [62, 63, 82, 83] + ([92, 93] if OPT.get('kpre') else [80, 81]) + [94, 95, 86, 87, 78, 79, 88, 89, 90, 91]
        for k, sreg in enumerate(order):
            a(f"v_mov_b32 v{16+k}, s{sreg}")
        a("s_lshl_b32 s38, s2, 3")
        a("s_add_u32 s38, s38, s3")
        a("s_lshl_b32 s38, s38, 6")
        a("v_mov_b32 v40, 0")
        a("s_mov_b64 exec, 1")
        for k in range(4):
            a(f"buffer_store_dwordx4 v[{16+4*k}:{19+4*k}], v40, s[64:67], s38 offen offset:{16*k}")
    a("s_endpgm")
    for ins in slow: emit(ins)

def producer(a, O, OPT):
    WSTR = O['WSTR']
    XR, OPS, WR, ACCW, FH, FL, FW, TMP = 0, 64, 96, 128, 160, 192, 224, 240
    vXL, vXS, vWL, vWS0, vXS0, vWS, vLA, vT = 248, 249, 250, 251, 252, 253, 254, 255
    st = {0: "", 1: " sc1", 2: " sc0 sc1", 3: " sc1 nt"}[OPT.get('stsc1', 1)]
    lo = OPT.get('xlo', 1)
    a("v_and_b32 v64, 15, v2")
    a("v_lshrrev_b32 v65, 4, v2")
    a(f"v_lshlrev_b32 v{vLA}, 4, v2")
    a("s_and_b32 s44, s3, 3")
    a("s_and_b32 s20, s44, 1")
    a("s_lshr_b32 s21, s44, 1")
    a("s_lshl_b32 s22, s2, 1")
    a("s_add_u32 s22, s22, s21")
    a("s_and_b32 s23, s22, 3")
    a("s_lshr_b32 s22, s22, 2")
    a("s_and_b32 s24, s2, 7")
    a("s_lshl_b32 s24, s24, 5")
    a("s_lshr_b32 s25, s2, 3")
    a("s_add_u32 s24, s24, s25")
    a(f"s_cmp_ge_u32 s24, {NT}")
    a("s_cselect_b32 s25, 1, 0")
    a(f"s_mul_i32 s26, s25, {NT}")
    a("s_sub_u32 s24, s24, s26")
    a("s_mov_b32 s49, s25")
    a("s_cmp_eq_u32 s21, 0")
    a("s_cselect_b32 s25, s25, 1")
    a("s_mul_i32 s26, s25, 16384000")
    srd(a, 4, 52, "s26", 16384000)
    srd(a, 8, 54, None, 31 * 524288)
    srd(a, 12, 58, O['XT'] if O['XT'] else None, XT_SIZE)
    srd(a, 16, 58, O['WT'], 128 * WSTR)
    if OPT.get('kpre'):
        srd(a, 60, 58, O['SY'], 32768)
    else:
        a("s_mov_b32 s60, s56"); a("s_and_b32 s61, s57, 0xffff"); a("s_mov_b32 s62, 256"); a("s_mov_b32 s63, 0x00020000")
    a("s_mov_b32 s28, 0x05040100")
    a("s_mov_b32 s29, 0x07060302")
    if OPT.get('stamp'):
        srd(a, 64, 58, O['ST'] + (6 << 20), 1 << 20)
        a("s_lshl_b32 s73, s2, 2")
        a("s_add_u32 s73, s73, s44")
        a("s_lshl_b32 s73, s73, 7")
    a(f"v_lshlrev_b32 v{vXL}, 14, v65")
    a(f"v_lshl_add_u32 v{vXL}, v64, 4, v{vXL}")
    a(f"v_and_b32 v{vWL}, 1, v65")
    a(f"v_lshlrev_b32 v{vWL}, 23, v{vWL}")
    a(f"v_lshl_add_u32 v{vWL}, v64, 4, v{vWL}")
    a("v_lshrrev_b32 v66, 1, v65")
    a(f"s_mov_b32 s26, {2*XFB}")
    a("v_mul_lo_u32 v66, v66, s26")
    a("v_lshrrev_b32 v67, 2, v64")
    a(f"s_mov_b32 s26, {XBLK}")
    a("v_mul_lo_u32 v67, v67, s26")
    a("v_add_u32 v66, v66, v67")
    a(f"v_mov_b32 v{vXS0}, v66")
    a("v_lshrrev_b32 v66, 1, v65")
    a(f"s_mov_b32 s26, {4*WSTR}")
    a("v_mul_lo_u32 v66, v66, s26")
    a("v_and_b32 v67, 1, v65")
    a("v_lshl_add_u32 v66, v67, 8, v66")
    a("v_and_b32 v67, 1, v64")
    a(f"v_lshl_add_u32 v{vWS0}, v67, 4, v66")
    a(f"s_mul_i32 s31, s25, {XFB}")
    a(f"s_mul_i32 s32, s23, {WSTR}")
    a("s_lshl_b32 s33, s23, 8")
    def tile_of(sp):
        a(f"s_mul_i32 s36, s{sp}, 85")
        a("s_add_u32 s36, s36, s2")
        a("s_and_b32 s36, s36, 255")
        a("s_mul_hi_u32 s37, s36, 0x55555556")
        a("s_mul_i32 s38, s37, 3")
        a("s_cmp_eq_u32 s38, s36")
        a("s_cselect_b32 s27, 1, 0")
        a("s_cmp_lt_u32 s37, 78")
        a("s_cselect_b32 s27, s27, 0")
        a(f"s_add_u32 s37, s37, {256 - NT}")
        if OPT.get('xsplit'):
            a("s_add_u32 s26, s21, 1")
            a("s_cmp_eq_u32 s27, 1")
            a("s_cselect_b32 s26, 0, s26")
            a("s_and_b32 s36, s27, s21")
            a("s_cselect_b32 s30, s37, s24")
            a("s_cselect_b32 s25, 1, s49")
            a("s_mov_b32 s27, 1")
            if OPT.get('kx'):
                a(f"s_cmp_lt_u32 s{sp}, {OPT['kx']}")
                a("s_cselect_b32 s27, 0, 1")
            return
        a("s_cmp_eq_u32 s21, 0")
        a("s_cselect_b32 s30, s24, s37")
        a("s_cselect_b32 s27, 1, s27")
        if OPT.get('wonly'):
            a("s_mov_b32 s27, 0")
    def w_loads(sp):
        a(f"s_lshl_b32 s36, s{sp}, 7")
        a("s_add_u32 s36, s36, s22")
        a("s_lshr_b32 s37, s36, 9")
        a("s_lshl_b32 s37, s37, 19")
        a("s_and_b32 s36, s36, 511")
        a("s_lshl_b32 s36, s36, 10")
        a("s_add_u32 s36, s36, s37")
        a("s_add_u32 s36, s36, s33")
        if OPT.get('pldsame'): a("s_mov_b32 s36, s33")
        if OPT.get('wdedup'): a("s_mov_b64 exec, 0xffffffff")
        for e in range(8 if not OPT.get('pnold') else 0):
            a(f"buffer_load_dwordx4 v[{WR+4*e}:{WR+4*e+3}], v{vWL}, s[8:11], s36 offen{PLF(OPT)}")
            if OPT.get('dspacel'): a(f"s_sleep {OPT['dspacel']}")
            if e < 7: a("s_add_u32 s36, s36, 0x100000")
        if OPT.get('wdedup'): a("s_mov_b64 exec, -1")
    def x_srd():
        if OPT.get('xsplit'):
            a("s_mul_i32 s36, s25, 16384000")
            a("s_add_u32 s4, s52, s36")
            a("s_addc_u32 s5, s53, 0")
            a("s_and_b32 s5, s5, 0xffff")
    def x_loads(sp):
        x_srd()
        a(f"s_lshl_b32 s36, s{sp}, 8")
        a(f"s_mul_i32 s37, s30, {48*2048}")
        a("s_add_u32 s36, s36, s37")
        if OPT.get('pldsame'): a("s_mov_b32 s36, 0")
        for ks in range(2 if not OPT.get('pnold') else 0):
            for e2 in range(4):
                r = XR + 32 * ks + 8 * e2
                a(f"buffer_load_dwordx4 v[{r}:{r+3}], v{vXL}, s[4:7], s36 offen{PLF(OPT)}")
                a(f"buffer_load_dwordx4 v[{r+4}:{r+7}], v{vXL}, s[4:7], s36 offen offset:2048{PLF(OPT)}")
                if OPT.get('dspacel'): a(f"s_sleep {OPT['dspacel']}")
                if not (ks == 1 and e2 == 3):
                    a(f"s_add_u32 s36, s36, {4096 if e2 < 3 else 32*2048 - 3*4096}")
    nsig = [0]
    def signal(sp):
        n = nsig[0]; nsig[0] += 1
        a("s_mov_b32 s34, -1")
        a(f"s_cmp_ge_u32 s{sp}, 8")
        a(f"s_cbranch_scc1 K12_SG{n}")
        if OPT.get('stamp'):
            a("s_memrealtime s[70:71]")
            a("s_waitcnt lgkmcnt(0)")
            a(f"s_lshl_b32 s72, s{sp}, 3")
            a("s_add_u32 s72, s72, s73")
            a("v_mov_b32 v240, s70"); a("v_mov_b32 v241, s71"); a("v_mov_b32 v242, 0")
            a("s_mov_b64 exec, 1")
            a("buffer_store_dwordx2 v[240:241], v242, s[64:67], s72 offen")
            a("s_mov_b64 exec, -1")
        a(f"s_lshl_b32 s36, s{sp}, 2")
        a(f"s_add_u32 s37, s36, {PCNT}")
        a("s_mov_b64 exec, 1")
        a(f"v_mov_b32 v{vT}, s37")
        a(f"v_mov_b32 v{TMP}, 1")
        a(f"ds_add_rtn_u32 v{TMP}, v{vT}, v{TMP}")
        a("s_waitcnt lgkmcnt(0)")
        a(f"v_readfirstlane_b32 s37, v{TMP}")
        a("s_nop 3")
        a("s_cmp_eq_u32 s37, 3")
        a(f"s_cbranch_scc0 K12_SH{n}")
        if OPT.get('wbl2'):
            a("buffer_wbl2 sc1")
            a("s_waitcnt vmcnt(0)")
        if OPT.get('kpre'):
            a("s_lshl_b32 s36, s36, 8")
        a(f"v_mov_b32 v{vT}, 1")
        a(f"v_mov_b32 v{TMP}, s36")
        a(f"buffer_atomic_add v{vT}, v{TMP}, s[60:63], 0 offen sc0 sc1")
        a(f"s_mov_b32 s34, s{sp}")
        a.lab(f"K12_SH{n}")
        a("s_mov_b64 exec, -1")
        a.lab(f"K12_SG{n}")
    def publish():
        n = nsig[0]; nsig[0] += 1
        a("s_cmp_ge_u32 s34, 8")
        a(f"s_cbranch_scc1 K12_PB{n}")
        a(f"v_readfirstlane_b32 s37, v{vT}")
        a("s_nop 3")
        a("s_cmp_eq_u32 s37, 255")
        a(f"s_cbranch_scc0 K12_PB{n}")
        a("s_lshl_b32 s36, s34, 4")
        a(f"s_add_u32 s36, s36, {16384 if OPT.get('kpre') else 128}")
        a("s_mov_b64 exec, 1")
        a(f"v_mov_b32 v{vT}, 1")
        a(f"v_mov_b32 v{TMP}, s36")
        a(f"buffer_store_dword v{vT}, v{TMP}, s[60:63], 0 offen sc1")
        a("s_mov_b64 exec, -1")
        a.lab(f"K12_PB{n}")
    nsub = [0]
    def subgate(rb, only_mode=None):
        if not OPT.get('subg', 1) or rb == 0: return
        G = OPT.get('gateg', 17)
        n = nsub[0]; nsub[0] += 1
        if only_mode is not None:
            a(f"s_cmp_lg_u32 s26, {only_mode}")
            a(f"s_cbranch_scc1 K12_UT{n}")
        a(f"s_cmp_lt_u32 s40, {max(OPT.get('gatep', 3), OPT.get('kpre', 0) + OPT.get('subskip', 1))}")
        a(f"s_cbranch_scc1 K12_UT{n}")
        a("s_lshl_b32 s36, s40, 3")
        a(f"s_sub_i32 s36, s36, {2 * (G - rb * OPT.get('substep', 1)) + 2}")
        a("s_max_i32 s36, s36, 1")
        a(f"s_mov_b32 s37, {SPIN * 8}")
        a.lab(f"K12_UL{n}")
        a(f"v_mov_b32 v{vT}, {SYNC}")
        a(f"ds_read_b32 v{vT}, v{vT}")
        a("s_waitcnt lgkmcnt(0)")
        a(f"v_cmp_gt_u32 vcc, s36, v{vT}")
        a("s_sub_u32 s37, s37, 1")
        a("s_cmp_eq_u32 s37, 0")
        a(f"s_cbranch_scc1 K12_UT{n}")
        a(f"s_cbranch_vccz K12_UT{n}")
        a(f"s_sleep {OPT.get('gsleep', 2)}")
        a(f"s_branch K12_UL{n}")
        a.lab(f"K12_UT{n}")
    def w_compute(sp):
        a(f"s_lshl_b32 s36, s{sp}, 7")
        a("s_add_u32 s36, s36, s22")
        a("s_and_b32 s37, s36, 3")
        a("s_lshr_b32 s38, s36, 1")
        a("s_and_b32 s38, s38, 4")
        a("s_or_b32 s37, s37, s38")
        a(f"v_bfe_u32 v{vWS}, v{vLA}, 5, 3")
        a(f"v_xor_b32 v{vWS}, s37, v{vWS}")
        a(f"v_lshl_add_u32 v{vWS}, v{vWS}, 5, v{vWS0}")
        a("s_lshl_b32 s36, s36, 9")
        a("s_add_u32 s39, s36, s32")
        if OPT.get('plin'):
            a(f"v_mov_b32 v{vWS}, v{vLA}")
            a(f"s_lshl_b32 s39, s{sp}, 10"); a("s_lshl_b32 s36, s2, 2"); a("s_add_u32 s39, s39, s36"); a("s_add_u32 s39, s39, s3"); a("s_lshl_b32 s39, s39, 14"); a("s_and_b32 s39, s39, 0x3ffffff")
        JIT = OPT.get('jit')
        if JIT:
            a(f"s_add_u32 s47, s{sp}, 2")
            a("s_lshl_b32 s36, s47, 7")
            a("s_add_u32 s36, s36, s22")
            a("s_lshr_b32 s37, s36, 9")
            a("s_lshl_b32 s37, s37, 19")
            a("s_and_b32 s36, s36, 511")
            a("s_lshl_b32 s36, s36, 10")
            a("s_add_u32 s36, s36, s37")
            a("s_add_u32 s46, s36, s33")
        njt = [0]
        for rb in range(4):
            if OPT.get('xsplit'):
                if rb == 2: subgate(OPT.get('xstep', 2))
            else:
                subgate(rb)
            if JIT:
                lab = f"K12_JW{rb}_{nsub[0]}_{len(a.l)}"
                a("s_cmp_ge_u32 s47, 8")
                a(f"s_cbranch_scc1 {lab}")
                a(f"v_bfe_u32 v{vT}, v{vLA}, 5, 2")
                a(f"v_lshlrev_b32 v{vT}, 20, v{vT}")
                a(f"v_bfe_u32 v{vXS}, v{vLA}, 4, 1")
                a(f"v_lshl_add_u32 v{vT}, v{vXS}, 7, v{vT}")
                a("s_mov_b64 exec, 0xff")
                a(f"buffer_load_dword v{vXS}, v{vT}, s[8:11], s46 offen")
                a("s_mov_b64 exec, -1")
                a("s_add_u32 s46, s46, 0x400000")
                a.lab(lab)
            if OPT.get('dynprio'): a(f"s_setprio {OPT['dynprio']}")
            for i in range(8 if not OPT.get('pnocomp') else 0):
                a(f"v_mfma_f32_16x16x32_bf16 v[{ACCW+4*i}:{ACCW+4*i+3}], v[{FW+4*rb}:{FW+4*rb+3}], v[{OPS+4*i}:{OPS+4*i+3}], 0")
            if OPT.get('dynprio'): a(f"s_setprio {OPT.get('lowprio', 0)}")
            a("s_nop 7")
            for r in range(4):
                t = TMP + 4 * (r & 1)
                for q in range(4 if not OPT.get('pnocomp') else 0):
                    a(f"v_cvt_pk_bf16_f32 v{t+q}, v{ACCW+4*(2*q)+r}, v{ACCW+4*(2*q+1)+r}")
                if OPT.get('stsplit'):
                    a(f"buffer_store_dwordx2 v[{t}:{t+1}], v{vWS}, s[16:19], s39 offen{st}")
                    a(f"buffer_store_dwordx2 v[{t+2}:{t+3}], v{vWS}, s[16:19], s39 offen offset:8{st}")
                elif not OPT.get('pnost'):
                    if OPT.get('stprio'): a(f"s_setprio {OPT['stprio']}")
                    if OPT.get('gst'):
                        a("s_add_u32 s74, s16, s39"); a("s_addc_u32 s75, s17, 0")
                        a(f"global_store_dwordx4 v{vWS}, v[{t}:{t+3}], s[74:75]{st}")
                    else:
                        a(f"buffer_store_dwordx4 v[{t}:{t+3}], v{vWS}, s[16:19], s39 offen{st}")
                    if OPT.get('stprio'): a("s_setprio 0")
                if OPT.get('dspace'): a(f"s_sleep {OPT['dspace']}")
                if not (rb == 3 and r == 3):
                    a(f"s_add_u32 s39, s39, {1024 if OPT.get('plin') else 2*4*WSTR}")
    def x_compute(sp):
        ACCX = XR + 32
        if OPT.get('xsplit'):
            a(f"s_mul_i32 s31, s25, {XFB}")
        a(f"s_mul_i32 s39, s{sp}, {4*XBLK}")
        a("s_add_u32 s39, s39, s31")
        a("s_lshl_b32 s36, s30, 7")
        a("s_add_u32 s39, s39, s36")
        a(f"v_bfe_u32 v{vXS}, v{vLA}, 4, 2")
        a(f"v_bfe_u32 v{TMP}, v{vLA}, 8, 1")
        a(f"v_lshl_add_u32 v{vXS}, v{TMP}, 2, v{vXS}")
        if OPT.get('b21'):
            a("s_add_u32 s36, s30, 7")
            a("s_cmp_ge_u32 s30, 160")
            a("s_cselect_b32 s36, s36, s30")
            a("s_cmp_eq_u32 s25, 1")
            a("s_cselect_b32 s36, s36, s30")
            a("s_lshr_b32 s36, s36, 1")
        else:
            a("s_lshr_b32 s36, s30, 1")
        a("s_and_b32 s36, s36, 7")
        a(f"v_xor_b32 v{vXS}, s36, v{vXS}")
        a(f"v_lshl_add_u32 v{vXS}, v{vXS}, 4, v{vXS0}")
        if OPT.get('plin'):
            a(f"s_lshl_b32 s39, s{sp}, 9"); a("s_lshl_b32 s36, s2, 1"); a("s_add_u32 s39, s39, s36"); a("s_add_u32 s39, s39, s21"); a("s_lshl_b32 s39, s39, 14"); a("s_and_b32 s39, s39, 0x1ffffff")
        JIT = OPT.get('jit')
        if JIT:
            a(f"s_add_u32 s47, s{sp}, 2")
            tile_of(47)
            a("s_cmp_lt_u32 s47, 8")
            a("s_cselect_b32 s45, s27, 0")
            a("s_lshl_b32 s36, s47, 8")
            a(f"s_mul_i32 s37, s30, {48*2048}")
            a("s_add_u32 s46, s36, s37")
        XSP = OPT.get('xsplit')
        if XSP:
            xl = f"K12_XS{len(a.l)}"
            a("s_cmp_eq_u32 s26, 2")
            a(f"s_cselect_b32 s36, {16 * 2 * XFB}, 0")
            a("s_add_u32 s39, s39, s36")
            a(f"s_cbranch_scc1 {xl}_HI") if False else None
            a("s_cmp_eq_u32 s26, 2")
            a(f"s_cbranch_scc1 {xl}_HI")
        for rb in range(4):
            if XSP:
                st_ = OPT.get('xstep', 2)
                if rb == 1: subgate(st_, only_mode=1)
                if rb == 2:
                    a("s_cmp_eq_u32 s26, 1")
                    a(f"s_cbranch_scc1 {xl}_END")
                    subgate(st_, only_mode=0)
                    a.lab(f"{xl}_HI")
                if rb == 3: subgate(st_, only_mode=2)
            else:
                subgate(rb)
            if JIT:
                lab = f"K12_JX{rb}_{nsub[0]}_{len(a.l)}"
                a("s_cmp_eq_u32 s45, 0")
                a(f"s_cbranch_scc1 {lab}")
                a(f"v_bfe_u32 v{vT}, v{vLA}, 4, 4")
                a(f"v_lshlrev_b32 v{vT}, 11, v{vT}")
                a(f"v_bfe_u32 v{vWS}, v{vLA}, 8, 1")
                a(f"v_lshl_add_u32 v{vT}, v{vWS}, 7, v{vT}")
                a("s_mov_b64 exec, 0xffffffff")
                a(f"buffer_load_dword v{vWS}, v{vT}, s[4:7], s46 offen")
                a("s_mov_b64 exec, -1")
                a(f"s_add_u32 s46, s46, {16*2048}")
                a.lab(lab)
            terms = [(FH + (rb * 2) * 4, OPS), (FH + (rb * 2 + 1) * 4, XR)]
            if lo:
                terms = [terms[0], (FL + (rb * 2) * 4, OPS), terms[1], (FL + (rb * 2 + 1) * 4, XR)]
            if OPT.get('dynprio'): a(f"s_setprio {OPT['dynprio']}")
            for ti, (F, ops) in enumerate(terms if not OPT.get('pnocomp') else []):
                for i in range(8):
                    c = "0" if ti == 0 else f"v[{ACCX+4*i}:{ACCX+4*i+3}]"
                    a(f"v_mfma_f32_16x16x32_bf16 v[{ACCX+4*i}:{ACCX+4*i+3}], v[{F}:{F+3}], v[{ops+4*i}:{ops+4*i+3}], {c}")
            if OPT.get('dynprio'): a(f"s_setprio {OPT.get('lowprio', 0)}")
            a("s_nop 7")
            for r in range(4):
                t = TMP + 4 * (r & 1)
                for q in range(4 if not OPT.get('pnocomp') else 0):
                    a(f"v_cvt_pk_bf16_f32 v{t+q}, v{ACCX+4*(2*q)+r}, v{ACCX+4*(2*q+1)+r}")
                if OPT.get('stsplit'):
                    a(f"buffer_store_dwordx2 v[{t}:{t+1}], v{vXS}, s[12:15], s39 offen{st}")
                    a(f"buffer_store_dwordx2 v[{t+2}:{t+3}], v{vXS}, s[12:15], s39 offen offset:8{st}")
                elif not OPT.get('pnost'):
                    if OPT.get('stprio'): a(f"s_setprio {OPT['stprio']}")
                    if OPT.get('gst'):
                        a("s_add_u32 s74, s12, s39"); a("s_addc_u32 s75, s13, 0")
                        a(f"global_store_dwordx4 v{vXS}, v[{t}:{t+3}], s[74:75]{st}")
                    else:
                        a(f"buffer_store_dwordx4 v[{t}:{t+3}], v{vLA if OPT.get('plin') else vXS}, s[12:15], s39 offen{st}")
                    if OPT.get('stprio'): a("s_setprio 0")
                if OPT.get('dspace'): a(f"s_sleep {OPT['dspace']}")
                if not (rb == 3 and r == 3):
                    a(f"s_add_u32 s39, s39, {1024 if OPT.get('plin') else 2*2*XFB}")
        if XSP: a.lab(f"{xl}_END")
    nst = [0]
    def ustamp(slot):
        if not OPT.get('stamp'): return
        n = nst[0]; nst[0] += 1
        a("s_and_b32 s72, s40, 6")
        a(f"s_cmp_eq_u32 s72, {OPT.get('ustph', 4)}")
        a(f"s_cbranch_scc0 K12_US{n}")
        a(f"s_memrealtime s[{74+0}:{75}]")
        a("s_waitcnt lgkmcnt(0)")
        a(f"s_add_u32 s72, s73, {(8+slot)*8}")
        a("v_mov_b32 v240, s74"); a("v_mov_b32 v241, s75"); a("v_mov_b32 v242, 0")
        a("s_mov_b64 exec, 1")
        a("buffer_store_dwordx2 v[240:241], v242, s[64:67], s72 offen")
        a("s_mov_b64 exec, -1")
        a.lab(f"K12_US{n}")
    def eager_publish():
        n = nsig[0]; nsig[0] += 1
        a("s_cmp_ge_u32 s34, 8")
        a(f"s_cbranch_scc1 K12_EP{n}")
        a("s_waitcnt vmcnt(0)")
        publish()
        a("s_mov_b32 s34, -1")
        a.lab(f"K12_EP{n}")
    def early_signal():
        if not OPT.get('early', 1): return
        n = nsig[0]; nsig[0] += 1
        a(f"s_cmp_eq_u32 s41, {OPT.get('kpre', 0) or 1}")
        a(f"s_cbranch_scc0 K12_ES{n}")
        a("s_waitcnt vmcnt(0)")
        signal(41)
        a("s_waitcnt vmcnt(0)")
        publish()
        a("s_mov_b32 s34, -1")
        a("s_mov_b32 s41, -1")
        a.lab(f"K12_ES{n}")
    ngate = [0]
    def gate():
        G = OPT.get('gateg', 17); GP = OPT.get('gatep', 3)
        n = ngate[0]; ngate[0] += 1
        a("s_lshl_b32 s36, s40, 3")
        a(f"s_sub_i32 s36, s36, {2 * G + 2}")
        a("s_max_i32 s36, s36, 1")
        a(f"s_mov_b32 s38, {SYNC}")
        a(f"s_cmp_eq_u32 s40, {1 if not OPT.get('kpre') else 99}")
        a(f"s_cselect_b32 s36, {4 if OPT.get('ord1', 1) else 0}, s36")
        a(f"s_cselect_b32 s38, {ISSUED}, s38")
        a(f"s_cbranch_scc1 K12_GS{n}")
        a(f"s_cmp_lt_u32 s40, {GP}")
        a(f"s_cbranch_scc1 K12_GT{n}")
        a.lab(f"K12_GS{n}")
        a(f"s_mov_b32 s37, {SPIN * 8}")
        a.lab(f"K12_GL{n}")
        a(f"v_mov_b32 v{TMP}, s38")
        a(f"ds_read_b32 v{TMP}, v{TMP}")
        a("s_waitcnt lgkmcnt(0)")
        a(f"v_cmp_gt_u32 vcc, s36, v{TMP}")
        a("s_sub_u32 s37, s37, 1")
        a("s_cmp_eq_u32 s37, 0")
        a(f"s_cbranch_scc1 K12_GT{n}")
        a(f"s_cbranch_vccz K12_GT{n}")
        a(f"s_sleep {OPT.get('gsleep', 2)}")
        a(f"s_branch K12_GL{n}")
        a.lab(f"K12_GT{n}")
    xs = 1 if OPT.get('stamp') else 0
    ntch = [0]
    def touch_block(first=1, count=8):
        n_ = ntch[0]; ntch[0] += 1
        a(f"v_lshrrev_b32 v128, 4, v{vLA}")
        a("v_lshlrev_b32 v129, 11, v128")
        a("v_lshrrev_b32 v130, 1, v128")
        a("v_lshlrev_b32 v130, 20, v130")
        a("v_and_b32 v131, 1, v128")
        a("v_lshl_add_u32 v130, v131, 7, v130")
        if OPT.get('thalf'):
            a("v_lshlrev_b32 v130, 20, v128")
        a("s_mov_b32 s45, s27"); a("s_mov_b32 s46, s30")
        if OPT.get('xsplit'):
            a("s_mov_b32 s50, s25"); a("s_mov_b32 s51, s26")
        a(f"s_add_u32 s47, s40, {first}")
        a(f"s_add_u32 s75, s47, {count}")
        a("s_min_u32 s75, s75, 8")
        a("s_cmp_ge_u32 s47, s75")
        a(f"s_cbranch_scc1 K12_TCHE{n_}")
        a.lab(f"K12_TCH{n_}")
        a("s_xor_b32 s48, s47, s20")
        a("s_and_b32 s48, s48, 1")
        a("s_cmp_eq_u32 s48, 0")
        a(f"s_cbranch_scc1 K12_TCHW{n_}")
        tile_of(47)
        if OPT.get('xsplit'):
            a("s_cmp_eq_u32 s26, 2")
            a(f"s_cbranch_scc1 K12_TCHN{n_}")
            a("s_cmp_eq_u32 s27, 0")
            a(f"s_cbranch_scc1 K12_TCHN{n_}")
            x_srd()
        else:
            a("s_cmp_eq_u32 s27, 0")
            a(f"s_cbranch_scc1 K12_TCHN{n_}")
        a("s_lshl_b32 s36, s47, 8")
        a(f"s_mul_i32 s37, s30, {48*2048}")
        a("s_add_u32 s36, s36, s37")
        if OPT.get('touch', 1) in (1, 2):
            a("buffer_load_dword v244, v129, s[4:7], s36 offen")
            if not OPT.get('thalf'): a("buffer_load_dword v245, v129, s[4:7], s36 offen offset:128")
        a(f"s_branch K12_TCHN{n_}")
        a.lab(f"K12_TCHW{n_}")
        a("s_lshl_b32 s36, s47, 7")
        a("s_add_u32 s36, s36, s22")
        a("s_lshr_b32 s37, s36, 9")
        a("s_lshl_b32 s37, s37, 19")
        a("s_and_b32 s36, s36, 511")
        a("s_lshl_b32 s36, s36, 10")
        a("s_add_u32 s36, s36, s37")
        a("s_add_u32 s36, s36, s33")
        a(f"s_mov_b64 exec, {'0xffff' if OPT.get('thalf') else '0xffffffff'}")
        if OPT.get('touch', 1) in (1, 3):
            a("buffer_load_dword v246, v130, s[8:11], s36 offen")
        a("s_mov_b64 exec, -1")
        a.lab(f"K12_TCHN{n_}")
        a("s_add_u32 s47, s47, 1")
        a("s_cmp_lt_u32 s47, s75")
        a(f"s_cbranch_scc1 K12_TCH{n_}")
        a.lab(f"K12_TCHE{n_}")
        a("s_mov_b32 s27, s45"); a("s_mov_b32 s30, s46")
        if OPT.get('xsplit'):
            a("s_mov_b32 s25, s50"); a("s_mov_b32 s26, s51")
    nadv = [0]
    def advance():
        a("s_mov_b32 s41, s40"); a("s_add_u32 s40, s40, 1")
        if OPT.get('kpre') and OPT.get('tstage'):
            n_ = nadv[0]; nadv[0] += 1
            T0, TS = OPT.get('tfirst', 1), OPT['tstage']
            a(f"s_sub_u32 s74, s41, {OPT['kpre']}")
            a(f"s_mul_i32 s74, s74, {TS}")
            a(f"s_add_u32 s74, s74, {OPT['kpre'] + T0 + 1}")
            a("s_cmp_ge_u32 s74, 8")
            a(f"s_cbranch_scc1 K12_NT{n_}")
            a("s_mov_b32 s73, s40")
            a("s_sub_u32 s40, s74, 1")
            touch_block(1, TS)
            a("s_mov_b32 s40, s73")
            a.lab(f"K12_NT{n_}")
        if OPT.get('kpre') and OPT.get('touch', 1) and OPT.get('tlate') == 99:
            n_ = nadv[0]; nadv[0] += 1
            a(f"s_cmp_eq_u32 s41, {OPT['kpre']}")
            a(f"s_cbranch_scc0 K12_NT{n_}")
            touch_block()
            a.lab(f"K12_NT{n_}")
        early_signal()
    def gate_at(thr_expr_G, tagn):
        n = ngate[0]; ngate[0] += 1
        a("s_lshl_b32 s36, s40, 3")
        a(f"s_sub_i32 s36, s36, {thr_expr_G}")
        a("s_max_i32 s36, s36, 1")
        a(f"s_mov_b32 s37, {SPIN * 8}")
        a.lab(f"K12_GL{n}")
        a(f"v_mov_b32 v{TMP}, {SYNC}")
        a(f"ds_read_b32 v{TMP}, v{TMP}")
        a("s_waitcnt lgkmcnt(0)")
        a(f"v_cmp_gt_u32 vcc, s36, v{TMP}")
        a("s_sub_u32 s37, s37, 1")
        a("s_cmp_eq_u32 s37, 0")
        a(f"s_cbranch_scc1 K12_GT{n}")
        a(f"s_cbranch_vccz K12_GT{n}")
        a(f"s_sleep {OPT.get('gsleep', 2)}")
        a(f"s_branch K12_GL{n}")
        a.lab(f"K12_GT{n}")
        if OPT.get('pbar'):
            a("s_lshl_b32 s36, s40, 2")
            a(f"s_add_u32 s36, s36, {PBAR}")
            a("s_mov_b64 exec, 1")
            a(f"v_mov_b32 v{TMP}, s36")
            a(f"v_mov_b32 v{TMP+1}, 1")
            a(f"ds_add_u32 v{TMP}, v{TMP+1}")
            a("s_mov_b64 exec, -1")
            a(f"s_mov_b32 s37, {SPIN * 8}")
            a.lab(f"K12_BL{n}")
            a(f"v_mov_b32 v{TMP}, s36")
            a(f"ds_read_b32 v{TMP}, v{TMP}")
            a("s_waitcnt lgkmcnt(0)")
            a(f"v_cmp_gt_u32 vcc, 4, v{TMP}")
            a("s_sub_u32 s37, s37, 1")
            a("s_cmp_eq_u32 s37, 0")
            a(f"s_cbranch_scc1 K12_BT{n}")
            a(f"s_cbranch_vccz K12_BT{n}")
            a("s_sleep 1")
            a(f"s_branch K12_BL{n}")
            a.lab(f"K12_BT{n}")
    LG = OPT.get('lgate', 0)
    def w_phase(tag):
        ustamp(0)
        if LG:
            a("s_waitcnt vmcnt(0)")
            signal(41)
            if not OPT.get('defpub'): eager_publish()
            if OPT.get('gfirst'): gate_at(2 * OPT.get('gateg', 13) + 2, tag)
        interleave_perm(a, WR, OPS, 28, 29, OPT.get('pnocomp'))
        if OPT.get('wdedup'):
            for h in range(4):
                for q in range(8): a(f"v_mov_b32 v{ACCW+q}, v{OPS+8*h+q}")
                a("s_nop 0")
                for q in range(8): a(f"v_permlane32_swap_b32 v{OPS+8*h+q}, v{ACCW+q}")
        if LG and not OPT.get('gfirst'): gate_at(2 * OPT.get('gateg', 13) + 2, tag)
        a("s_add_u32 s42, s40, 1")
        tile_of(42)
        a("s_cmp_eq_u32 s27, 0")
        a(f"s_cbranch_scc1 {tag}_N")
        x_loads(42)
        ustamp(1)
        if not LG: a(f"s_waitcnt vmcnt({16 + xs})")
        a(f"s_branch {tag}_M")
        a.lab(f"{tag}_N")
        if not LG: a("s_waitcnt vmcnt(0)")
        a.lab(f"{tag}_M")
        if not LG:
            signal(41)
            eager_publish()
            gate()
        ustamp(2)
        w_compute(40)
        ustamp(3)
        advance()
        a("s_waitcnt vmcnt(16)")
        publish()
    def x_phase(tag):
        ustamp(4)
        if LG:
            a("s_waitcnt vmcnt(0)")
            signal(41)
            if not OPT.get('defpub'): eager_publish()
            if OPT.get('gfirst'): gate_at(2 * OPT.get('gateg', 13) + 2, tag)
        a("s_cmp_eq_u32 s27, 0")
        a(f"s_cbranch_scc1 {tag}_N")
        interleave_perm(a, XR, OPS, 28, 29, OPT.get('pnocomp'))
        interleave_perm(a, XR + 32, XR, 28, 29, OPT.get('pnocomp'))
        a.lab(f"{tag}_N")
        if LG and not OPT.get('gfirst'): gate_at(2 * OPT.get('gateg', 13) + 2, tag)
        a("s_add_u32 s42, s40, 1")
        w_loads(42)
        ustamp(5)
        if not LG:
            a(f"s_waitcnt vmcnt({8 + xs})")
            signal(41)
            eager_publish()
        a("s_cmp_eq_u32 s27, 0")
        a(f"s_cbranch_scc1 {tag}_E")
        if not LG: gate()
        ustamp(6)
        x_compute(40)
        ustamp(7)
        advance()
        a(f"s_waitcnt vmcnt({8 if OPT.get('xsplit') else 16})")
        a(f"s_branch {tag}_F")
        a.lab(f"{tag}_E")
        advance()
        a("s_waitcnt vmcnt(0)")
        a.lab(f"{tag}_F")
        publish()

    KP = OPT.get('kpre', 0)
    if KP:
        a(f"s_mov_b32 s40, {KP}")
    else:
        a("s_lshr_b32 s40, s3, 2")
    a("s_xor_b32 s43, s40, s20")
    a("s_and_b32 s43, s43, 1")
    tile_of(40)
    a("s_cmp_eq_u32 s43, 0")
    a("s_cbranch_scc0 K12_PL1")
    w_loads(40)
    a("s_branch K12_PL2")
    a.lab("K12_PL1")
    a("s_cmp_eq_u32 s27, 0")
    a("s_cbranch_scc1 K12_PL2")
    x_loads(40)
    a.lab("K12_PL2")
    if KP and OPT.get('touch', 1) and not OPT.get('tlate'):
        touch_block(1, OPT.get('tfirst', 1) if OPT.get('tstage') else 8)
    if OPT.get('stamp'):
        a("s_memrealtime s[84:85]")
    if KP:
        table_params(a, 64, 44, 128, 129, 130)
        a("v_lshlrev_b32 v131, 3, v65")
        for ks in range(1 if OPT.get('tsplit') else 2):
            if ks: a("v_add_u32 v131, 32, v131")
            a("v_lshlrev_b32 v132, 5, v129")
            a("v_mad_u32_u24 v133, v128, v131, v132")
            trig(a, 128, 133, 136, 144, 148, 152)
            a("s_lshl_b32 s37, s44, 12")
            a(f"s_add_u32 s37, s37, {TABX + ks*2048}")
            a(f"v_add_u32 v132, s37, v{vLA}")
            a("ds_write_b128 v132, v[144:147]")
            a("ds_write_b128 v132, v[148:151] offset:1024")
    else:
        table_params(a, 64, 44, 128, 129, 130)
        a("v_lshlrev_b32 v131, 3, v65")
        a("s_lshr_b32 s36, s3, 2")
        a("s_lshl_b32 s37, s36, 5")
        a("v_add_u32 v131, s37, v131")
        a("v_lshlrev_b32 v132, 5, v129")
        a("v_mad_u32_u24 v133, v128, v131, v132")
        trig(a, 128, 133, 136, 144, 148, 152)
        a("s_lshl_b32 s37, s44, 12")
        a("s_lshl_b32 s36, s36, 11")
        a("s_add_u32 s37, s37, s36")
        a(f"v_add_u32 v132, s37, v{vLA}")
        a(f"ds_write_b128 v132, v[144:147] offset:{TABX}")
        a(f"ds_write_b128 v132, v[148:151] offset:{TABX + 1024}")
        a("s_cmp_ge_u32 s3, 4")
        a("s_cbranch_scc1 K12_TB")
        a("v_and_b32 v131, 1, v65")
        a("v_lshlrev_b32 v131, 3, v131")
        a("v_mul_u32_u24 v132, 96, v129")
        a("v_mad_u32_u24 v133, v128, v131, v132")
        trig(a, 128, 133, 136, 144, 148, 152)
        a("v_cmp_lt_u32 vcc, 1, v65")
        a("s_lshl_b32 s37, s44, 10")
        a(f"v_add_u32 v132, s37, v{vLA}")
        for q in range(4):
            a(f"v_cndmask_b32 v{144+q}, v{144+q}, v{148+q}, vcc")
        a(f"ds_write_b128 v132, v[144:147] offset:{TABW}")
        a("v_mov_b32 v136, 0"); a("v_mov_b32 v137, 0"); a("v_mov_b32 v138, 0"); a("v_mov_b32 v139, 0")
        a(f"s_mul_i32 s36, s44, {SB2}")
        a(f"s_add_u32 s36, s36, {167*128}")
        a(f"v_add_u32 v132, s36, v{vLA}")
        a("ds_write_b128 v132, v[136:139]")
        a("s_mov_b64 exec, 0xff")
        a("ds_write_b128 v132, v[136:139] offset:1024")
        a("s_mov_b64 exec, -1")
        a("s_lshl_b32 s36, s44, 2")
        a(f"s_add_u32 s36, s36, {SYNC}")
        a("v_mov_b32 v132, s36")
        a("ds_write_b32 v132, v136")
        a("s_lshl_b32 s36, s44, 3")
        a(f"s_add_u32 s36, s36, {PCNT}")
        a("v_mov_b32 v132, s36")
        a("ds_write_b64 v132, v[136:137]")
        a("s_lshl_b32 s36, s44, 3")
        a(f"s_add_u32 s36, s36, {MIRROR}")
        a("v_mov_b32 v132, s36")
        a("ds_write_b64 v132, v[136:137]")
        a(f"v_mov_b32 v132, {ISSUED}")
        a("ds_write_b32 v132, v136")
        a(f"v_mov_b32 v132, {ONES}")
        a("v_mov_b32 v133, 1")
        a("ds_write_b32 v132, v133")
    a.lab("K12_TB")
    a("s_waitcnt lgkmcnt(0)")
    a("s_barrier")
    if OPT.get('stamp'):
        a("s_memrealtime s[86:87]")
    a(f"v_add_u32 v{vT}, {TABX}, v{vLA}")
    for fr in range(8):
        a(f"ds_read_b128 v[{FH+4*fr}:{FH+4*fr+3}], v{vT} offset:{(fr>>1)*4096 + (fr&1)*2048}")
        a(f"ds_read_b128 v[{FL+4*fr}:{FL+4*fr+3}], v{vT} offset:{(fr>>1)*4096 + (fr&1)*2048 + 1024}")
        if fr == 3: a("s_waitcnt lgkmcnt(0)")
    for rb in range(4):
        a(f"ds_read_b128 v[{FW+4*rb}:{FW+4*rb+3}], v{vT} offset:{16384 + rb*1024}")
    if KP:
        a("s_waitcnt lgkmcnt(0)")
        a("s_barrier")
    a("s_waitcnt vmcnt(0) lgkmcnt(0)")
    if OPT.get('stamp'):
        a("s_memrealtime s[88:89]")
    a("s_mov_b32 s41, -1")
    a("s_mov_b32 s34, -1")
    if not KP:
        a("s_cmp_lt_u32 s3, 4")
        a("s_cbranch_scc0 K12_PROD")
        a("s_cmp_eq_u32 s43, 0")
        a("s_cbranch_scc0 K12_H1")
        interleave_perm(a, WR, OPS, 28, 29, OPT.get('pnocomp'))
        w_compute(40)
        a("s_branch K12_H2")
        a.lab("K12_H1")
        a("s_cmp_eq_u32 s27, 0")
        a("s_cbranch_scc1 K12_H2")
        interleave_perm(a, XR, OPS, 28, 29, OPT.get('pnocomp'))
        interleave_perm(a, XR + 32, XR, 28, 29, OPT.get('pnocomp'))
        x_compute(40)
        a.lab("K12_H2")
        a("s_mov_b64 exec, 1")
        a(f"v_mov_b32 v{vT}, {ISSUED}")
        a(f"v_mov_b32 v{OPS}, 1")
        a(f"ds_add_u32 v{vT}, v{OPS}")
        a("s_mov_b64 exec, -1")
        if OPT.get('stamp'):
            a("s_memrealtime s[90:91]")
        a("s_waitcnt vmcnt(0)")
        if OPT.get('stamp'):
            a("s_memrealtime s[92:93]")
            a("s_waitcnt lgkmcnt(0)")
            srd(a, 68, 58, O['ST'] + (7 << 20), 1 << 20)
            for k in range(10):
                a(f"v_mov_b32 v{128+k}, s{84+k}")
            a("v_mov_b32 v138, s82"); a("v_mov_b32 v139, s83"); a("v_mov_b32 v140, 0")
            a("s_lshl_b32 s72, s2, 2"); a("s_add_u32 s72, s72, s3"); a("s_lshl_b32 s72, s72, 6")
            a("s_mov_b64 exec, 1")
            for k in range(3):
                a(f"buffer_store_dwordx4 v[{128+4*k}:{131+4*k}], v140, s[68:71], s72 offen offset:{16*k}")
            a("s_mov_b64 exec, -1")
        a("s_mov_b32 s41, 0")
        signal(41)
        a("s_waitcnt vmcnt(0)")
        publish()
        if OPT.get('stamp'):
            a("s_memrealtime s[80:81]")
        a("s_branch K12_CONS")
    a.lab("K12_PROD")
    if KP and OPT.get('touch', 1) and OPT.get('tlate') and OPT.get('tlate') != 99:
        a(f"s_mov_b32 s37, {SPIN * 8}")
        a.lab("K12_TW")
        a(f"v_mov_b32 v{TMP}, {SYNC}")
        a(f"ds_read_b32 v{TMP}, v{TMP}")
        a("s_waitcnt lgkmcnt(0)")
        a(f"v_cmp_gt_u32 vcc, {OPT.get('tlate')}, v{TMP}")
        a("s_sub_u32 s37, s37, 1")
        a("s_cmp_eq_u32 s37, 0")
        a("s_cbranch_scc1 K12_TX")
        a("s_cbranch_vccz K12_TX")
        a("s_sleep 2")
        a("s_branch K12_TW")
        a.lab("K12_TX")
        touch_block(1, OPT.get('tfirst', 1) if OPT.get('tstage') else 8)
    if OPT.get('noprod') == 1:
        a("s_endpgm")
    if OPT.get('noprod') == 2:
        a("s_mov_b32 s37, 4000")
        a.lab("K12_IDLE")
        a("s_sleep 64")
        a(f"v_mov_b32 v{TMP}, {SYNC}")
        a(f"ds_read_b32 v{TMP}, v{TMP}")
        a("s_waitcnt lgkmcnt(0)")
        a(f"v_cmp_gt_u32 vcc, 34, v{TMP}")
        a("s_sub_u32 s37, s37, 1")
        a("s_cmp_eq_u32 s37, 0")
        a("s_cbranch_scc1 K12_IDLE_X")
        a("s_cbranch_vccnz K12_IDLE")
        a.lab("K12_IDLE_X")
        a("s_endpgm")
    if OPT.get('pprio', 1) and not OPT.get('dynprio'):
        a(f"s_setprio {OPT.get('pprio', 1)}")
    a("s_cmp_eq_u32 s43, 0")
    a("s_cbranch_scc1 K12_WENTRY")
    a.lab("K12_XW")
    x_phase("K12_XP")
    a("s_cmp_ge_u32 s40, 8")
    a("s_cbranch_scc1 K12_PFIN")
    a.lab("K12_WENTRY")
    w_phase("K12_WP")
    a("s_cmp_lt_u32 s40, 8")
    a("s_cbranch_scc1 K12_XW")
    a.lab("K12_PFIN")
    a("s_waitcnt vmcnt(0)")
    signal(41)
    a("s_waitcnt vmcnt(0)")
    publish()
    a("s_endpgm")


def k1mix(a, O, OPT):
    WSTR = O['WSTR']; KP = OPT['kpre']; lo = OPT.get('xlo', 1)
    NWG = 256 * KP
    TX, TW = 0, (16384 if lo else 8192)
    a.raw(".p2align 8")
    a.raw(".type k1_xform_kernel,@function")
    a.lab("k1_xform_kernel")
    a(f"s_cmp_ge_u32 s2, {NWG}")
    a("s_cbranch_scc1 K1_END")
    stamp_begin(a)
    a("s_load_dwordx4 s[4:7], s[0:1], 0")
    a("s_load_dwordx2 s[8:9], s[0:1], 48")
    a("v_lshrrev_b32 v120, 6, v0")
    a("v_and_b32 v121, 63, v0")
    a("v_readfirstlane_b32 s3, v120")
    a("v_and_b32 v122, 15, v121")
    a("v_lshrrev_b32 v123, 4, v121")
    a("v_lshlrev_b32 v121, 4, v121")
    a("s_mov_b32 s28, 0x05040100")
    a("s_mov_b32 s29, 0x07060302")
    if OPT.get('kaorder', 0) == 0:
        a("s_lshr_b32 s40, s2, 8")
        a("s_and_b32 s41, s2, 255")
    else:
        a(f"s_mul_hi_u32 s41, s2, {(2**32 + KP - 1) // KP}")
        a(f"s_mul_i32 s40, s41, {KP}")
        a("s_sub_u32 s40, s2, s40")
    a("s_and_b32 s20, s3, 1")
    a("s_lshr_b32 s21, s3, 1")
    a("s_xor_b32 s43, s40, s20")
    a("s_and_b32 s43, s43, 1")
    a("s_waitcnt lgkmcnt(0)")
    a("s_or_b32 s10, s2, s3")
    a("s_cmp_eq_u32 s10, 0")
    a("s_cbranch_scc0 K1_NOCLR")
    srd(a, 12, 8, O['SY'], 32768)
    a("v_lshrrev_b32 v118, 4, v121")
    a("v_lshlrev_b32 v119, 10, v118")
    a("v_mov_b32 v117, 0")
    a("s_mov_b64 exec, 0xffff")
    a("buffer_store_dword v117, v119, s[12:15], 0 offen")
    a("v_lshlrev_b32 v119, 4, v118")
    a("v_add_u32 v119, 16384, v119")
    a("buffer_store_dword v117, v119, s[12:15], 0 offen")
    a("s_mov_b64 exec, -1")
    a.lab("K1_NOCLR")
    if OPT.get('k34'):
        a("s_cmp_lt_u32 s2, 32")
        a("s_cbranch_scc0 K1_NOFILL")
        srd(a, 12, 8, O['PART'], 256 * 512)
        a("s_lshl_b32 s10, s2, 2")
        a("s_add_u32 s10, s10, s3")
        a("s_lshl_b32 s10, s10, 10")
        for k in range(4): a(f"v_mov_b32 v{112+k}, -1")
        a("buffer_store_dwordx4 v[112:115], v121, s[12:15], s10 offen")
        a.lab("K1_NOFILL")
    a("s_cmp_eq_u32 s43, 0")
    a("s_cbranch_scc1 K1_WL")
    a("s_and_b32 s24, s41, 7")
    a("s_lshl_b32 s24, s24, 5")
    a("s_lshr_b32 s25, s41, 3")
    a("s_add_u32 s24, s24, s25")
    a("s_mul_i32 s36, s40, 85")
    a("s_add_u32 s36, s36, s41")
    a("s_and_b32 s36, s36, 255")
    a("s_mul_hi_u32 s37, s36, 0x55555556")
    a("s_mul_i32 s38, s37, 3")
    a("s_cmp_eq_u32 s38, s36")
    a("s_cselect_b32 s27, 1, 0")
    a("s_cmp_lt_u32 s37, 78")
    a("s_cselect_b32 s27, s27, 0")
    a("s_add_u32 s37, s37, 256")
    a("s_cmp_eq_u32 s21, 0")
    a("s_cselect_b32 s24, s24, s37")
    a("s_cselect_b32 s27, 1, s27")
    a(f"s_cmp_ge_u32 s24, {NT}")
    a("s_cselect_b32 s13, 1, 0")
    a(f"s_mul_i32 s26, s13, {NT}")
    a("s_sub_u32 s11, s24, s26")
    a("s_mul_i32 s14, s13, 16384000")
    srd(a, 16, 4, "s14", 16384000)
    srd(a, 20, 8, O['XT'] if O['XT'] else None, XT_SIZE)
    a("v_lshlrev_b32 v126, 14, v123")
    a("v_lshl_add_u32 v126, v122, 4, v126")
    a(f"s_mul_i32 s15, s11, {48*2048}")
    a("s_lshl_b32 s24, s40, 8")
    a("s_add_u32 s15, s15, s24")
    a("s_cmp_eq_u32 s27, 0")
    a("s_cbranch_scc1 K1_TAB")
    for ks in range(2):
        for e2 in range(4):
            r = 32 * ks + 8 * e2
            a(f"buffer_load_dwordx4 v[{r}:{r+3}], v126, s[16:19], s15 offen")
            a(f"buffer_load_dwordx4 v[{r+4}:{r+7}], v126, s[16:19], s15 offen offset:2048")
            if not (ks == 1 and e2 == 3):
                a(f"s_add_u32 s15, s15, {4096 if e2 < 3 else 32*2048 - 3*4096}")
    a("s_branch K1_TAB")
    a.lab("K1_WL")
    a("s_lshl_b32 s22, s41, 1")
    a("s_add_u32 s22, s22, s21")
    a("s_and_b32 s44, s22, 3")
    a("s_lshr_b32 s22, s22, 2")
    a("s_lshl_b32 s11, s40, 7")
    a("s_add_u32 s11, s11, s22")
    srd(a, 16, 6, None, 31 * 524288)
    srd(a, 20, 8, O['WT'], 128 * WSTR)
    a("s_lshr_b32 s12, s11, 9")
    a("s_and_b32 s13, s11, 511")
    a("s_lshl_b32 s14, s12, 19")
    a("s_lshl_b32 s15, s13, 10")
    a("s_add_u32 s14, s14, s15")
    a("s_lshl_b32 s15, s44, 8")
    a("s_add_u32 s15, s14, s15")
    a("v_and_b32 v126, 1, v123")
    a("v_lshlrev_b32 v126, 23, v126")
    a("v_lshl_add_u32 v126, v122, 4, v126")
    for e in range(8):
        a(f"buffer_load_dwordx4 v[{4*e}:{4*e+3}], v126, s[16:19], s15 offen")
        if e < 7: a("s_add_u32 s15, s15, 0x100000")
    a.lab("K1_TAB")
    table_params(a, 122, 3, 124, 125, 112, st=10)
    a("v_lshlrev_b32 v127, 3, v123")
    for ks in range(2):
        if ks: a("v_add_u32 v127, 32, v127")
        a("v_lshlrev_b32 v112, 5, v125")
        a("v_mad_u32_u24 v113, v124, v127, v112")
        trig(a, 124, 113, 64, 72, 76, 80)
        a(f"s_lshl_b32 s10, s3, {12 if lo else 11}")
        a("v_add_u32 v114, s10, v121")
        if lo:
            a(f"ds_write_b128 v114, v[72:75] offset:{TX + ks*2048}")
            a(f"ds_write_b128 v114, v[76:79] offset:{TX + ks*2048 + 1024}")
        else:
            a(f"ds_write_b128 v114, v[72:75] offset:{TX + ks*1024}")
    a("v_and_b32 v127, 1, v123")
    a("v_lshlrev_b32 v127, 3, v127")
    a("v_mul_u32_u24 v112, 96, v125")
    a("v_mad_u32_u24 v113, v124, v127, v112")
    trig(a, 124, 113, 64, 72, 76, 80)
    a("v_cmp_lt_u32 vcc, 1, v123")
    a("s_lshl_b32 s10, s3, 10")
    a("v_add_u32 v114, s10, v121")
    for q in range(4):
        a(f"v_cndmask_b32 v{72+q}, v{72+q}, v{76+q}, vcc")
    a(f"ds_write_b128 v114, v[72:75] offset:{TW}")
    a("s_waitcnt lgkmcnt(0)")
    a("s_barrier")
    a("s_cmp_eq_u32 s43, 0")
    a("s_cbranch_scc1 K1_WC")
    a("s_cmp_eq_u32 s27, 0")
    a("s_cbranch_scc1 K1_END")
    a("v_lshrrev_b32 v112, 1, v123")
    a(f"s_mov_b32 s24, {2*XFB}")
    a("v_mul_lo_u32 v112, v112, s24")
    a("v_lshrrev_b32 v113, 2, v122")
    a(f"s_mov_b32 s24, {XBLK}")
    a("v_mul_lo_u32 v113, v113, s24")
    a("v_add_u32 v112, v112, v113")
    a("v_and_b32 v113, 3, v122")
    a("v_and_b32 v114, 1, v123")
    a("v_lshl_add_u32 v113, v114, 2, v113")
    if OPT.get('b21'):
        a("s_add_u32 s24, s11, 7")
        a("s_cmp_ge_u32 s11, 160")
        a("s_cselect_b32 s24, s24, s11")
        a("s_cmp_eq_u32 s13, 1")
        a("s_cselect_b32 s24, s24, s11")
        a("s_lshr_b32 s24, s24, 1")
    else:
        a("s_lshr_b32 s24, s11, 1")
    a("s_and_b32 s24, s24, 7")
    a("v_xor_b32 v113, s24, v113")
    a("v_lshl_add_u32 v120, v113, 4, v112")
    a(f"s_mul_i32 s25, s13, {XFB}")
    a(f"s_mul_i32 s24, s40, {4*XBLK}")
    a("s_add_u32 s25, s25, s24")
    a("s_lshl_b32 s24, s11, 7")
    a("s_add_u32 s25, s25, s24")
    if OPT.get('mixlin'):
        a("v_mov_b32 v120, v121"); a("s_lshl_b32 s25, s2, 2"); a("s_add_u32 s25, s25, s3"); a("s_lshl_b32 s25, s25, 14"); a("s_and_b32 s25, s25, 0x1ffffff")
    a("s_waitcnt vmcnt(8)")
    interleave_perm(a, 0, 64, 28, 29)
    a("s_waitcnt vmcnt(0)")
    stamp_mid(a)
    interleave_perm(a, 32, 0, 28, 29)
    for rb in range(4):
        nfr = 4 if lo else 2
        for fr in range(nfr):
            off = TX + (rb*4096 + fr*1024 if lo else rb*2048 + fr*1024)
            a(f"ds_read_b128 v[{96+4*fr}:{99+4*fr}], v121 offset:{off}")
        for term in range(nfr):
            a(f"s_waitcnt lgkmcnt({nfr-1-term})")
            ops = (64 if term < 2 else 0) if lo else (64 if term == 0 else 0)
            for i in range(8):
                c = "0" if term == 0 else f"v[{32+4*i}:{35+4*i}]"
                a(f"v_mfma_f32_16x16x32_bf16 v[{32+4*i}:{35+4*i}], v[{96+4*term}:{99+4*term}], v[{ops+4*i}:{ops+4*i+3}], {c}")
        a("s_nop 7")
        for r in range(4):
            t = 112 + 4 * (r & 1)
            for q in range(4):
                a(f"v_cvt_pk_bf16_f32 v{t+q}, v{32+4*(2*q)+r}, v{32+4*(2*q+1)+r}")
            a(f"buffer_store_dwordx4 v[{t}:{t+3}], v120, s[20:23], s25 offen")
            if not (rb == 3 and r == 3):
                a(f"s_add_u32 s25, s25, {1024 if OPT.get('mixlin') else 2*2*XFB}")
    stamp_end(a, O, 0)
    a("s_endpgm")
    a.lab("K1_WC")
    a("v_lshrrev_b32 v112, 1, v123")
    a(f"s_mov_b32 s24, {4*WSTR}")
    a("v_mul_lo_u32 v112, v112, s24")
    a("v_and_b32 v113, 1, v123")
    a("v_lshl_add_u32 v112, v113, 8, v112")
    a("v_and_b32 v113, 1, v122")
    a("v_lshl_add_u32 v124, v113, 4, v112")
    a("v_lshrrev_b32 v125, 1, v122")
    a("s_and_b32 s30, s11, 3")
    a("s_lshr_b32 s24, s11, 1")
    a("s_and_b32 s24, s24, 4")
    a("s_or_b32 s30, s30, s24")
    a("v_xor_b32 v112, s30, v125")
    a("v_lshl_add_u32 v120, v112, 5, v124")
    a(f"s_mul_i32 s25, s44, {WSTR}")
    a("s_lshl_b32 s24, s11, 9")
    a("s_add_u32 s25, s25, s24")
    for rb in range(4):
        a(f"ds_read_b128 v[{96+4*rb}:{99+4*rb}], v121 offset:{TW + rb*1024}")
    a("s_waitcnt vmcnt(0) lgkmcnt(0)")
    stamp_mid(a)
    interleave_perm(a, 0, 32, 28, 29)
    a("s_nop 1")
    for rb in range(4):
        for i in range(8):
            a(f"v_mfma_f32_16x16x32_bf16 v[{64+4*i}:{67+4*i}], v[{96+4*rb}:{99+4*rb}], v[{32+4*i}:{35+4*i}], 0")
        a("s_nop 7")
        for r in range(4):
            t = 112 + 4 * (r & 1)
            for q in range(4):
                a(f"v_cvt_pk_bf16_f32 v{t+q}, v{64+4*(2*q)+r}, v{64+4*(2*q+1)+r}")
            a(f"buffer_store_dwordx4 v[{t}:{t+3}], v120, s[20:23], s25 offen")
            if not (rb == 3 and r == 3):
                a(f"s_add_u32 s25, s25, {2*4*WSTR}")
    stamp_end(a, O, 0)
    a.lab("K1_END")
    a("s_endpgm")
    return ("k1_xform_kernel", NWG, 256, TW + 4096, 128)
```

```python
from gen import *
import gen
from kernels3 import BOFF2, SB2, NBUF2, SYNC

PCNT = SYNC + 32
ISSUED = SYNC + 16
MIRROR = SYNC + 64
ONES = MIRROR + 32
DUMMY = MIRROR + 64
PBAR = DUMMY + 64
LDS12 = PBAR + 32
TABX = 0
TABW = 16384
SPIN = 16384

def k12(a, O, OPT):
    global TABX, TABW
    WSTR = O['WSTR']
    if OPT.get('kpre'):
        TABX = 3 * SB2
        TABW = TABX + 16384
    a.raw(".p2align 8")
    a.raw(".type k12_fused_kernel,@function")
    a.lab("k12_fused_kernel")
    a("s_cmp_ge_u32 s2, 256")
    a("s_cbranch_scc1 K12_END")
    a("s_load_dwordx4 s[52:55], s[0:1], 0")
    a("s_load_dwordx4 s[56:59], s[0:1], 40")
    code_prefetch(a, "k12_fused_kernel", "K12", 0, 8, 8)
    if OPT.get('stamp'):
        a("s_memtime s[80:81]")
        a("s_memrealtime s[82:83]")
    a("v_lshrrev_b32 v1, 6, v0")
    a("v_and_b32 v2, 63, v0")
    a("v_readfirstlane_b32 s3, v1")
    a("s_waitcnt lgkmcnt(0)")
    if OPT.get('kpre'):
        a("s_cmp_lt_u32 s3, 4")
        a("s_cbranch_scc1 K12_CONS")
    producer(a, O, OPT)
    a.lab("K12_CONS")
    consumer(a, O, OPT)
    a.lab("K12_END")
    a("s_endpgm")
    return ("k12_fused_kernel", 256, 512, LDS12, 256)

def PLF(OPT):
    return {0: "", 1: " sc1", 2: " nt", 3: " sc1 nt", 4: " sc0 sc1"}[OPT.get('plf', 0)]

def table_params(a, vRho, sRb, vA, vRi, tmp, st=36):
    a(f"v_and_b32 v{vA}, 3, v{vRho}")
    a(f"v_lshlrev_b32 v{vA}, 2, v{vA}")
    a(f"v_lshrrev_b32 v{tmp}, 3, v{vRho}")
    a(f"v_lshl_add_u32 v{vA}, v{tmp}, 1, v{vA}")
    a(f"s_lshl_b32 s{st}, s{sRb}, 4")
    a(f"s_add_u32 s{st}, s{st}, 1")
    a(f"v_add_u32 v{vA}, s{st}, v{vA}")
    a(f"v_bfe_u32 v{vRi}, v{vRho}, 2, 1")

def lds_init(a, sw, vLane16, z):
    for k in range(4): a(f"v_mov_b32 v{z+k}, 0")
    a(f"s_mul_i32 s28, s{sw}, {SB2}")
    if gen.OPT.get('b21'):
        a(f"s_add_u32 s28, s28, {174*128}")
        a(f"v_add_u32 v{z+4}, s28, v{vLane16}")
        a("s_mov_b64 exec, 0xffff")
        a(f"ds_write_b128 v{z+4}, v[{z}:{z+3}]")
        a("s_mov_b64 exec, -1")
    else:
        a(f"s_add_u32 s28, s28, {167*128}")
        a(f"v_add_u32 v{z+4}, s28, v{vLane16}")
        a(f"ds_write_b128 v{z+4}, v[{z}:{z+3}]")
        a("s_mov_b64 exec, 0xff")
        a(f"ds_write_b128 v{z+4}, v[{z}:{z+3}] offset:1024")
        a("s_mov_b64 exec, -1")
    for base, sh, wide in ((SYNC, 2, False), (PCNT, 3, True), (MIRROR, 3, True), (PBAR, 3, True)):
        a(f"s_lshl_b32 s28, s{sw}, {sh}")
        a(f"s_add_u32 s28, s28, {base}")
        a(f"v_mov_b32 v{z+4}, s28")
        a(f"ds_write_b64 v{z+4}, v[{z}:{z+1}]" if wide else f"ds_write_b32 v{z+4}, v{z}")
    a(f"v_mov_b32 v{z+4}, {ISSUED}")
    a(f"ds_write_b32 v{z+4}, v{z}")
    a(f"v_mov_b32 v{z+4}, {ONES}")
    a(f"v_mov_b32 v{z+5}, 1")
    a(f"ds_write_b32 v{z+4}, v{z+5}")

def consumer(a, O, OPT):
    WSTR = O['WSTR']
    AF, BP, BQ, NW, ACC = 8, 40, 56, 72, 80
    vT, vL, vAr, vAi, vB, vPA, vWA = 0, 1, 2, 3, 4, 5, 7
    sc = " sc1" if OPT.get('dmasc1', 1) else ""
    a("s_and_b32 s6, s2, 7")
    a("s_lshl_b32 s6, s6, 2")
    a("s_lshr_b32 s7, s2, 6")
    a("s_add_u32 s6, s6, s7")
    a("s_mov_b32 s51, s6")
    a("s_mov_b32 s27, s6")
    a("s_lshr_b32 s7, s2, 3")
    a("s_and_b32 s7, s7, 7")
    a("s_lshr_b32 s20, s7, 2")
    a("s_and_b32 s21, s7, 3")
    a("s_lshl_b32 s22, s6, 1")
    a("s_add_u32 s22, s22, s20")
    a("s_lshl_b32 s23, s6, 2")
    a("s_add_u32 s23, s23, s21")
    a(f"s_mul_i32 s24, s22, {XFB}")
    a(f"s_mul_i32 s25, s23, {WSTR}")
    a(f"s_add_u32 s25, s25, {O['WT']}")
    a(f"s_mul_i32 s26, s22, {YFB}")
    a(f"s_add_u32 s26, s26, {O['YT']}")
    if O['XT']:
        a(f"s_add_u32 s24, s24, {O['XT']}")
    srd(a, 8, 58, "s24", XFB)
    srd(a, 12, 58, "s25", 524288)
    srd(a, 16, 58, "s26", YFB)
    if OPT.get('kpre'):
        a(f"s_add_u32 s4, s58, {O['SY'] + 16384}")
        a("s_addc_u32 s5, s59, 0")
    else:
        a("s_add_u32 s4, s56, 128")
        a("s_addc_u32 s5, s57, 0")
    a("s_and_b32 s5, s5, 0xffff")
    a("s_cmp_eq_u32 s3, 0")
    a("s_cselect_b32 s6, 128, 0")
    a("s_mov_b32 s7, 0x00020000")
    a(f"s_mov_b32 s46, {MIRROR}")
    a(f"s_cselect_b32 s46, s46, {DUMMY}")
    a(f"s_mov_b32 s47, {MIRROR}")
    a(f"s_cselect_b32 s47, s47, {ONES}")
    a("s_cselect_b32 s45, 4, 0")
    a("s_mov_b32 s50, s45")
    KP = OPT.get('kpre', 0)
    if not KP:
        a(f"v_lshrrev_b32 v2, 4, v254")
    a("v_and_b32 v8, 15, v2")
    a("v_lshrrev_b32 v9, 4, v2")
    a(f"v_lshlrev_b32 v{vL}, 4, v2")
    a("s_mul_i32 s30, s3, 5120")
    a("s_mov_b32 s36, s30")
    a("s_lshl_b32 s31, s3, 12")
    a(f"s_add_u32 s37, s31, {BOFF2}")
    B21 = OPT.get('b21', 0)
    if B21:
        a("s_lshr_b32 s28, s3, 1")
        a("s_and_b32 s29, s3, 1")
        a("s_lshl_b32 s33, s29, 9")
        a("s_add_u32 s33, s33, 20480")
        a("s_mul_i32 s38, s28, 896")
        a("s_add_u32 s38, s38, s33")
        a("s_lshl_b32 s34, s6x, 1".replace("s6x", "s51"))
        a("s_add_u32 s34, s34, s28")
        a(f"s_mul_i32 s34, s34, {XFB}")
        if O['XT']: a(f"s_add_u32 s34, s34, {O['XT']}")
        srd(a, 64, 58, "s34", XFB)
        a("s_mov_b32 s44, 0xffffff")
        a("s_cmp_eq_u32 s29, 0")
        a("s_cselect_b32 s44, -1, s44")
        a("s_mov_b32 s45, 0")
    else:
      a("s_lshl_b32 s33, s3, 8")
      a("s_add_u32 s33, s33, 20480")
      a("s_mov_b32 s38, s33")
      a("s_mov_b32 s44, 0xffff")
    if not B21:
      a("s_cmp_eq_u32 s3, 3")
      a("s_cselect_b32 s44, 0xff, s44")
      a("s_mov_b32 s45, 0")
    def dma_groups(sbuf):
        g = []
        g.append([f"s_add_u32 m0, s{sbuf}, s36", "s_nop 0", f"buffer_load_dwordx4 v{vL}, s[8:11], s30 offen{sc} lds"])
        for k in range(1, 4):
            g.append([f"buffer_load_dwordx4 v{vL}, s[8:11], s30 offen offset:{1024*k}{sc} lds"])
        g.append(["s_add_u32 m0, m0, 4096", "s_add_u32 s34, s30, 4096", f"buffer_load_dwordx4 v{vL}, s[8:11], s34 offen{sc} lds"])
        g.append([f"s_add_u32 m0, s{sbuf}, s37", f"s_add_u32 s30, s30, {XBLK}", f"buffer_load_dwordx4 v{vL}, s[12:15], s31 offen{sc} lds"])
        for k in range(1, 4):
            g.append([f"buffer_load_dwordx4 v{vL}, s[12:15], s31 offen offset:{1024*k}{sc} lds"])
        g.append([f"s_add_u32 m0, s{sbuf}, s38", "s_mov_b64 exec, s[44:45]",
                  f"buffer_load_dwordx4 v{vL}, {'s[64:67]' if B21 else 's[8:11]'}, s33 offen{sc} lds", "s_mov_b64 exec, -1",
                  "s_add_u32 s31, s31, 16384", f"s_add_u32 s33, s33, {XBLK}"])
        return g
    def mirror_dma():
        return ["s_mov_b32 m0, s46", "s_mov_b64 exec, 0xff", f"buffer_load_dword v{vL}, s[4:7], 0 offen sc1 lds", "s_mov_b64 exec, -1"]
    a("v_lshrrev_b32 v10, 1, v8")
    a("v_xor_b32 v10, v10, v9")
    a("v_lshlrev_b32 v10, 4, v10")
    a(f"v_lshl_add_u32 v{vAr}, v8, 7, v10")
    a(f"v_xor_b32 v{vAi}, 64, v{vAr}")
    a("v_lshrrev_b32 v10, 2, v8")
    a("v_lshl_add_u32 v11, v9, 3, v10")
    a("v_lshlrev_b32 v11, 9, v11")
    a("v_and_b32 v12, 1, v9")
    a("v_lshl_or_b32 v10, v12, 2, v10")
    a("s_lshl_b32 s28, s3, 1")
    a("v_xor_b32 v10, s28, v10")
    a("v_lshl_add_u32 v11, v10, 5, v11")
    a("v_and_b32 v10, 3, v8")
    a("v_lshl_add_u32 v11, v10, 3, v11")
    a(f"v_add_u32 v{vB}, {BOFF2}, v11")
    if B21:
        a("s_lshl_b32 s28, s20, 5")
        a(f"v_xor_b32 v{vB}, s28, v{vB}")
    a("v_and_b32 v10, 3, v8")
    a("v_lshlrev_b32 v10, 2, v10")
    a(f"v_add_u32 v{vPA}, {SYNC}, v10")
    a("s_lshl_b32 s28, s3, 2")
    a(f"s_add_u32 s28, s28, {SYNC}")
    a(f"v_mov_b32 v{vWA}, s28")
    a("s_mov_b32 s35, 0x80008000")

    slow = []
    nlab = [0]
    def flag_wait_loop(lab, saddr, back):
        r = [f"{lab}:", f"s_mov_b32 s61, {SPIN}", "s_add_u32 s63, s63, 1"] + (["s_memrealtime s[70:71]"] if OPT.get('stamp') else []) + [f"{lab}_L:"] + mirror_dma() + ["s_waitcnt vmcnt(0)",
             f"v_mov_b32 v{vT}, s{saddr}", f"ds_read_b32 v{vT}, v{vT}", "s_waitcnt lgkmcnt(0)",
             f"v_cmp_eq_u32 vcc, 0, v{vT}", "s_sub_u32 s61, s61, 1", "s_cmp_eq_u32 s61, 0",
             f"s_cbranch_scc1 {lab}_X", f"s_cbranch_vccz {lab}_X", f"s_sleep {OPT.get('fsleep', 2)}", f"s_branch {lab}_L", f"{lab}_X:"]
        if OPT.get('stamp'):
            r += ["s_memrealtime s[72:73]", "s_waitcnt lgkmcnt(0)", "s_sub_u32 s72, s72, s70", "s_add_u32 s69, s69, s72"]
        if back: r.append(f"s_branch {back}")
        return r
    def emit(ins):
        if ins.endswith(":"): a.lab(ins[:-1])
        else: a(ins)
    def poll_slow(vP, sv=40):
        n = nlab[0]; nlab[0] += 1
        slow.extend([f"K12_S{n}:", f"s_mov_b32 s61, {SPIN}", "s_add_u32 s62, s62, 1", f"K12_S{n}_L:", f"ds_read_b32 v{vP}, v{vPA}", "s_waitcnt lgkmcnt(0)",
                     f"v_cmp_gt_u32 vcc, s{sv}, v{vP}", "s_sub_u32 s61, s61, 1", "s_cmp_eq_u32 s61, 0", f"s_cbranch_scc1 K12_Q{n}",
                     f"s_cbranch_vccz K12_Q{n}"] + ([f"s_sleep {OPT['lsleep']}"] if OPT.get('lsleep') else []) + [f"s_branch K12_S{n}_L"])
        return n
    a("s_mov_b32 s62, 0"); a("s_mov_b32 s63, 0"); a("s_mov_b32 s69, 0")
    if OPT.get('noncons'):
        a("s_endpgm")
    if KP:
        pre_prologue = True
    else:
      for r in range(176):
        a(f"v_mov_b32 v{ACC+r}, 0")
      for ins in flag_wait_loop("K12_W0", 47, None): emit(ins)
    if not KP:
        a("s_mov_b32 s40, 1")
        a(f"v_mov_b32 v{vT}, s40")
        a(f"ds_write_b32 v{vWA}, v{vT}")
        n0 = poll_slow(BQ)
        a(f"s_branch K12_S{n0}")
        a.lab(f"K12_Q{n0}")
    if OPT.get('stamp'):
        a("s_memtime s[84:85]")
        a("s_memrealtime s[86:87]")
    a("s_mov_b32 s39, 0")
    for st in range(3):
        for grp in dma_groups(39):
            for ins in grp: a(ins)
        a(f"s_add_u32 s39, s39, {SB2}")
    for ins in mirror_dma(): a(ins)
    if OPT.get('prostamp'):
        a("s_memrealtime s[92:93]"); a("s_waitcnt lgkmcnt(0)"); a("v_writelane_b32 v248, s92, 19")
    if KP:
        a(f"v_lshrrev_b32 v9, 4, v{vL}"); a("v_and_b32 v8, 15, v9"); a("v_lshrrev_b32 v9, 4, v9")
        table_params(a, 8, 3, 10, 11, 12, st=28)
        a("v_and_b32 v13, 1, v9")
        a("v_lshlrev_b32 v13, 3, v13")
        a("v_mul_u32_u24 v14, 96, v11")
        a("v_mad_u32_u24 v15, v10, v13, v14")
        trig(a, 10, 15, 16, 24, 28, 32)
        a("v_cmp_lt_u32 vcc, 1, v9")
        a("s_lshl_b32 s28, s3, 10")
        a(f"s_add_u32 s28, s28, {TABW}")
        a(f"v_add_u32 v14, s28, v{vL}")
        for q in range(4):
            a(f"v_cndmask_b32 v{24+q}, v{24+q}, v{28+q}, vcc")
        a("ds_write_b128 v14, v[24:27]")
        if OPT.get('tsplit'):
            a("v_lshlrev_b32 v13, 3, v9")
            a("v_add_u32 v13, 32, v13")
            a("v_lshlrev_b32 v14, 5, v11")
            a("v_mad_u32_u24 v15, v10, v13, v14")
            trig(a, 10, 15, 16, 24, 28, 32)
            a("s_lshl_b32 s28, s3, 12")
            a(f"s_add_u32 s28, s28, {TABX + 2048}")
            a(f"v_add_u32 v14, s28, v{vL}")
            a("ds_write_b128 v14, v[24:27]")
            a("ds_write_b128 v14, v[28:31] offset:1024")
        lds_init(a, 3, vL, 12)
        a("s_waitcnt lgkmcnt(0)")
        a("s_barrier")
        for r in range(168 if B21 else 176):
            a(f"v_mov_b32 v{ACC+r}, 0")
        a("s_barrier")

    def a_reads(rb):
        s = AF + 8 * (rb % 4)
        return [f"ds_read_b128 v[{s}:{s+3}], v{vAr} offset:{rb*2048}",
                f"ds_read_b128 v[{s+4}:{s+7}], v{vAi} offset:{rb*2048}"]
    def b_reads(B):
        r = []
        for cb in range(2):
            for ri in range(2):
                d = B + 8 * cb + 4 * ri
                for t in range(2):
                    r.append(f"ds_read_b64_tr_b16 v[{d+2*t}:{d+2*t+1}], v{vB} offset:{ri*256+t*2048}")
            r.append(f"v_xor_b32 v{vB}, 32, v{vB}")
        return r
    def b_xor(B, cb):
        return [f"v_xor_b32 v{NW+4*cb+q}, s35, v{B+8*cb+4+q}" for q in range(4)]
    def mfmas(rb, B):
        s = AF + 8 * (rb % 4)
        Ar, Ai = s, s + 4
        def acc(cb, ri): return ACC + ((rb * 2 + cb) * 2 + ri) * 4
        def m(d, x, y): return f"v_mfma_f32_16x16x32_bf16 v[{d}:{d+3}], v[{x}:{x+3}], v[{y}:{y+3}], v[{d}:{d+3}]"
        Wr = lambda cb: B + 8 * cb
        Wi = lambda cb: B + 8 * cb + 4
        nWi = lambda cb: NW + 4 * cb
        if B21 and rb == 10:
            return [m(acc(0,0), Ar, Wr(0)), m(acc(0,1), Ar, Wi(0)), m(acc(0,0), Ai, nWi(0)), m(acc(0,1), Ai, Wr(0))]
        return [m(acc(0,0), Ar, Wr(0)), m(acc(0,1), Ar, Wi(0)), m(acc(1,0), Ar, Wr(1)), m(acc(1,1), Ar, Wi(1)),
                m(acc(0,0), Ai, nWi(0)), m(acc(0,1), Ai, Wr(0)), m(acc(1,0), Ai, nWi(1)), m(acc(1,1), Ai, Wr(1))]
    a("s_mov_b32 s40, 2")
    a(f"v_mov_b32 v{vT}, s40")
    if OPT.get('prostamp'):
        for i_, n_ in enumerate((21, 11, 1)):
            a(f"s_waitcnt vmcnt({n_})")
            a("s_memrealtime s[92:93]"); a("s_waitcnt lgkmcnt(0)")
            a(f"v_writelane_b32 v248, s92, {20+i_}")
    a(f"s_waitcnt vmcnt({OPT.get('prowait', 21)})")
    a(f"ds_write_b32 v{vWA}, v{vT}")
    n = poll_slow(BQ)
    a(f"s_branch K12_S{n}")
    a.lab(f"K12_Q{n}")
    if OPT.get('stamp'):
        a("s_memtime s[88:89]")
        a("s_memrealtime s[90:91]")
    for ins in b_reads(BP): a(ins)
    for rb in (0, 1, 3):
        for ins in a_reads(rb): a(ins)
    QD = 12 if B21 else 4
    a(f"ds_read_b32 v{BQ+QD}, v{vPA}")
    a("s_waitcnt lgkmcnt(7)")
    for cb in range(2):
        for ins in b_xor(BP, cb): a(ins)
    if OPT.get('cprio'): a(f"s_setprio {OPT['cprio']}")
    a("s_mov_b32 s41, 0")
    a(f"s_mov_b32 s42, {SB2}")
    a("s_mov_b32 s39, 0")
    a(f"s_mov_b32 s29, {3*SB2}")
    def emit_stage(half, last=False):
        nslow = len(slow)
        Bc, Bn = (BP, BQ) if half == 0 else (BQ, BP)
        side = {k: [] for k in range(88)}
        lds_issue = {}
        def put(k, ins, tag=None):
            if OPT.get('k2nolds') and (ins.startswith("ds_read_b128") or ins.startswith("ds_read_b64")): return
            side[k].append(ins)
            if tag: lds_issue.setdefault(k, []).append(tag)
        def put_a(k, rb, tag):
            r = a_reads(rb)
            put(k, r[0], tag); put(k + 1, r[1], tag)
        put_a(0, 2, "A2")
        for rb in range(4, 11):
            put_a(8 * (rb - 3), rb, f"A{rb}")
        P = OPT.get('parr', 58)
        K1 = OPT.get('parr1', 44)
        put(2, "s_waitcnt lgkmcnt(2)")
        put(2, f"v_cmp_gt_u32 vcc, s40, v{Bn+QD}")
        n2 = poll_slow(Bn + QD, 40)
        put(3, f"s_cbranch_vccnz K12_S{n2}"); put(3, f"K12_Q{n2}:")
        put(K1 - 1, "s_add_u32 s40, s40, 1"); put(K1 - 1, "s_mov_b32 s51, s40")
        put(K1 - 1, f"v_mov_b32 v{vT}, s40") if half == 1 or True else None
        nd = sum(1 for d_ in [4, 10, 14, 20, 26, 30, 36, 42, 46, 52] if d_ < K1)
        if not OPT.get('novmw'): put(K1, f"s_waitcnt vmcnt({11 + nd})")
        put(K1, f"ds_write_b32 v{vWA}, v{vT}", "W")
        put(P, "s_sub_u32 s43, s42, s41"); put(P, "s_add_u32 s40, s40, 1")
        put(P, f"v_add_u32 v{vAr}, s43, v{vAr}")
        put(P + 1, f"v_add_u32 v{vAi}, s43, v{vAi}"); put(P + 1, f"v_add_u32 v{vB}, s43, v{vB}")
        put(P + 1, f"v_mov_b32 v{vT}, s40")
        put(P + 2, f"ds_write_b32 v{vWA}, v{vT}", "W")
        pd = P + OPT.get('pdly', 5)
        put(pd, f"ds_read_b32 v{Bn}, v{vPA}", "P")
        if half == 0:
            put(2, "s_add_u32 s49, s39, 2"); put(2, "s_lshr_b32 s49, s49, 1")
            put(3, "s_mul_i32 s48, s49, s50"); put(3, "s_add_u32 s48, s48, s47")
            put(5, f"s_cmp_lt_u32 s49, {8 if not OPT.get('noprod') else 0}"); put(5, f"s_cselect_b32 s48, s48, {ONES}")
            if KP > 1:
                put(6, f"s_cmp_ge_u32 s49, {KP}"); put(6, f"s_cselect_b32 s48, s48, {ONES}")
            put(P - 9, f"v_mov_b32 v{vT}, s48")
            put(P - 8, f"ds_read_b32 v{vT}, v{vT}", "M")
            put(P - 3, "s_waitcnt lgkmcnt(0)")
            put(P - 3, f"v_cmp_eq_u32 vcc, 0, v{vT}")
            m = nlab[0]; nlab[0] += 1
            put(P - 1, f"s_cbranch_vccnz K12_F{m}"); put(P - 1, f"K12_G{m}:")
            slow.extend(flag_wait_loop(f"K12_F{m}", 48, f"K12_G{m}"))
        C = OPT.get('pchk', 69)
        put(C - 2, "s_waitcnt lgkmcnt(0)")
        put(C - 2, f"v_cmp_gt_u32 vcc, s51, v{Bn}")
        n = poll_slow(Bn, 51)
        put(C, f"s_cbranch_vccnz K12_S{n}"); put(C, f"K12_Q{n}:")
        br = b_reads(Bn)
        for i_, ins in enumerate(br): put(C + 1 + i_ if C + 1 + i_ < 78 else 77, ins, "B" if ins.startswith("ds_") else None)
        if B21:
            put_a(72, 0, "N0"); put_a(74, 3, "N3"); put_a(80, 1, "N1")
            put(76, f"ds_read_b32 v{Bc+QD}, v{vPA}", "Q")
        else:
            put_a(78, 0, "N0"); put_a(80, 1, "N1"); put_a(82, 3, "N3")
            put(83, f"ds_read_b32 v{Bc+4}, v{vPA}", "Q")
        dl = dma_groups(29)
        dpos = [4, 10, 14, 20, 26, 30, 36, 42, 46, 52]
        for i_, grp in enumerate(dl):
            for ins in grp:
                if OPT.get('k2nodma') and ins.startswith("buffer_load"): continue
                put(dpos[i_], ins)
        if half == 1:
            for ins in mirror_dma(): put(54, ins)
        if B21:
            xr0, xr1 = b_xor(Bc, 0), b_xor(Bc, 1)
            for q in range(4): put(q // 2, xr0[q]); put(2 + q // 2, xr1[q])
            for ins in ["s_mov_b32 s29, s41", "s_mov_b32 s41, s42", f"s_add_u32 s42, s42, {SB2}"]: put(82, ins)
            for ins in [f"s_cmp_eq_u32 s42, {NBUF2*SB2}", "s_cselect_b32 s42, 0, s42"]: put(83, ins)
            q = ["A0"] + ["A1"] * 2
        else:
            xr0, xr1 = b_xor(Bn, 0), b_xor(Bn, 1)
            put(84, "s_waitcnt lgkmcnt(7)")
            for q in range(4): put(84 + q // 2, xr0[q]); put(86 + q // 2, xr1[q])
            for ins in ["s_mov_b32 s29, s41", "s_mov_b32 s41, s42", f"s_add_u32 s42, s42, {SB2}"]: put(83, ins)
            for ins in [f"s_cmp_eq_u32 s42, {NBUF2*SB2}", "s_cselect_b32 s42, 0, s42"]: put(85, ins)
            q = ["A0"] * 2 + ["A1"] * 2 + ["A3"] * 2 + ["Q"]
        pre = {}
        for k in range(88):
            if k % 8 == 0:
                need = f"A{k // 8}"
                if need in q:
                    idx = max(i_ for i_, x in enumerate(q) if x == need)
                    pre[k] = len(q) - 1 - idx
                    q = q[idx + 1:]
            q += lds_issue.get(k, [])
            if k == 2: q = q[-2:]
            if k == C - 2 or (half == 0 and k == P - 3): q = []
        if last:
            del slow[nslow:]
            side = {k: [x for x in side[k] if (x.startswith("ds_read_b128") and k < 58) or (B21 and k < 4 and x.startswith("v_xor_b32") and "s35" in x)] for k in range(88)}
            q = (["A0"] + ["A1"] * 2) if B21 else (["A0"] * 2 + ["A1"] * 2 + ["A3"] * 2 + ["Q"])
            pre = {}
            for k in range(88):
                if k % 8 == 0:
                    need = f"A{k // 8}"
                    if need in q:
                        idx = max(i_ for i_, x in enumerate(q) if x == need)
                        pre[k] = len(q) - 1 - idx
                        q = q[idx + 1:]
                q += [t for t in lds_issue.get(k, []) if t.startswith("A")]
            st_setup = [f"v_lshrrev_b32 v{vT}, 4, v{vL}", f"v_and_b32 v{vPA}, 15, v{vT}", f"v_lshrrev_b32 v{vT}, 4, v{vT}",
                        "s_lshl_b32 s28, s21, 7", "s_lshl_b32 s29, s3, 5", "s_add_u32 s28, s28, s29",
                        f"v_add_u32 v{vPA}, s28, v{vPA}", f"v_lshlrev_b32 v{vPA}, 2, v{vPA}", f"v_lshl_add_u32 v{vPA}, v{vT}, 13, v{vPA}"]
            if B21:
                st_setup += ["s_lshl_b32 s28, s20, 6", f"v_xor_b32 v{vPA}, s28, v{vPA}", f"v_xor_b32 v{vWA}, 64, v{vPA}"]
            for i_, ins in enumerate(st_setup): side[4 + i_ // 2].append(ins)
            tmps = [Bn + ((x + 8) & 15) for x in range(16)]
            n_ = 0
            for rb in range(10):
                k0 = 8 * (rb + 1) + 3
                seq = []
                for i in range(4):
                    for cb in range(2):
                        t = tmps[n_ % 16]; n_ += 1
                        yr = ACC + ((rb * 2 + cb) * 2 + 0) * 4 + i
                        yi = ACC + ((rb * 2 + cb) * 2 + 1) * 4 + i
                        so = (16 * rb + (i & 2)) * 2048
                        pre_ = [f"s_mov_b32 s38, {so}"] if (cb == 0 and i % 2 == 0) else []
                        seq.append(pre_ + [f"v_cvt_pk_bf16_f32 v{t}, v{yr}, v{yi}",
                                           (f"buffer_store_dword v{t}, v{vWA if cb else vPA}, s[16:19], s38 offen offset:{(i&1)*2048}{NTF('ntys')}" if B21 else
                                            f"buffer_store_dword v{t}, v{vPA}, s[16:19], s38 offen offset:{(i&1)*2048+cb*64}{NTF('ntys')}")])
                for e_, grp in enumerate(seq):
                    kk = min(k0 + e_ * 3 // 4, 83 if B21 else 87)
                    side[kk] += grp
        k = 0
        for rb in range(11):
            for ins in mfmas(rb, Bc):
                if k in pre:
                    a(f"s_waitcnt lgkmcnt({min(pre[k], 15)})")
                emit(ins)
                for s_ in side[k]: emit(s_)
                k += 1
    ovl = OPT.get('epiovl', 1)
    if OPT.get('lalign') is not None:
        a.raw(".p2align 6")
        for _ in range(OPT['lalign']): a("s_nop 0")
    a.lab("K12_LOOP")
    if OPT.get('itstamp'):
        a("s_memrealtime s[92:93]")
        a("s_waitcnt lgkmcnt(0)")
        a("s_mov_b32 m0, s39")
        a("v_writelane_b32 v248, s92, m0")
    emit_stage(0); emit_stage(1)
    a("s_add_u32 s39, s39, 1")
    a(f"s_cmp_lt_u32 s39, {15 if ovl else 16}")
    a("s_cbranch_scc1 K12_LOOP")
    if ovl:
        emit_stage(0); emit_stage(1, last=True)
    if OPT.get('stamp'):
        a("s_memtime s[92:93]")
        a("s_memrealtime s[94:95]")
    if not ovl:
        a(f"v_lshrrev_b32 v8, 4, v{vL}")
        a("v_and_b32 v9, 15, v8")
        a("v_lshrrev_b32 v8, 4, v8")
        a("s_lshl_b32 s28, s21, 7")
        a("s_lshl_b32 s29, s3, 5")
        a("s_add_u32 s28, s28, s29")
        a("v_add_u32 v9, s28, v9")
        a("v_lshlrev_b32 v9, 2, v9")
        a(f"v_lshl_add_u32 v{vPA}, v8, 13, v9")
    a("s_nop 7")
    n = 0
    if B21:
        assert ovl
        a("s_lshl_b32 s34, s27, 1")
        a(f"s_mul_i32 s34, s34, {YFB}")
        a(f"s_add_u32 s34, s34, {O['YT']}")
        srd(a, 64, 58, "s34", 2 * YFB)
        a(f"v_lshrrev_b32 v8, 8, v{vL}")
        a(f"v_lshlrev_b32 v9, 13, v8")
        a(f"v_sub_u32 v9, v{vPA}, v9")
        a("v_lshlrev_b32 v8, 2, v8")
        a("v_add_u32 v8, 160, v8")
        for i in range(4):
            a(f"v_add_u32 v10, {i}, v8")
            a("v_add_u32 v11, 160, v10")
            a("v_cmp_gt_u32 vcc, 167, v10")
            a("s_nop 1")
            a("v_cndmask_b32 v11, v11, v10, vcc")
            a("v_cmp_gt_u32 vcc, 174, v10")
            a("v_mov_b32 v12, 0x7ffff")
            a("s_nop 0")
            a("v_cndmask_b32 v11, v12, v11, vcc")
            a(f"v_lshl_add_u32 v{16+i}, v11, 11, v9")
        for i in range(4):
            yr = ACC + ((10 * 2 + 0) * 2 + 0) * 4 + i
            yi = ACC + ((10 * 2 + 0) * 2 + 1) * 4 + i
            a(f"v_cvt_pk_bf16_f32 v{20+i}, v{yr}, v{yi}")
            a(f"buffer_store_dword v{20+i}, v{16+i}, s[64:67], 0 offen{NTF('ntys')}")
    else:
      for rb in range(10 if ovl else 0, 11):
        for i in range(4):
            if i % 2 == 0:
                a(f"s_mov_b32 s38, {(16*rb+i)*2048}")
            for cb in range(2):
                t = 8 + (n % 8); n += 1
                yr = ACC + ((rb * 2 + cb) * 2 + 0) * 4 + i
                yi = ACC + ((rb * 2 + cb) * 2 + 1) * 4 + i
                a(f"v_cvt_pk_bf16_f32 v{t}, v{yr}, v{yi}")
                a(f"buffer_store_dword v{t}, v{vPA}, s[16:19], s38 offen offset:{(i&1)*2048+cb*64}{NTF('ntys')}")
    if OPT.get('stamp'):
        a("s_waitcnt vmcnt(0)")
        a("s_memtime s[76:77]")
        a("s_memrealtime s[78:79]")
        a("s_waitcnt lgkmcnt(0)")
        srd(a, 64, 58, O['ST'] + (1 << 20), 1 << 20)
        if OPT.get('itstamp'):
            srd(a, 68, 58, O['ST'] + (8 << 20), 1 << 20)
            a(f"v_lshrrev_b32 v41, 2, v{vL}")
            a("s_lshl_b32 s38, s2, 2"); a("s_add_u32 s38, s38, s3"); a("s_lshl_b32 s38, s38, 8")
            a("buffer_store_dword v248, v41, s[68:71], s38 offen")
        order = [62, 63, 82, 83] + ([92, 93] if OPT.get('kpre') else [80, 81]) + [94, 95] + ([69, 69] if OPT.get('kpre') else [86, 87]) + [78, 79, 88, 89, 90, 91]
        for k, sreg in enumerate(order):
            a(f"v_mov_b32 v{16+k}, s{sreg}")
        a("s_lshl_b32 s38, s2, 3")
        a("s_add_u32 s38, s38, s3")
        a("s_lshl_b32 s38, s38, 6")
        a("v_mov_b32 v40, 0")
        a("s_mov_b64 exec, 1")
        for k in range(4):
            a(f"buffer_store_dwordx4 v[{16+4*k}:{19+4*k}], v40, s[64:67], s38 offen offset:{16*k}")
    a("s_endpgm")
    for ins in slow: emit(ins)

def producer(a, O, OPT):
    WSTR = O['WSTR']
    XR, OPS, WR, ACCW, FH, FL, FW, TMP = 0, 64, 96, 128, 160, 192, 224, 240
    vXL, vXS, vWL, vWS0, vXS0, vWS, vLA, vT = 248, 249, 250, 251, 252, 253, 254, 255
    st = {0: "", 1: " sc1", 2: " sc0 sc1", 3: " sc1 nt"}[OPT.get('stsc1', 1)]
    lo = OPT.get('xlo', 1)
    a("v_and_b32 v64, 15, v2")
    a("v_lshrrev_b32 v65, 4, v2")
    a(f"v_lshlrev_b32 v{vLA}, 4, v2")
    a("s_and_b32 s44, s3, 3")
    a("s_and_b32 s20, s44, 1")
    a("s_lshr_b32 s21, s44, 1")
    a("s_lshl_b32 s22, s2, 1")
    a("s_add_u32 s22, s22, s21")
    a("s_and_b32 s23, s22, 3")
    a("s_lshr_b32 s22, s22, 2")
    a("s_and_b32 s24, s2, 7")
    a("s_lshl_b32 s24, s24, 5")
    a("s_lshr_b32 s25, s2, 3")
    a("s_add_u32 s24, s24, s25")
    a(f"s_cmp_ge_u32 s24, {NT}")
    a("s_cselect_b32 s25, 1, 0")
    a(f"s_mul_i32 s26, s25, {NT}")
    a("s_sub_u32 s24, s24, s26")
    a("s_mov_b32 s49, s25")
    a("s_cmp_eq_u32 s21, 0")
    a("s_cselect_b32 s25, s25, 1")
    a("s_mul_i32 s26, s25, 16384000")
    srd(a, 4, 52, "s26", 16384000)
    srd(a, 8, 54, None, 31 * 524288)
    srd(a, 12, 58, O['XT'] if O['XT'] else None, XT_SIZE)
    srd(a, 16, 58, O['WT'], 128 * WSTR)
    if OPT.get('kpre'):
        srd(a, 60, 58, O['SY'], 32768)
    else:
        a("s_mov_b32 s60, s56"); a("s_and_b32 s61, s57, 0xffff"); a("s_mov_b32 s62, 256"); a("s_mov_b32 s63, 0x00020000")
    a("s_mov_b32 s28, 0x05040100")
    a("s_mov_b32 s29, 0x07060302")
    if OPT.get('stamp'):
        srd(a, 64, 58, O['ST'] + (6 << 20), 1 << 20)
        a("s_lshl_b32 s73, s2, 2")
        a("s_add_u32 s73, s73, s44")
        a("s_lshl_b32 s73, s73, 7")
    a(f"v_lshlrev_b32 v{vXL}, 14, v65")
    a(f"v_lshl_add_u32 v{vXL}, v64, 4, v{vXL}")
    a(f"v_and_b32 v{vWL}, 1, v65")
    a(f"v_lshlrev_b32 v{vWL}, 23, v{vWL}")
    a(f"v_lshl_add_u32 v{vWL}, v64, 4, v{vWL}")
    a("v_lshrrev_b32 v66, 1, v65")
    a(f"s_mov_b32 s26, {2*XFB}")
    a("v_mul_lo_u32 v66, v66, s26")
    a("v_lshrrev_b32 v67, 2, v64")
    a(f"s_mov_b32 s26, {XBLK}")
    a("v_mul_lo_u32 v67, v67, s26")
    a("v_add_u32 v66, v66, v67")
    a(f"v_mov_b32 v{vXS0}, v66")
    a("v_lshrrev_b32 v66, 1, v65")
    a(f"s_mov_b32 s26, {4*WSTR}")
    a("v_mul_lo_u32 v66, v66, s26")
    a("v_and_b32 v67, 1, v65")
    a("v_lshl_add_u32 v66, v67, 8, v66")
    a("v_and_b32 v67, 1, v64")
    a(f"v_lshl_add_u32 v{vWS0}, v67, 4, v66")
    a(f"s_mul_i32 s31, s25, {XFB}")
    a(f"s_mul_i32 s32, s23, {WSTR}")
    a("s_lshl_b32 s33, s23, 8")
    def tile_of(sp):
        a(f"s_mul_i32 s36, s{sp}, 85")
        a("s_add_u32 s36, s36, s2")
        a("s_and_b32 s36, s36, 255")
        a("s_mul_hi_u32 s37, s36, 0x55555556")
        a("s_mul_i32 s38, s37, 3")
        a("s_cmp_eq_u32 s38, s36")
        a("s_cselect_b32 s27, 1, 0")
        a("s_cmp_lt_u32 s37, 78")
        a("s_cselect_b32 s27, s27, 0")
        a(f"s_add_u32 s37, s37, {256 - NT}")
        if OPT.get('xsplit'):
            a("s_add_u32 s26, s21, 1")
            a("s_cmp_eq_u32 s27, 1")
            a("s_cselect_b32 s26, 0, s26")
            a("s_and_b32 s36, s27, s21")
            a("s_cselect_b32 s30, s37, s24")
            a("s_cselect_b32 s25, 1, s49")
            a("s_mov_b32 s27, 1")
            if OPT.get('kx'):
                a(f"s_cmp_lt_u32 s{sp}, {OPT['kx']}")
                a("s_cselect_b32 s27, 0, 1")
            return
        a("s_cmp_eq_u32 s21, 0")
        a("s_cselect_b32 s30, s24, s37")
        a("s_cselect_b32 s27, 1, s27")
        if OPT.get('wonly'):
            a("s_mov_b32 s27, 0")
    def w_loads(sp):
        a(f"s_lshl_b32 s36, s{sp}, 7")
        a("s_add_u32 s36, s36, s22")
        a("s_lshr_b32 s37, s36, 9")
        a("s_lshl_b32 s37, s37, 19")
        a("s_and_b32 s36, s36, 511")
        a("s_lshl_b32 s36, s36, 10")
        a("s_add_u32 s36, s36, s37")
        a("s_add_u32 s36, s36, s33")
        if OPT.get('pldsame'): a("s_mov_b32 s36, s33")
        if OPT.get('wdedup'): a("s_mov_b64 exec, 0xffffffff")
        for e in range(8 if not OPT.get('pnold') else 0):
            a(f"buffer_load_dwordx4 v[{WR+4*e}:{WR+4*e+3}], v{vWL}, s[8:11], s36 offen{PLF(OPT)}")
            if OPT.get('dspacel'): a(f"s_sleep {OPT['dspacel']}")
            if e < 7: a("s_add_u32 s36, s36, 0x100000")
        if OPT.get('wdedup'): a("s_mov_b64 exec, -1")
    def x_srd():
        if OPT.get('xsplit'):
            a("s_mul_i32 s36, s25, 16384000")
            a("s_add_u32 s4, s52, s36")
            a("s_addc_u32 s5, s53, 0")
            a("s_and_b32 s5, s5, 0xffff")
    def x_loads(sp):
        x_srd()
        a(f"s_lshl_b32 s36, s{sp}, 8")
        a(f"s_mul_i32 s37, s30, {48*2048}")
        a("s_add_u32 s36, s36, s37")
        if OPT.get('pldsame'): a("s_mov_b32 s36, 0")
        for ks in range(2 if not OPT.get('pnold') else 0):
            for e2 in range(4):
                r = XR + 32 * ks + 8 * e2
                a(f"buffer_load_dwordx4 v[{r}:{r+3}], v{vXL}, s[4:7], s36 offen{PLF(OPT)}")
                a(f"buffer_load_dwordx4 v[{r+4}:{r+7}], v{vXL}, s[4:7], s36 offen offset:2048{PLF(OPT)}")
                if OPT.get('dspacel'): a(f"s_sleep {OPT['dspacel']}")
                if not (ks == 1 and e2 == 3):
                    a(f"s_add_u32 s36, s36, {4096 if e2 < 3 else 32*2048 - 3*4096}")
    nsig = [0]
    def signal(sp):
        n = nsig[0]; nsig[0] += 1
        a("s_mov_b32 s34, -1")
        a(f"s_cmp_ge_u32 s{sp}, 8")
        a(f"s_cbranch_scc1 K12_SG{n}")
        if OPT.get('stamp'):
            a("s_memrealtime s[70:71]")
            a("s_waitcnt lgkmcnt(0)")
            a(f"s_lshl_b32 s72, s{sp}, 3")
            a("s_add_u32 s72, s72, s73")
            a("v_mov_b32 v240, s70"); a("v_mov_b32 v241, s71"); a("v_mov_b32 v242, 0")
            a("s_mov_b64 exec, 1")
            a("buffer_store_dwordx2 v[240:241], v242, s[64:67], s72 offen")
            a("s_mov_b64 exec, -1")
        a(f"s_lshl_b32 s36, s{sp}, 2")
        a(f"s_add_u32 s37, s36, {PCNT}")
        a("s_mov_b64 exec, 1")
        a(f"v_mov_b32 v{vT}, s37")
        a(f"v_mov_b32 v{TMP}, 1")
        a(f"ds_add_rtn_u32 v{TMP}, v{vT}, v{TMP}")
        a("s_waitcnt lgkmcnt(0)")
        a(f"v_readfirstlane_b32 s37, v{TMP}")
        a("s_nop 3")
        a("s_cmp_eq_u32 s37, 3")
        a(f"s_cbranch_scc0 K12_SH{n}")
        if OPT.get('wbl2'):
            a("buffer_wbl2 sc1")
            a("s_waitcnt vmcnt(0)")
        if OPT.get('kpre'):
            a("s_lshl_b32 s36, s36, 8")
        a(f"v_mov_b32 v{vT}, 1")
        a(f"v_mov_b32 v{TMP}, s36")
        a(f"buffer_atomic_add v{vT}, v{TMP}, s[60:63], 0 offen sc0 sc1")
        a(f"s_mov_b32 s34, s{sp}")
        a.lab(f"K12_SH{n}")
        a("s_mov_b64 exec, -1")
        a.lab(f"K12_SG{n}")
    def publish():
        n = nsig[0]; nsig[0] += 1
        a("s_cmp_ge_u32 s34, 8")
        a(f"s_cbranch_scc1 K12_PB{n}")
        a(f"v_readfirstlane_b32 s37, v{vT}")
        a("s_nop 3")
        a("s_cmp_eq_u32 s37, 255")
        a(f"s_cbranch_scc0 K12_PB{n}")
        a("s_lshl_b32 s36, s34, 4")
        a(f"s_add_u32 s36, s36, {16384 if OPT.get('kpre') else 128}")
        a("s_mov_b64 exec, 1")
        a(f"v_mov_b32 v{vT}, 1")
        a(f"v_mov_b32 v{TMP}, s36")
        a(f"buffer_store_dword v{vT}, v{TMP}, s[60:63], 0 offen sc1")
        a("s_mov_b64 exec, -1")
        a.lab(f"K12_PB{n}")
    nsub = [0]
    def subgate(rb, only_mode=None):
        if not OPT.get('subg', 1) or rb == 0: return
        G = OPT.get('gateg', 17)
        n = nsub[0]; nsub[0] += 1
        if only_mode is not None:
            a(f"s_cmp_lg_u32 s26, {only_mode}")
            a(f"s_cbranch_scc1 K12_UT{n}")
        a(f"s_cmp_lt_u32 s40, {max(OPT.get('gatep', 3), OPT.get('kpre', 0) + OPT.get('subskip', 1))}")
        a(f"s_cbranch_scc1 K12_UT{n}")
        a("s_lshl_b32 s36, s40, 3")
        a(f"s_sub_i32 s36, s36, {2 * (G - rb * OPT.get('substep', 1)) + 2}")
        a("s_max_i32 s36, s36, 1")
        a(f"s_mov_b32 s37, {SPIN * 8}")
        a.lab(f"K12_UL{n}")
        a(f"v_mov_b32 v{TMP}, {SYNC}")
        a(f"ds_read_b32 v{TMP}, v{TMP}")
        a("s_waitcnt lgkmcnt(0)")
        a(f"v_cmp_gt_u32 vcc, s36, v{TMP}")
        a("s_sub_u32 s37, s37, 1")
        a("s_cmp_eq_u32 s37, 0")
        a(f"s_cbranch_scc1 K12_UT{n}")
        a(f"s_cbranch_vccz K12_UT{n}")
        a(f"s_sleep {OPT.get('gsleep', 2)}")
        a(f"s_branch K12_UL{n}")
        a.lab(f"K12_UT{n}")
    def w_compute(sp):
        a(f"s_lshl_b32 s36, s{sp}, 7")
        a("s_add_u32 s36, s36, s22")
        a("s_and_b32 s37, s36, 3")
        a("s_lshr_b32 s38, s36, 1")
        a("s_and_b32 s38, s38, 4")
        a("s_or_b32 s37, s37, s38")
        a(f"v_bfe_u32 v{vWS}, v{vLA}, 5, 3")
        a(f"v_xor_b32 v{vWS}, s37, v{vWS}")
        a(f"v_lshl_add_u32 v{vWS}, v{vWS}, 5, v{vWS0}")
        a("s_lshl_b32 s36, s36, 9")
        a("s_add_u32 s39, s36, s32")
        if OPT.get('plin'):
            a(f"v_mov_b32 v{vWS}, v{vLA}")
            a(f"s_lshl_b32 s39, s{sp}, 10"); a("s_lshl_b32 s36, s2, 2"); a("s_add_u32 s39, s39, s36"); a("s_add_u32 s39, s39, s3"); a("s_lshl_b32 s39, s39, 14"); a("s_and_b32 s39, s39, 0x3ffffff")
        JIT = OPT.get('jit')
        if JIT:
            a(f"s_add_u32 s47, s{sp}, 2")
            a("s_lshl_b32 s36, s47, 7")
            a("s_add_u32 s36, s36, s22")
            a("s_lshr_b32 s37, s36, 9")
            a("s_lshl_b32 s37, s37, 19")
            a("s_and_b32 s36, s36, 511")
            a("s_lshl_b32 s36, s36, 10")
            a("s_add_u32 s36, s36, s37")
            a("s_add_u32 s46, s36, s33")
        njt = [0]
        for rb in range(4):
            if OPT.get('xsplit'):
                if rb == 2: subgate(OPT.get('xstep', 2))
            else:
                subgate(rb)
            if JIT:
                lab = f"K12_JW{rb}_{nsub[0]}_{len(a.l)}"
                a("s_cmp_ge_u32 s47, 8")
                a(f"s_cbranch_scc1 {lab}")
                a(f"v_bfe_u32 v{vT}, v{vLA}, 5, 2")
                a(f"v_lshlrev_b32 v{vT}, 20, v{vT}")
                a(f"v_bfe_u32 v{vXS}, v{vLA}, 4, 1")
                a(f"v_lshl_add_u32 v{vT}, v{vXS}, 7, v{vT}")
                a("s_mov_b64 exec, 0xff")
                a(f"buffer_load_dword v{vXS}, v{vT}, s[8:11], s46 offen")
                a("s_mov_b64 exec, -1")
                a("s_add_u32 s46, s46, 0x400000")
                a.lab(lab)
            if OPT.get('dynprio'): a(f"s_setprio {OPT['dynprio']}")
            for i in range(8 if not OPT.get('pnocomp') else 0):
                a(f"v_mfma_f32_16x16x32_bf16 v[{ACCW+4*i}:{ACCW+4*i+3}], v[{FW+4*rb}:{FW+4*rb+3}], v[{OPS+4*i}:{OPS+4*i+3}], 0")
            if OPT.get('dynprio'): a(f"s_setprio {OPT.get('lowprio', 0)}")
            a("s_nop 7")
            for r in range(4):
                t = TMP + 4 * (r & 1)
                for q in range(4 if not OPT.get('pnocomp') else 0):
                    a(f"v_cvt_pk_bf16_f32 v{t+q}, v{ACCW+4*(2*q)+r}, v{ACCW+4*(2*q+1)+r}")
                if OPT.get('stsplit'):
                    a(f"buffer_store_dwordx2 v[{t}:{t+1}], v{vWS}, s[16:19], s39 offen{st}")
                    a(f"buffer_store_dwordx2 v[{t+2}:{t+3}], v{vWS}, s[16:19], s39 offen offset:8{st}")
                elif not OPT.get('pnost'):
                    if OPT.get('stprio'): a(f"s_setprio {OPT['stprio']}")
                    if OPT.get('gst'):
                        a("s_add_u32 s74, s16, s39"); a("s_addc_u32 s75, s17, 0")
                        a(f"global_store_dwordx4 v{vWS}, v[{t}:{t+3}], s[74:75]{st}")
                    else:
                        a(f"buffer_store_dwordx4 v[{t}:{t+3}], v{vWS}, s[16:19], s39 offen{st}")
                    if OPT.get('stprio'): a("s_setprio 0")
                if OPT.get('dspace'): a(f"s_sleep {OPT['dspace']}")
                if not (rb == 3 and r == 3):
                    a(f"s_add_u32 s39, s39, {1024 if OPT.get('plin') else 2*4*WSTR}")
    def x_compute(sp):
        ACCX = XR + 32
        if OPT.get('xsplit'):
            a(f"s_mul_i32 s31, s25, {XFB}")
        a(f"s_mul_i32 s39, s{sp}, {4*XBLK}")
        a("s_add_u32 s39, s39, s31")
        a("s_lshl_b32 s36, s30, 7")
        a("s_add_u32 s39, s39, s36")
        a(f"v_bfe_u32 v{vXS}, v{vLA}, 4, 2")
        a(f"v_bfe_u32 v{TMP}, v{vLA}, 8, 1")
        a(f"v_lshl_add_u32 v{vXS}, v{TMP}, 2, v{vXS}")
        if OPT.get('b21'):
            a("s_add_u32 s36, s30, 7")
            a("s_cmp_ge_u32 s30, 160")
            a("s_cselect_b32 s36, s36, s30")
            a("s_cmp_eq_u32 s25, 1")
            a("s_cselect_b32 s36, s36, s30")
            a("s_lshr_b32 s36, s36, 1")
        else:
            a("s_lshr_b32 s36, s30, 1")
        a("s_and_b32 s36, s36, 7")
        a(f"v_xor_b32 v{vXS}, s36, v{vXS}")
        a(f"v_lshl_add_u32 v{vXS}, v{vXS}, 4, v{vXS0}")
        if OPT.get('plin'):
            a(f"s_lshl_b32 s39, s{sp}, 9"); a("s_lshl_b32 s36, s2, 1"); a("s_add_u32 s39, s39, s36"); a("s_add_u32 s39, s39, s21"); a("s_lshl_b32 s39, s39, 14"); a("s_and_b32 s39, s39, 0x1ffffff")
        JIT = OPT.get('jit')
        if JIT:
            a(f"s_add_u32 s47, s{sp}, 2")
            tile_of(47)
            a("s_cmp_lt_u32 s47, 8")
            a("s_cselect_b32 s45, s27, 0")
            a("s_lshl_b32 s36, s47, 8")
            a(f"s_mul_i32 s37, s30, {48*2048}")
            a("s_add_u32 s46, s36, s37")
        XSP = OPT.get('xsplit')
        if XSP:
            xl = f"K12_XS{len(a.l)}"
            a("s_cmp_eq_u32 s26, 2")
            a(f"s_cselect_b32 s36, {16 * 2 * XFB}, 0")
            a("s_add_u32 s39, s39, s36")
            a(f"s_cbranch_scc1 {xl}_HI") if False else None
            a("s_cmp_eq_u32 s26, 2")
            a(f"s_cbranch_scc1 {xl}_HI")
        for rb in range(4):
            if XSP:
                st_ = OPT.get('xstep', 2)
                if rb == 1: subgate(st_, only_mode=1)
                if rb == 2:
                    a("s_cmp_eq_u32 s26, 1")
                    a(f"s_cbranch_scc1 {xl}_END")
                    subgate(st_, only_mode=0)
                    a.lab(f"{xl}_HI")
                if rb == 3: subgate(st_, only_mode=2)
            else:
                subgate(rb)
            if JIT:
                lab = f"K12_JX{rb}_{nsub[0]}_{len(a.l)}"
                a("s_cmp_eq_u32 s45, 0")
                a(f"s_cbranch_scc1 {lab}")
                a(f"v_bfe_u32 v{vT}, v{vLA}, 4, 4")
                a(f"v_lshlrev_b32 v{vT}, 11, v{vT}")
                a(f"v_bfe_u32 v{vWS}, v{vLA}, 8, 1")
                a(f"v_lshl_add_u32 v{vT}, v{vWS}, 7, v{vT}")
                a("s_mov_b64 exec, 0xffffffff")
                a(f"buffer_load_dword v{vWS}, v{vT}, s[4:7], s46 offen")
                a("s_mov_b64 exec, -1")
                a(f"s_add_u32 s46, s46, {16*2048}")
                a.lab(lab)
            terms = [(FH + (rb * 2) * 4, OPS), (FH + (rb * 2 + 1) * 4, XR)]
            if lo:
                terms = [terms[0], (FL + (rb * 2) * 4, OPS), terms[1], (FL + (rb * 2 + 1) * 4, XR)]
            if OPT.get('dynprio'): a(f"s_setprio {OPT['dynprio']}")
            for ti, (F, ops) in enumerate(terms if not OPT.get('pnocomp') else []):
                for i in range(8):
                    c = "0" if ti == 0 else f"v[{ACCX+4*i}:{ACCX+4*i+3}]"
                    a(f"v_mfma_f32_16x16x32_bf16 v[{ACCX+4*i}:{ACCX+4*i+3}], v[{F}:{F+3}], v[{ops+4*i}:{ops+4*i+3}], {c}")
            if OPT.get('dynprio'): a(f"s_setprio {OPT.get('lowprio', 0)}")
            a("s_nop 7")
            for r in range(4):
                t = TMP + 4 * (r & 1)
                for q in range(4 if not OPT.get('pnocomp') else 0):
                    a(f"v_cvt_pk_bf16_f32 v{t+q}, v{ACCX+4*(2*q)+r}, v{ACCX+4*(2*q+1)+r}")
                if OPT.get('stsplit'):
                    a(f"buffer_store_dwordx2 v[{t}:{t+1}], v{vXS}, s[12:15], s39 offen{st}")
                    a(f"buffer_store_dwordx2 v[{t+2}:{t+3}], v{vXS}, s[12:15], s39 offen offset:8{st}")
                elif not OPT.get('pnost'):
                    if OPT.get('stprio'): a(f"s_setprio {OPT['stprio']}")
                    if OPT.get('gst'):
                        a("s_add_u32 s74, s12, s39"); a("s_addc_u32 s75, s13, 0")
                        a(f"global_store_dwordx4 v{vXS}, v[{t}:{t+3}], s[74:75]{st}")
                    else:
                        a(f"buffer_store_dwordx4 v[{t}:{t+3}], v{vLA if OPT.get('plin') else vXS}, s[12:15], s39 offen{st}")
                    if OPT.get('stprio'): a("s_setprio 0")
                if OPT.get('dspace'): a(f"s_sleep {OPT['dspace']}")
                if not (rb == 3 and r == 3):
                    a(f"s_add_u32 s39, s39, {1024 if OPT.get('plin') else 2*2*XFB}")
        if XSP: a.lab(f"{xl}_END")
    nst = [0]
    def ustamp(slot):
        if not OPT.get('stamp'): return
        n = nst[0]; nst[0] += 1
        a("s_and_b32 s72, s40, 6")
        a(f"s_cmp_eq_u32 s72, {OPT.get('ustph', 4)}")
        a(f"s_cbranch_scc0 K12_US{n}")
        a(f"s_memrealtime s[{74+0}:{75}]")
        a("s_waitcnt lgkmcnt(0)")
        a(f"s_add_u32 s72, s73, {(8+slot)*8}")
        a("v_mov_b32 v240, s74"); a("v_mov_b32 v241, s75"); a("v_mov_b32 v242, 0")
        a("s_mov_b64 exec, 1")
        a("buffer_store_dwordx2 v[240:241], v242, s[64:67], s72 offen")
        a("s_mov_b64 exec, -1")
        a.lab(f"K12_US{n}")
    def eager_publish():
        n = nsig[0]; nsig[0] += 1
        a("s_cmp_ge_u32 s34, 8")
        a(f"s_cbranch_scc1 K12_EP{n}")
        a("s_waitcnt vmcnt(0)")
        publish()
        a("s_mov_b32 s34, -1")
        a.lab(f"K12_EP{n}")
    def early_signal():
        if not OPT.get('early', 1): return
        n = nsig[0]; nsig[0] += 1
        a(f"s_cmp_eq_u32 s41, {OPT.get('kpre', 0) or 1}")
        a(f"s_cbranch_scc0 K12_ES{n}")
        a("s_waitcnt vmcnt(0)")
        signal(41)
        a("s_waitcnt vmcnt(0)")
        publish()
        a("s_mov_b32 s34, -1")
        a("s_mov_b32 s41, -1")
        a.lab(f"K12_ES{n}")
    ngate = [0]
    def gate():
        G = OPT.get('gateg', 17); GP = OPT.get('gatep', 3)
        n = ngate[0]; ngate[0] += 1
        a("s_lshl_b32 s36, s40, 3")
        a(f"s_sub_i32 s36, s36, {2 * G + 2}")
        a("s_max_i32 s36, s36, 1")
        a(f"s_mov_b32 s38, {SYNC}")
        a(f"s_cmp_eq_u32 s40, {1 if not OPT.get('kpre') else 99}")
        a(f"s_cselect_b32 s36, {4 if OPT.get('ord1', 1) else 0}, s36")
        a(f"s_cselect_b32 s38, {ISSUED}, s38")
        a(f"s_cbranch_scc1 K12_GS{n}")
        a(f"s_cmp_lt_u32 s40, {GP}")
        a(f"s_cbranch_scc1 K12_GT{n}")
        a.lab(f"K12_GS{n}")
        a(f"s_mov_b32 s37, {SPIN * 8}")
        a.lab(f"K12_GL{n}")
        a(f"v_mov_b32 v{TMP}, s38")
        a(f"ds_read_b32 v{TMP}, v{TMP}")
        a("s_waitcnt lgkmcnt(0)")
        a(f"v_cmp_gt_u32 vcc, s36, v{TMP}")
        a("s_sub_u32 s37, s37, 1")
        a("s_cmp_eq_u32 s37, 0")
        a(f"s_cbranch_scc1 K12_GT{n}")
        a(f"s_cbranch_vccz K12_GT{n}")
        a(f"s_sleep {OPT.get('gsleep', 2)}")
        a(f"s_branch K12_GL{n}")
        a.lab(f"K12_GT{n}")
    xs = 1 if OPT.get('stamp') else 0
    ntch = [0]
    def touch_block(first=1, count=8):
        n_ = ntch[0]; ntch[0] += 1
        a(f"v_lshrrev_b32 v128, 4, v{vLA}")
        a("v_lshlrev_b32 v129, 11, v128")
        a("v_lshrrev_b32 v130, 1, v128")
        a("v_lshlrev_b32 v130, 20, v130")
        a("v_and_b32 v131, 1, v128")
        a("v_lshl_add_u32 v130, v131, 7, v130")
        if OPT.get('thalf'):
            a("v_lshlrev_b32 v130, 20, v128")
        a("s_mov_b32 s45, s27"); a("s_mov_b32 s46, s30")
        if OPT.get('xsplit'):
            a("s_mov_b32 s50, s25"); a("s_mov_b32 s51, s26")
        a(f"s_add_u32 s47, s40, {first}")
        a(f"s_add_u32 s75, s47, {count}")
        a("s_min_u32 s75, s75, 8")
        a("s_cmp_ge_u32 s47, s75")
        a(f"s_cbranch_scc1 K12_TCHE{n_}")
        a.lab(f"K12_TCH{n_}")
        a("s_xor_b32 s48, s47, s20")
        a("s_and_b32 s48, s48, 1")
        a("s_cmp_eq_u32 s48, 0")
        a(f"s_cbranch_scc1 K12_TCHW{n_}")
        tile_of(47)
        if OPT.get('xsplit'):
            a("s_cmp_eq_u32 s26, 2")
            a(f"s_cbranch_scc1 K12_TCHN{n_}")
            a("s_cmp_eq_u32 s27, 0")
            a(f"s_cbranch_scc1 K12_TCHN{n_}")
            x_srd()
        else:
            a("s_cmp_eq_u32 s27, 0")
            a(f"s_cbranch_scc1 K12_TCHN{n_}")
        a("s_lshl_b32 s36, s47, 8")
        a(f"s_mul_i32 s37, s30, {48*2048}")
        a("s_add_u32 s36, s36, s37")
        if OPT.get('touch', 1) in (1, 2):
            a("buffer_load_dword v244, v129, s[4:7], s36 offen")
            if not OPT.get('thalf'): a("buffer_load_dword v245, v129, s[4:7], s36 offen offset:128")
        a(f"s_branch K12_TCHN{n_}")
        a.lab(f"K12_TCHW{n_}")
        a("s_lshl_b32 s36, s47, 7")
        a("s_add_u32 s36, s36, s22")
        a("s_lshr_b32 s37, s36, 9")
        a("s_lshl_b32 s37, s37, 19")
        a("s_and_b32 s36, s36, 511")
        a("s_lshl_b32 s36, s36, 10")
        a("s_add_u32 s36, s36, s37")
        a("s_add_u32 s36, s36, s33")
        a(f"s_mov_b64 exec, {'0xffff' if OPT.get('thalf') else '0xffffffff'}")
        if OPT.get('touch', 1) in (1, 3):
            a("buffer_load_dword v246, v130, s[8:11], s36 offen")
        a("s_mov_b64 exec, -1")
        a.lab(f"K12_TCHN{n_}")
        a("s_add_u32 s47, s47, 1")
        a("s_cmp_lt_u32 s47, s75")
        a(f"s_cbranch_scc1 K12_TCH{n_}")
        a.lab(f"K12_TCHE{n_}")
        a("s_mov_b32 s27, s45"); a("s_mov_b32 s30, s46")
        if OPT.get('xsplit'):
            a("s_mov_b32 s25, s50"); a("s_mov_b32 s26, s51")
    nadv = [0]
    def advance():
        a("s_mov_b32 s41, s40"); a("s_add_u32 s40, s40, 1")
        if OPT.get('kpre') and OPT.get('tstage'):
            n_ = nadv[0]; nadv[0] += 1
            T0, TS = OPT.get('tfirst', 1), OPT['tstage']
            a(f"s_sub_u32 s74, s41, {OPT['kpre']}")
            a(f"s_mul_i32 s74, s74, {TS}")
            a(f"s_add_u32 s74, s74, {OPT['kpre'] + T0 + 1}")
            a("s_cmp_ge_u32 s74, 8")
            a(f"s_cbranch_scc1 K12_NT{n_}")
            a("s_mov_b32 s73, s40")
            a("s_sub_u32 s40, s74, 1")
            touch_block(1, TS)
            a("s_mov_b32 s40, s73")
            a.lab(f"K12_NT{n_}")
        if OPT.get('kpre') and OPT.get('touch', 1) and OPT.get('tlate') == 99:
            n_ = nadv[0]; nadv[0] += 1
            a(f"s_cmp_eq_u32 s41, {OPT['kpre']}")
            a(f"s_cbranch_scc0 K12_NT{n_}")
            touch_block()
            a.lab(f"K12_NT{n_}")
        early_signal()
    def pbarrier():
        n = ngate[0]; ngate[0] += 1
        a("s_lshl_b32 s36, s40, 2")
        a(f"s_add_u32 s36, s36, {PBAR}")
        a("s_mov_b64 exec, 1")
        a(f"v_mov_b32 v{TMP}, s36")
        a(f"v_mov_b32 v{TMP+1}, 1")
        a(f"ds_add_u32 v{TMP}, v{TMP+1}")
        a("s_mov_b64 exec, -1")
        a(f"s_mov_b32 s37, {SPIN * 8}")
        a.lab(f"K12_BL{n}")
        a(f"v_mov_b32 v{TMP}, s36")
        a(f"ds_read_b32 v{TMP}, v{TMP}")
        a("s_waitcnt lgkmcnt(0)")
        a(f"v_cmp_gt_u32 vcc, 4, v{TMP}")
        a("s_sub_u32 s37, s37, 1")
        a("s_cmp_eq_u32 s37, 0")
        a(f"s_cbranch_scc1 K12_BT{n}")
        a(f"s_cbranch_vccz K12_BT{n}")
        a("s_sleep 1")
        a(f"s_branch K12_BL{n}")
        a.lab(f"K12_BT{n}")
    def gate_at(thr_expr_G, tagn):
        n = ngate[0]; ngate[0] += 1
        a("s_lshl_b32 s36, s40, 3")
        a(f"s_sub_i32 s36, s36, {thr_expr_G}")
        a("s_max_i32 s36, s36, 1")
        a(f"s_mov_b32 s37, {SPIN * 8}")
        a.lab(f"K12_GL{n}")
        a(f"v_mov_b32 v{TMP}, {SYNC}")
        a(f"ds_read_b32 v{TMP}, v{TMP}")
        a("s_waitcnt lgkmcnt(0)")
        a(f"v_cmp_gt_u32 vcc, s36, v{TMP}")
        a("s_sub_u32 s37, s37, 1")
        a("s_cmp_eq_u32 s37, 0")
        a(f"s_cbranch_scc1 K12_GT{n}")
        a(f"s_cbranch_vccz K12_GT{n}")
        a(f"s_sleep {OPT.get('gsleep', 2)}")
        a(f"s_branch K12_GL{n}")
        a.lab(f"K12_GT{n}")
        if OPT.get('pbar'): pbarrier()
    LG = OPT.get('lgate', 0)
    def w_phase(tag):
        ustamp(0)
        if LG:
            a("s_waitcnt vmcnt(0)")
            signal(41)
            if not OPT.get('defpub'): eager_publish()
            if OPT.get('gfirst'): gate_at(2 * OPT.get('gateg', 13) + 2, tag)
        interleave_perm(a, WR, OPS, 28, 29, OPT.get('pnocomp'))
        if OPT.get('wdedup'):
            for h in range(4):
                for q in range(8): a(f"v_mov_b32 v{ACCW+q}, v{OPS+8*h+q}")
                a("s_nop 0")
                for q in range(8): a(f"v_permlane32_swap_b32 v{OPS+8*h+q}, v{ACCW+q}")
        if LG and not OPT.get('gfirst'): gate_at(2 * OPT.get('gateg', 13) + 2, tag)
        a("s_add_u32 s42, s40, 1")
        tile_of(42)
        a("s_cmp_eq_u32 s27, 0")
        a(f"s_cbranch_scc1 {tag}_N")
        x_loads(42)
        ustamp(1)
        if not LG: a(f"s_waitcnt vmcnt({16 + xs})")
        a(f"s_branch {tag}_M")
        a.lab(f"{tag}_N")
        if not LG: a("s_waitcnt vmcnt(0)")
        a.lab(f"{tag}_M")
        if not LG:
            signal(41)
            if not OPT.get('defpub'): eager_publish()
            gate()
            if OPT.get('pbar'): pbarrier()
        ustamp(2)
        w_compute(40)
        ustamp(3)
        advance()
        a("s_waitcnt vmcnt(16)")
        publish()
    def x_phase(tag):
        ustamp(4)
        if LG:
            a("s_waitcnt vmcnt(0)")
            signal(41)
            if not OPT.get('defpub'): eager_publish()
            if OPT.get('gfirst'): gate_at(2 * OPT.get('gateg', 13) + 2, tag)
        a("s_cmp_eq_u32 s27, 0")
        a(f"s_cbranch_scc1 {tag}_N")
        interleave_perm(a, XR, OPS, 28, 29, OPT.get('pnocomp'))
        interleave_perm(a, XR + 32, XR, 28, 29, OPT.get('pnocomp'))
        a.lab(f"{tag}_N")
        if LG and not OPT.get('gfirst'): gate_at(2 * OPT.get('gateg', 13) + 2, tag)
        a("s_add_u32 s42, s40, 1")
        w_loads(42)
        ustamp(5)
        if not LG:
            a(f"s_waitcnt vmcnt({8 + xs})")
            signal(41)
            if not OPT.get('defpub'): eager_publish()
            gate()
            if OPT.get('pbar'): pbarrier()
        a("s_cmp_eq_u32 s27, 0")
        a(f"s_cbranch_scc1 {tag}_E")
        ustamp(6)
        x_compute(40)
        ustamp(7)
        advance()
        a(f"s_waitcnt vmcnt({8 if OPT.get('xsplit') else 16})")
        a(f"s_branch {tag}_F")
        a.lab(f"{tag}_E")
        advance()
        a("s_waitcnt vmcnt(0)")
        a.lab(f"{tag}_F")
        publish()

    KP = OPT.get('kpre', 0)
    if KP:
        a(f"s_mov_b32 s40, {KP}")
    else:
        a("s_lshr_b32 s40, s3, 2")
    a("s_xor_b32 s43, s40, s20")
    a("s_and_b32 s43, s43, 1")
    tile_of(40)
    a("s_cmp_eq_u32 s43, 0")
    a("s_cbranch_scc0 K12_PL1")
    w_loads(40)
    a("s_branch K12_PL2")
    a.lab("K12_PL1")
    a("s_cmp_eq_u32 s27, 0")
    a("s_cbranch_scc1 K12_PL2")
    x_loads(40)
    a.lab("K12_PL2")
    if KP and OPT.get('touch', 1) and not OPT.get('tlate'):
        touch_block(1, OPT.get('tfirst', 1) if OPT.get('tstage') else 8)
    if OPT.get('stamp'):
        a("s_memrealtime s[84:85]")
    if KP:
        table_params(a, 64, 44, 128, 129, 130)
        a("v_lshlrev_b32 v131, 3, v65")
        for ks in range(1 if OPT.get('tsplit') else 2):
            if ks: a("v_add_u32 v131, 32, v131")
            a("v_lshlrev_b32 v132, 5, v129")
            a("v_mad_u32_u24 v133, v128, v131, v132")
            trig(a, 128, 133, 136, 144, 148, 152)
            a("s_lshl_b32 s37, s44, 12")
            a(f"s_add_u32 s37, s37, {TABX + ks*2048}")
            a(f"v_add_u32 v132, s37, v{vLA}")
            a("ds_write_b128 v132, v[144:147]")
            a("ds_write_b128 v132, v[148:151] offset:1024")
    else:
        table_params(a, 64, 44, 128, 129, 130)
        a("v_lshlrev_b32 v131, 3, v65")
        a("s_lshr_b32 s36, s3, 2")
        a("s_lshl_b32 s37, s36, 5")
        a("v_add_u32 v131, s37, v131")
        a("v_lshlrev_b32 v132, 5, v129")
        a("v_mad_u32_u24 v133, v128, v131, v132")
        trig(a, 128, 133, 136, 144, 148, 152)
        a("s_lshl_b32 s37, s44, 12")
        a("s_lshl_b32 s36, s36, 11")
        a("s_add_u32 s37, s37, s36")
        a(f"v_add_u32 v132, s37, v{vLA}")
        a(f"ds_write_b128 v132, v[144:147] offset:{TABX}")
        a(f"ds_write_b128 v132, v[148:151] offset:{TABX + 1024}")
        a("s_cmp_ge_u32 s3, 4")
        a("s_cbranch_scc1 K12_TB")
        a("v_and_b32 v131, 1, v65")
        a("v_lshlrev_b32 v131, 3, v131")
        a("v_mul_u32_u24 v132, 96, v129")
        a("v_mad_u32_u24 v133, v128, v131, v132")
        trig(a, 128, 133, 136, 144, 148, 152)
        a("v_cmp_lt_u32 vcc, 1, v65")
        a("s_lshl_b32 s37, s44, 10")
        a(f"v_add_u32 v132, s37, v{vLA}")
        for q in range(4):
            a(f"v_cndmask_b32 v{144+q}, v{144+q}, v{148+q}, vcc")
        a(f"ds_write_b128 v132, v[144:147] offset:{TABW}")
        a("v_mov_b32 v136, 0"); a("v_mov_b32 v137, 0"); a("v_mov_b32 v138, 0"); a("v_mov_b32 v139, 0")
        a(f"s_mul_i32 s36, s44, {SB2}")
        a(f"s_add_u32 s36, s36, {167*128}")
        a(f"v_add_u32 v132, s36, v{vLA}")
        a("ds_write_b128 v132, v[136:139]")
        a("s_mov_b64 exec, 0xff")
        a("ds_write_b128 v132, v[136:139] offset:1024")
        a("s_mov_b64 exec, -1")
        a("s_lshl_b32 s36, s44, 2")
        a(f"s_add_u32 s36, s36, {SYNC}")
        a("v_mov_b32 v132, s36")
        a("ds_write_b32 v132, v136")
        a("s_lshl_b32 s36, s44, 3")
        a(f"s_add_u32 s36, s36, {PCNT}")
        a("v_mov_b32 v132, s36")
        a("ds_write_b64 v132, v[136:137]")
        a("s_lshl_b32 s36, s44, 3")
        a(f"s_add_u32 s36, s36, {MIRROR}")
        a("v_mov_b32 v132, s36")
        a("ds_write_b64 v132, v[136:137]")
        a(f"v_mov_b32 v132, {ISSUED}")
        a("ds_write_b32 v132, v136")
        a(f"v_mov_b32 v132, {ONES}")
        a("v_mov_b32 v133, 1")
        a("ds_write_b32 v132, v133")
    a.lab("K12_TB")
    a("s_waitcnt lgkmcnt(0)")
    a("s_barrier")
    if OPT.get('stamp'):
        a("s_memrealtime s[86:87]")
    a(f"v_add_u32 v{vT}, {TABX}, v{vLA}")
    for fr in range(8):
        a(f"ds_read_b128 v[{FH+4*fr}:{FH+4*fr+3}], v{vT} offset:{(fr>>1)*4096 + (fr&1)*2048}")
        a(f"ds_read_b128 v[{FL+4*fr}:{FL+4*fr+3}], v{vT} offset:{(fr>>1)*4096 + (fr&1)*2048 + 1024}")
        if fr == 3: a("s_waitcnt lgkmcnt(0)")
    for rb in range(4):
        a(f"ds_read_b128 v[{FW+4*rb}:{FW+4*rb+3}], v{vT} offset:{16384 + rb*1024}")
    if KP:
        a("s_waitcnt lgkmcnt(0)")
        a("s_barrier")
    a("s_waitcnt vmcnt(0) lgkmcnt(0)")
    if OPT.get('stamp'):
        a("s_memrealtime s[88:89]")
    a("s_mov_b32 s41, -1")
    a("s_mov_b32 s34, -1")
    if not KP:
        a("s_cmp_lt_u32 s3, 4")
        a("s_cbranch_scc0 K12_PROD")
        a("s_cmp_eq_u32 s43, 0")
        a("s_cbranch_scc0 K12_H1")
        interleave_perm(a, WR, OPS, 28, 29, OPT.get('pnocomp'))
        w_compute(40)
        a("s_branch K12_H2")
        a.lab("K12_H1")
        a("s_cmp_eq_u32 s27, 0")
        a("s_cbranch_scc1 K12_H2")
        interleave_perm(a, XR, OPS, 28, 29, OPT.get('pnocomp'))
        interleave_perm(a, XR + 32, XR, 28, 29, OPT.get('pnocomp'))
        x_compute(40)
        a.lab("K12_H2")
        a("s_mov_b64 exec, 1")
        a(f"v_mov_b32 v{vT}, {ISSUED}")
        a(f"v_mov_b32 v{OPS}, 1")
        a(f"ds_add_u32 v{vT}, v{OPS}")
        a("s_mov_b64 exec, -1")
        if OPT.get('stamp'):
            a("s_memrealtime s[90:91]")
        a("s_waitcnt vmcnt(0)")
        if OPT.get('stamp'):
            a("s_memrealtime s[92:93]")
            a("s_waitcnt lgkmcnt(0)")
            srd(a, 68, 58, O['ST'] + (7 << 20), 1 << 20)
            for k in range(10):
                a(f"v_mov_b32 v{128+k}, s{84+k}")
            a("v_mov_b32 v138, s82"); a("v_mov_b32 v139, s83"); a("v_mov_b32 v140, 0")
            a("s_lshl_b32 s72, s2, 2"); a("s_add_u32 s72, s72, s3"); a("s_lshl_b32 s72, s72, 6")
            a("s_mov_b64 exec, 1")
            for k in range(3):
                a(f"buffer_store_dwordx4 v[{128+4*k}:{131+4*k}], v140, s[68:71], s72 offen offset:{16*k}")
            a("s_mov_b64 exec, -1")
        a("s_mov_b32 s41, 0")
        signal(41)
        a("s_waitcnt vmcnt(0)")
        publish()
        if OPT.get('stamp'):
            a("s_memrealtime s[80:81]")
        a("s_branch K12_CONS")
    a.lab("K12_PROD")
    if KP and OPT.get('touch', 1) and OPT.get('tlate') and OPT.get('tlate') != 99:
        a(f"s_mov_b32 s37, {SPIN * 8}")
        a.lab("K12_TW")
        a(f"v_mov_b32 v{TMP}, {SYNC}")
        a(f"ds_read_b32 v{TMP}, v{TMP}")
        a("s_waitcnt lgkmcnt(0)")
        a(f"v_cmp_gt_u32 vcc, {OPT.get('tlate')}, v{TMP}")
        a("s_sub_u32 s37, s37, 1")
        a("s_cmp_eq_u32 s37, 0")
        a("s_cbranch_scc1 K12_TX")
        a("s_cbranch_vccz K12_TX")
        a("s_sleep 2")
        a("s_branch K12_TW")
        a.lab("K12_TX")
        touch_block(1, OPT.get('tfirst', 1) if OPT.get('tstage') else 8)
    if OPT.get('noprod') == 1:
        a("s_endpgm")
    if OPT.get('noprod') == 2:
        a("s_mov_b32 s37, 4000")
        a.lab("K12_IDLE")
        a("s_sleep 64")
        a(f"v_mov_b32 v{TMP}, {SYNC}")
        a(f"ds_read_b32 v{TMP}, v{TMP}")
        a("s_waitcnt lgkmcnt(0)")
        a(f"v_cmp_gt_u32 vcc, 34, v{TMP}")
        a("s_sub_u32 s37, s37, 1")
        a("s_cmp_eq_u32 s37, 0")
        a("s_cbranch_scc1 K12_IDLE_X")
        a("s_cbranch_vccnz K12_IDLE")
        a.lab("K12_IDLE_X")
        a("s_endpgm")
    if OPT.get('pprio', 1) and not OPT.get('dynprio'):
        a(f"s_setprio {OPT.get('pprio', 1)}")
    a("s_cmp_eq_u32 s43, 0")
    a("s_cbranch_scc1 K12_WENTRY")
    a.lab("K12_XW")
    x_phase("K12_XP")
    a("s_cmp_ge_u32 s40, 8")
    a("s_cbranch_scc1 K12_PFIN")
    a.lab("K12_WENTRY")
    w_phase("K12_WP")
    a("s_cmp_lt_u32 s40, 8")
    a("s_cbranch_scc1 K12_XW")
    a.lab("K12_PFIN")
    a("s_waitcnt vmcnt(0)")
    signal(41)
    a("s_waitcnt vmcnt(0)")
    publish()
    a("s_endpgm")


def k1mix(a, O, OPT):
    WSTR = O['WSTR']; KP = OPT['kpre']; lo = OPT.get('xlo', 1)
    NWG = 256 * KP
    TX, TW = 0, (16384 if lo else 8192)
    a.raw(".p2align 8")
    a.raw(".type k1_xform_kernel,@function")
    a.lab("k1_xform_kernel")
    a(f"s_cmp_ge_u32 s2, {NWG}")
    a("s_cbranch_scc1 K1_END")
    stamp_begin(a)
    a("s_load_dwordx4 s[4:7], s[0:1], 0")
    a("s_load_dwordx2 s[8:9], s[0:1], 48")
    a("v_lshrrev_b32 v120, 6, v0")
    a("v_and_b32 v121, 63, v0")
    a("v_readfirstlane_b32 s3, v120")
    a("v_and_b32 v122, 15, v121")
    a("v_lshrrev_b32 v123, 4, v121")
    a("v_lshlrev_b32 v121, 4, v121")
    a("s_mov_b32 s28, 0x05040100")
    a("s_mov_b32 s29, 0x07060302")
    if OPT.get('kaorder', 0) == 0:
        a("s_lshr_b32 s40, s2, 8")
        a("s_and_b32 s41, s2, 255")
    else:
        a(f"s_mul_hi_u32 s41, s2, {(2**32 + KP - 1) // KP}")
        a(f"s_mul_i32 s40, s41, {KP}")
        a("s_sub_u32 s40, s2, s40")
    a("s_and_b32 s20, s3, 1")
    a("s_lshr_b32 s21, s3, 1")
    a("s_xor_b32 s43, s40, s20")
    a("s_and_b32 s43, s43, 1")
    a("s_waitcnt lgkmcnt(0)")
    a("s_or_b32 s10, s2, s3")
    a("s_cmp_eq_u32 s10, 0")
    a("s_cbranch_scc0 K1_NOCLR")
    srd(a, 12, 8, O['SY'], 32768)
    a("v_lshrrev_b32 v118, 4, v121")
    a("v_lshlrev_b32 v119, 10, v118")
    a("v_mov_b32 v117, 0")
    a("s_mov_b64 exec, 0xffff")
    a("buffer_store_dword v117, v119, s[12:15], 0 offen")
    a("v_lshlrev_b32 v119, 4, v118")
    a("v_add_u32 v119, 16384, v119")
    a("buffer_store_dword v117, v119, s[12:15], 0 offen")
    a("s_mov_b64 exec, -1")
    a.lab("K1_NOCLR")
    if OPT.get('k34'):
        a("s_cmp_lt_u32 s2, 32")
        a("s_cbranch_scc0 K1_NOFILL")
        srd(a, 12, 8, O['PART'], 256 * 512)
        a("s_lshl_b32 s10, s2, 2")
        a("s_add_u32 s10, s10, s3")
        a("s_lshl_b32 s10, s10, 10")
        for k in range(4): a(f"v_mov_b32 v{112+k}, -1")
        a("buffer_store_dwordx4 v[112:115], v121, s[12:15], s10 offen")
        a.lab("K1_NOFILL")
    a("s_cmp_eq_u32 s43, 0")
    a("s_cbranch_scc1 K1_WL")
    a("s_and_b32 s24, s41, 7")
    a("s_lshl_b32 s24, s24, 5")
    a("s_lshr_b32 s25, s41, 3")
    a("s_add_u32 s24, s24, s25")
    a("s_mul_i32 s36, s40, 85")
    a("s_add_u32 s36, s36, s41")
    a("s_and_b32 s36, s36, 255")
    a("s_mul_hi_u32 s37, s36, 0x55555556")
    a("s_mul_i32 s38, s37, 3")
    a("s_cmp_eq_u32 s38, s36")
    a("s_cselect_b32 s27, 1, 0")
    a("s_cmp_lt_u32 s37, 78")
    a("s_cselect_b32 s27, s27, 0")
    a("s_add_u32 s37, s37, 256")
    a("s_cmp_eq_u32 s21, 0")
    a("s_cselect_b32 s24, s24, s37")
    a("s_cselect_b32 s27, 1, s27")
    a(f"s_cmp_ge_u32 s24, {NT}")
    a("s_cselect_b32 s13, 1, 0")
    a(f"s_mul_i32 s26, s13, {NT}")
    a("s_sub_u32 s11, s24, s26")
    a("s_mul_i32 s14, s13, 16384000")
    srd(a, 16, 4, "s14", 16384000)
    srd(a, 20, 8, O['XT'] if O['XT'] else None, XT_SIZE)
    a("v_lshlrev_b32 v126, 14, v123")
    a("v_lshl_add_u32 v126, v122, 4, v126")
    a(f"s_mul_i32 s15, s11, {48*2048}")
    a("s_lshl_b32 s24, s40, 8")
    a("s_add_u32 s15, s15, s24")
    a("s_cmp_eq_u32 s27, 0")
    a("s_cbranch_scc1 K1_TAB")
    for ks in range(2):
        for e2 in range(4):
            r = 32 * ks + 8 * e2
            a(f"buffer_load_dwordx4 v[{r}:{r+3}], v126, s[16:19], s15 offen")
            a(f"buffer_load_dwordx4 v[{r+4}:{r+7}], v126, s[16:19], s15 offen offset:2048")
            if not (ks == 1 and e2 == 3):
                a(f"s_add_u32 s15, s15, {4096 if e2 < 3 else 32*2048 - 3*4096}")
    a("s_branch K1_TAB")
    a.lab("K1_WL")
    a("s_lshl_b32 s22, s41, 1")
    a("s_add_u32 s22, s22, s21")
    a("s_and_b32 s44, s22, 3")
    a("s_lshr_b32 s22, s22, 2")
    a("s_lshl_b32 s11, s40, 7")
    a("s_add_u32 s11, s11, s22")
    srd(a, 16, 6, None, 31 * 524288)
    srd(a, 20, 8, O['WT'], 128 * WSTR)
    a("s_lshr_b32 s12, s11, 9")
    a("s_and_b32 s13, s11, 511")
    a("s_lshl_b32 s14, s12, 19")
    a("s_lshl_b32 s15, s13, 10")
    a("s_add_u32 s14, s14, s15")
    a("s_lshl_b32 s15, s44, 8")
    a("s_add_u32 s15, s14, s15")
    a("v_and_b32 v126, 1, v123")
    a("v_lshlrev_b32 v126, 23, v126")
    a("v_lshl_add_u32 v126, v122, 4, v126")
    for e in range(8):
        a(f"buffer_load_dwordx4 v[{4*e}:{4*e+3}], v126, s[16:19], s15 offen")
        if e < 7: a("s_add_u32 s15, s15, 0x100000")
    a.lab("K1_TAB")
    table_params(a, 122, 3, 124, 125, 112, st=10)
    a("v_lshlrev_b32 v127, 3, v123")
    for ks in range(2):
        if ks: a("v_add_u32 v127, 32, v127")
        a("v_lshlrev_b32 v112, 5, v125")
        a("v_mad_u32_u24 v113, v124, v127, v112")
        trig(a, 124, 113, 64, 72, 76, 80)
        a(f"s_lshl_b32 s10, s3, {12 if lo else 11}")
        a("v_add_u32 v114, s10, v121")
        if lo:
            a(f"ds_write_b128 v114, v[72:75] offset:{TX + ks*2048}")
            a(f"ds_write_b128 v114, v[76:79] offset:{TX + ks*2048 + 1024}")
        else:
            a(f"ds_write_b128 v114, v[72:75] offset:{TX + ks*1024}")
    a("v_and_b32 v127, 1, v123")
    a("v_lshlrev_b32 v127, 3, v127")
    a("v_mul_u32_u24 v112, 96, v125")
    a("v_mad_u32_u24 v113, v124, v127, v112")
    trig(a, 124, 113, 64, 72, 76, 80)
    a("v_cmp_lt_u32 vcc, 1, v123")
    a("s_lshl_b32 s10, s3, 10")
    a("v_add_u32 v114, s10, v121")
    for q in range(4):
        a(f"v_cndmask_b32 v{72+q}, v{72+q}, v{76+q}, vcc")
    a(f"ds_write_b128 v114, v[72:75] offset:{TW}")
    a("s_waitcnt lgkmcnt(0)")
    a("s_barrier")
    a("s_cmp_eq_u32 s43, 0")
    a("s_cbranch_scc1 K1_WC")
    a("s_cmp_eq_u32 s27, 0")
    a("s_cbranch_scc1 K1_END")
    a("v_lshrrev_b32 v112, 1, v123")
    a(f"s_mov_b32 s24, {2*XFB}")
    a("v_mul_lo_u32 v112, v112, s24")
    a("v_lshrrev_b32 v113, 2, v122")
    a(f"s_mov_b32 s24, {XBLK}")
    a("v_mul_lo_u32 v113, v113, s24")
    a("v_add_u32 v112, v112, v113")
    a("v_and_b32 v113, 3, v122")
    a("v_and_b32 v114, 1, v123")
    a("v_lshl_add_u32 v113, v114, 2, v113")
    if OPT.get('b21'):
        a("s_add_u32 s24, s11, 7")
        a("s_cmp_ge_u32 s11, 160")
        a("s_cselect_b32 s24, s24, s11")
        a("s_cmp_eq_u32 s13, 1")
        a("s_cselect_b32 s24, s24, s11")
        a("s_lshr_b32 s24, s24, 1")
    else:
        a("s_lshr_b32 s24, s11, 1")
    a("s_and_b32 s24, s24, 7")
    a("v_xor_b32 v113, s24, v113")
    a("v_lshl_add_u32 v120, v113, 4, v112")
    a(f"s_mul_i32 s25, s13, {XFB}")
    a(f"s_mul_i32 s24, s40, {4*XBLK}")
    a("s_add_u32 s25, s25, s24")
    a("s_lshl_b32 s24, s11, 7")
    a("s_add_u32 s25, s25, s24")
    if OPT.get('mixlin'):
        a("v_mov_b32 v120, v121"); a("s_lshl_b32 s25, s2, 2"); a("s_add_u32 s25, s25, s3"); a("s_lshl_b32 s25, s25, 14"); a("s_and_b32 s25, s25, 0x1ffffff")
    a("s_waitcnt vmcnt(8)")
    interleave_perm(a, 0, 64, 28, 29)
    a("s_waitcnt vmcnt(0)")
    stamp_mid(a)
    interleave_perm(a, 32, 0, 28, 29)
    for rb in range(4):
        nfr = 4 if lo else 2
        for fr in range(nfr):
            off = TX + (rb*4096 + fr*1024 if lo else rb*2048 + fr*1024)
            a(f"ds_read_b128 v[{96+4*fr}:{99+4*fr}], v121 offset:{off}")
        for term in range(nfr):
            a(f"s_waitcnt lgkmcnt({nfr-1-term})")
            ops = (64 if term < 2 else 0) if lo else (64 if term == 0 else 0)
            for i in range(8):
                c = "0" if term == 0 else f"v[{32+4*i}:{35+4*i}]"
                a(f"v_mfma_f32_16x16x32_bf16 v[{32+4*i}:{35+4*i}], v[{96+4*term}:{99+4*term}], v[{ops+4*i}:{ops+4*i+3}], {c}")
        a("s_nop 7")
        for r in range(4):
            t = 112 + 4 * (r & 1)
            for q in range(4):
                a(f"v_cvt_pk_bf16_f32 v{t+q}, v{32+4*(2*q)+r}, v{32+4*(2*q+1)+r}")
            a(f"buffer_store_dwordx4 v[{t}:{t+3}], v120, s[20:23], s25 offen")
            if not (rb == 3 and r == 3):
                a(f"s_add_u32 s25, s25, {1024 if OPT.get('mixlin') else 2*2*XFB}")
    stamp_end(a, O, 0)
    a("s_endpgm")
    a.lab("K1_WC")
    a("v_lshrrev_b32 v112, 1, v123")
    a(f"s_mov_b32 s24, {4*WSTR}")
    a("v_mul_lo_u32 v112, v112, s24")
    a("v_and_b32 v113, 1, v123")
    a("v_lshl_add_u32 v112, v113, 8, v112")
    a("v_and_b32 v113, 1, v122")
    a("v_lshl_add_u32 v124, v113, 4, v112")
    a("v_lshrrev_b32 v125, 1, v122")
    a("s_and_b32 s30, s11, 3")
    a("s_lshr_b32 s24, s11, 1")
    a("s_and_b32 s24, s24, 4")
    a("s_or_b32 s30, s30, s24")
    a("v_xor_b32 v112, s30, v125")
    a("v_lshl_add_u32 v120, v112, 5, v124")
    a(f"s_mul_i32 s25, s44, {WSTR}")
    a("s_lshl_b32 s24, s11, 9")
    a("s_add_u32 s25, s25, s24")
    for rb in range(4):
        a(f"ds_read_b128 v[{96+4*rb}:{99+4*rb}], v121 offset:{TW + rb*1024}")
    a("s_waitcnt vmcnt(0) lgkmcnt(0)")
    stamp_mid(a)
    interleave_perm(a, 0, 32, 28, 29)
    a("s_nop 1")
    for rb in range(4):
        for i in range(8):
            a(f"v_mfma_f32_16x16x32_bf16 v[{64+4*i}:{67+4*i}], v[{96+4*rb}:{99+4*rb}], v[{32+4*i}:{35+4*i}], 0")
        a("s_nop 7")
        for r in range(4):
            t = 112 + 4 * (r & 1)
            for q in range(4):
                a(f"v_cvt_pk_bf16_f32 v{t+q}, v{64+4*(2*q)+r}, v{64+4*(2*q+1)+r}")
            a(f"buffer_store_dwordx4 v[{t}:{t+3}], v120, s[20:23], s25 offen")
            if not (rb == 3 and r == 3):
                a(f"s_add_u32 s25, s25, {2*4*WSTR}")
    stamp_end(a, O, 0)
    a.lab("K1_END")
    a("s_endpgm")
    return ("k1_xform_kernel", NWG, 256, TW + 4096, 128)
```

```python
import sys

NAME = "standalone__self_sup_conv_stem_wavlm__speech"

T2 = 8000
L = 7985
V = 48
NT = 167
XBLK = NT * 128
XFB = 32 * XBLK
XT_SIZE = 64 * XFB
YFB = NT * 2048
YT_SIZE = 64 * YFB

OPT = dict(fused=1, kpre=3, subg=1, gateg=11, k34=1, xlo=1, lgate=1, b21=1, tlate=0, parr1=36, pbar=1, dynprio=1, cpf1=2, xsplit=1, wpad=0, cpw=1, xfirst=1, ntx=0, ntw=0, ntxs=0, ntws=0, ntk2=0, ntys=2, ntyl=0, nto=2)
def NTF(k): return {0: '', 1: ' nt', 2: ' sc1', 3: ' sc0 sc1'}[OPT.get(k, 0)]

class A:
    def __init__(self):
        self.l = []
    def __call__(self, s):
        self.l.append("    " + s)
    def lab(self, s):
        self.l.append(s + ":")
    def raw(self, s):
        self.l.append(s)
    def c(self, s):
        self.l.append("    ; " + s)
    def text(self):
        return "\n".join(self.l) + "\n"

def vr(a, n=1):
    return f"v{a}" if n == 1 else f"v[{a}:{a+n-1}]"
def sr(a, n=1):
    return f"s{a}" if n == 1 else f"s[{a}:{a+n-1}]"

def srd(a, s, base, off, size):
    if off is None:
        a(f"s_mov_b32 s{s}, s{base}")
        a(f"s_mov_b32 s{s+1}, s{base+1}")
    else:
        a(f"s_add_u32 s{s}, s{base}, {off}")
        a(f"s_addc_u32 s{s+1}, s{base+1}, 0")
    a(f"s_and_b32 s{s+1}, s{s+1}, 0xffff")
    a(f"s_mov_b32 s{s+2}, {size}")
    a(f"s_mov_b32 s{s+3}, 0x00020000")

def trig(a, vA, vM0, T, hi, lo, tmp, scale=None):
    if OPT.get('k1nocomp'): return
    for e in range(8):
        a(f"v_mad_u32_u24 v{T+e}, v{vA}, {e}, v{vM0}")
    trig_core(a, T, hi, lo, tmp, scale)

def trig_core(a, T, hi, lo, tmp, scale=None):
    for e in range(8):
        a(f"v_and_b32 v{T+e}, 127, v{T+e}")
    for e in range(8):
        a(f"v_cvt_f32_u32 v{T+e}, v{T+e}")
    for e in range(8):
        a(f"v_mul_f32 v{T+e}, 0x3c000000, v{T+e}")
    for e in range(8):
        a(f"v_cos_f32 v{T+e}, v{T+e}")
    a("s_nop 0")
    if scale is not None:
        for e in range(8):
            a(f"v_mul_f32 v{T+e}, {scale}, v{T+e}")
    for q in range(4):
        a(f"v_cvt_pk_bf16_f32 v{hi+q}, v{T+2*q}, v{T+2*q+1}")
    for q in range(4):
        a(f"v_lshlrev_b32 v{tmp}, 16, v{hi+q}")
        a(f"v_and_b32 v{tmp+1}, 0xffff0000, v{hi+q}")
        a(f"v_sub_f32 v{T+2*q}, v{T+2*q}, v{tmp}")
        a(f"v_sub_f32 v{T+2*q+1}, v{T+2*q+1}, v{tmp+1}")
    for q in range(4):
        a(f"v_cvt_pk_bf16_f32 v{lo+q}, v{T+2*q}, v{T+2*q+1}")

def interleave_perm(a, raw, ops, sLo, sHi, skip=False):
    if OPT.get('k1nocomp') or skip: return
    for q in range(4):
        for m in range(4):
            r0 = raw + 4 * (2 * m) + q
            r1 = raw + 4 * (2 * m + 1) + q
            a(f"v_perm_b32 v{ops+4*(2*q)+m}, v{r1}, v{r0}, s{sLo}")
            a(f"v_perm_b32 v{ops+4*(2*q+1)+m}, v{r1}, v{r0}, s{sHi}")

def stamp_begin(a):
    if OPT.get('stamp'):
        a("s_memtime s[64:65]")
        a("s_memrealtime s[66:67]")
        a("s_load_dwordx2 s[76:77], s[0:1], 48")
        a("s_lshl_b32 s78, s2, 4")

def stamp_mid(a):
    if OPT.get('stamp'):
        a("s_memrealtime s[80:81]")

def stamp_end(a, O, kidx):
    if OPT.get('stamp'):
        a("s_waitcnt vmcnt(0) lgkmcnt(0)")
        a("s_memtime s[68:69]")
        a("s_memrealtime s[70:71]")
        a("s_waitcnt lgkmcnt(0)")
        srd(a, 72, 76, O['ST'] + (2 << 20) + kidx * (1 << 20), 1 << 20)
        a("s_mov_b32 s64, s80")
        a("s_mov_b32 s65, s81")
        for k in range(8):
            a(f"v_mov_b32 v{16+k}, s{64+k}")
        a("s_add_u32 s78, s78, s3")
        a("s_lshl_b32 s78, s78, 5")
        a("v_mov_b32 v30, 0")
        a("s_mov_b64 exec, 1")
        for k in range(2):
            a(f"buffer_store_dwordx4 v[{16+4*k}:{19+4*k}], v30, s[72:75], s78 offen offset:{16*k}")

def code_prefetch(a, entry, tag, vtid=0, tmp=8, nwaves=8, dest=63, rounds=None):
    if not OPT.get('cpf', 1): return
    a(f"s_getpc_b64 s[90:91]")
    a.lab(f"CPF_{tag}")
    a(f"s_sub_u32 s90, s90, CPF_{tag}-{entry}")
    a("s_subb_u32 s91, s91, 0")
    per = nwaves * 64 * 128
    a(f"v_lshlrev_b32 v{tmp}, 7, v{vtid}")
    a(f"v_mov_b32 v{tmp+3}, s91")
    rounds = rounds or OPT.get('cpfn', 1)
    for r in range(rounds):
        a(f"v_min_u32 v{tmp+1}, TEXT_END-{entry}-4, v{tmp}")
        a(f"v_add_co_u32 v{tmp+2}, vcc, s90, v{tmp+1}")
        a(f"v_addc_co_u32 v{tmp+3}, vcc, 0, v{tmp+3}, vcc")
        a(f"global_load_dword v{dest}, v[{tmp+2}:{tmp+3}], off")
        if r + 1 < rounds:
            a(f"v_mov_b32 v{tmp+3}, s91")
            a(f"v_add_u32 v{tmp}, {per}, v{tmp}")

def layout():
    O = {}
    O['WSTR'] = 524288 + OPT['wpad']
    O['XT'] = 0
    O['WT'] = 48 << 20
    O['YT'] = O['WT'] + ((128 * O['WSTR'] + (1 << 20) - 1) >> 20 << 20) + (1 << 20)
    O['ST'] = O['YT'] + (24 << 20)
    O['PART'] = O['ST'] + (9 << 20) + (1 << 19)
    O['SY'] = O['ST'] + (9 << 20)
    assert O['ST'] + (10 << 20) <= (256 << 20)
    return O

def k1(a, O):
    CPW = OPT['cpw']
    KP = OPT.get('kpre', 0) or 8
    NW = 128 * KP // CPW
    if OPT.get('wonly'): KP = 8
    if OPT.get('kx'): KP = OPT['kx']
    NX = 2 * KP * 42
    WSTR = O['WSTR']
    a.raw(".p2align 8")
    a.raw(".type k1_xform_kernel,@function")
    a.lab("k1_xform_kernel")
    a(f"s_cmp_ge_u32 s2, {NW+NX}")
    a("s_cbranch_scc1 K1_END")
    stamp_begin(a)
    a("s_load_dwordx4 s[4:7], s[0:1], 0")
    a("s_load_dwordx2 s[8:9], s[0:1], 48")
    if OPT.get('cpf1') == 1:
        code_prefetch(a, "k1_xform_kernel", "K1", 0, 8, 4)
    if OPT.get('cpf1') == 2:
        a("s_cmp_lt_u32 s2, 8")
        a("s_cbranch_scc0 K1_NOCPF")
        code_prefetch(a, "k1_xform_kernel", "K1", 0, 8, 4, rounds=2)
        a.lab("K1_NOCPF")
    a("v_lshrrev_b32 v120, 6, v0")
    a("v_and_b32 v121, 63, v0")
    a("v_readfirstlane_b32 s3, v120")
    a("v_and_b32 v122, 15, v121")
    a("v_lshrrev_b32 v123, 4, v121")
    a("s_mov_b32 s28, 0x05040100")
    a("s_mov_b32 s29, 0x07060302")
    a("v_and_b32 v124, 3, v122")
    a("v_lshlrev_b32 v124, 2, v124")
    a("v_lshrrev_b32 v125, 3, v122")
    a("v_lshl_add_u32 v124, v125, 1, v124")
    a("s_lshl_b32 s10, s3, 4")
    a("s_add_u32 s10, s10, 1")
    a("v_add_u32 v124, s10, v124")
    a("v_bfe_u32 v125, v122, 2, 1")
    a("v_lshlrev_b32 v121, 4, v121")
    a("s_waitcnt lgkmcnt(0)")
    if OPT.get('fused') and OPT.get('kpre'):
        a("s_or_b32 s10, s2, s3")
        a("s_cmp_eq_u32 s10, 0")
        a("s_cbranch_scc0 K1_NOCLR")
        srd(a, 12, 8, O['SY'], 32768)
        a("v_lshrrev_b32 v118, 4, v121")
        a("v_lshlrev_b32 v119, 10, v118")
        a("v_mov_b32 v117, 0")
        a("s_mov_b64 exec, 0xffff")
        a("buffer_store_dword v117, v119, s[12:15], 0 offen")
        a("v_lshlrev_b32 v119, 4, v118")
        a("v_add_u32 v119, 16384, v119")
        a("buffer_store_dword v117, v119, s[12:15], 0 offen")
        a("s_mov_b64 exec, -1")
        a.lab("K1_NOCLR")
    if OPT.get('k34'):
        a("s_cmp_lt_u32 s2, 32")
        a("s_cbranch_scc0 K1_NOFILL")
        srd(a, 12, 8, O['PART'], 256 * 512)
        a("s_lshl_b32 s10, s2, 2")
        a("s_add_u32 s10, s10, s3")
        a("s_lshl_b32 s10, s10, 10")
        for k in range(4): a(f"v_mov_b32 v{112+k}, -1")
        a("buffer_store_dwordx4 v[112:115], v121, s[12:15], s10 offen")
        a.lab("K1_NOFILL")
    if OPT.get('xfirst'):
        a(f"s_add_u32 s10, s2, {NW}")
        a(f"s_sub_u32 s11, s2, {NX}")
        a(f"s_cmp_lt_u32 s2, {NX}")
        a("s_cselect_b32 s2, s10, s11")
    a(f"s_cmp_lt_u32 s2, {NW}")
    if OPT.get('skipw'):
        a("s_cbranch_scc1 K1_END")
    else:
        a("s_cbranch_scc1 K1_W")
    if OPT.get('skipx'):
        a("s_endpgm")

    a.c("x-type workgroup: 4 consecutive tiles, one 128-channel group")
    a(f"s_sub_u32 s11, s2, {NW}")
    if KP & (KP - 1) == 0:
        a(f"s_and_b32 s12, s11, {KP - 1}")
        a(f"s_lshr_b32 s11, s11, {KP.bit_length() - 1}")
    else:
        a(f"s_mul_hi_u32 s13, s11, {(2**32 + KP - 1) // KP}")
        a(f"s_mul_i32 s12, s13, {KP}")
        a("s_sub_u32 s12, s11, s12")
        a("s_mov_b32 s11, s13")
    a("s_cmp_ge_u32 s11, 42")
    a("s_cselect_b32 s13, 1, 0")
    a("s_mul_i32 s14, s13, 42")
    a("s_sub_u32 s11, s11, s14")
    a("s_lshl_b32 s11, s11, 2")
    a("s_add_u32 s11, s11, s3")
    a("s_mul_i32 s14, s13, 16384000")
    srd(a, 16, 4, "s14", 16384000)
    srd(a, 20, 8, O['XT'] if O['XT'] else None, XT_SIZE)
    a("v_lshlrev_b32 v126, 14, v123")
    a("v_lshl_add_u32 v126, v122, 4, v126")
    a(f"s_mul_i32 s15, s11, {48*2048}")
    a("s_lshl_b32 s24, s12, 8")
    a("s_add_u32 s15, s15, s24")
    for ks in range(2):
        for e2 in range(4):
            e = 2 * e2
            r = 32 * ks + 4 * e
            if not OPT.get('k1nold'):
                a(f"buffer_load_dwordx4 v[{r}:{r+3}], v126, s[16:19], s15 offen{NTF('ntx')}")
                a(f"buffer_load_dwordx4 v[{r+4}:{r+7}], v126, s[16:19], s15 offen offset:2048{NTF('ntx')}")
            if not (ks == 1 and e2 == 3):
                a(f"s_add_u32 s15, s15, {4096 if e2 < 3 else 32*2048 - 3*4096}")
    def x_katouch():
        KP_ = OPT['kpre']; nl = (8 - KP_) * 2; tot = 48 * nl; per = (tot + KP_ - 1) // KP_
        a("v_lshrrev_b32 v112, 4, v121")
        a(f"s_mul_i32 s24, s12, {per}")
        a("v_add_u32 v112, s24, v112")
        a(f"s_mul_i32 s26, s11, {48*2048}")
        a(f"s_add_u32 s26, s26, {KP_*256}")
        a(f"s_mov_b32 s27, {(2**32 + nl - 1) // nl}")
        for k in range((per + 63) // 64):
            a("v_mul_hi_u32 v113, v112, s27")
            a(f"v_mul_u32_u24 v114, {nl}, v113")
            a("v_sub_u32 v114, v112, v114")
            a("v_lshlrev_b32 v113, 11, v113")
            a("v_lshl_add_u32 v113, v114, 7, v113")
            a(f"s_add_u32 s25, s24, {per}")
            a(f"s_min_u32 s25, s25, {tot}")
            a("v_cmp_gt_u32 vcc, s25, v112")
            a("s_nop 1")
            a("s_and_saveexec_b64 s[30:31], vcc")
            a(f"s_cbranch_execz K1_XT{k}")
            a("buffer_load_dword v119, v113, s[16:19], s26 offen")
            a.lab(f"K1_XT{k}")
            a("s_mov_b64 exec, s[30:31]")
            a("v_add_u32 v112, 64, v112")
    if OPT.get('katouch') == 1 and OPT.get('kpre'): x_katouch()
    a("v_lshlrev_b32 v127, 3, v123")
    for ks in range(2):
        if ks == 1:
            a("v_add_u32 v127, 32, v127")
        a("v_lshlrev_b32 v112, 5, v125")
        a("v_mad_u32_u24 v113, v124, v127, v112")
        trig(a, 124, 113, 64, 72, 76, 80)
        a(f"s_lshl_b32 s24, s3, 12")
        a(f"v_add_u32 v114, s24, v121")
        a(f"ds_write_b128 v114, v[72:75] offset:{ks*2048}")
        a(f"ds_write_b128 v114, v[76:79] offset:{ks*2048+1024}")
    a("v_lshrrev_b32 v112, 1, v123")
    a(f"s_mov_b32 s24, {2*XFB}")
    a("v_mul_lo_u32 v112, v112, s24")
    a("v_lshrrev_b32 v113, 2, v122")
    a(f"s_mov_b32 s24, {XBLK}")
    a("v_mul_lo_u32 v113, v113, s24")
    a("v_add_u32 v112, v112, v113")
    a("v_and_b32 v113, 3, v122")
    a("v_and_b32 v114, 1, v123")
    a("v_lshl_add_u32 v113, v114, 2, v113")
    if OPT.get('b21'):
        a("s_add_u32 s24, s11, 7")
        a("s_cmp_ge_u32 s11, 160")
        a("s_cselect_b32 s24, s24, s11")
        a("s_cmp_eq_u32 s13, 1")
        a("s_cselect_b32 s24, s24, s11")
        a("s_lshr_b32 s24, s24, 1")
    else:
        a("s_lshr_b32 s24, s11, 1")
    a("s_and_b32 s24, s24, 7")
    a("v_xor_b32 v113, s24, v113")
    a("v_lshl_add_u32 v120, v113, 4, v112")
    a(f"s_mul_i32 s25, s13, {XFB}")
    a(f"s_mul_i32 s24, s12, {4*XBLK}")
    a("s_add_u32 s25, s25, s24")
    a("s_lshl_b32 s24, s11, 7")
    a("s_add_u32 s25, s25, s24")
    if OPT.get('k1lin'):
        a("v_mov_b32 v120, v121")
        a(f"s_sub_u32 s25, s2, {NW}")
        a("s_lshl_b32 s25, s25, 2")
        a("s_add_u32 s25, s25, s3")
        a("s_lshl_b32 s25, s25, 14")
    a("s_waitcnt lgkmcnt(0)")
    a("s_barrier")
    a(f"s_cmp_ge_u32 s11, {NT}")
    a("s_cbranch_scc1 K1_END")
    a("s_waitcnt vmcnt(8)")
    interleave_perm(a, 0, 64, 28, 29)
    a("s_waitcnt vmcnt(0)")
    stamp_mid(a)
    interleave_perm(a, 32, 0, 28, 29)
    for rb in range(4):
        for fr in range(4):
            a(f"ds_read_b128 v[{96+4*fr}:{99+4*fr}], v121 offset:{rb*4096+fr*1024}")
        for term in range(4):
            a(f"s_waitcnt lgkmcnt({3-term})")
            ops = 64 if term < 2 else 0
            for i in range(8 if not OPT.get('k1nocomp') else 0):
                c = "0" if term == 0 else f"v[{32+4*i}:{35+4*i}]"
                a(f"v_mfma_f32_16x16x32_bf16 v[{32+4*i}:{35+4*i}], v[{96+4*term}:{99+4*term}], v[{ops+4*i}:{ops+4*i+3}], {c}")
        a("s_nop 7")
        for r in range(4):
            t = 112 + 4 * (r & 1)
            for q in range(4 if not OPT.get('k1nocomp') else 1):
                a(f"v_cvt_pk_bf16_f32 v{t+q}, v{32+4*(2*q)+r}, v{32+4*(2*q+1)+r}")
            if not OPT.get('k1nost'):
                a(f"buffer_store_dwordx4 v[{t}:{t+3}], v120, s[20:23], s25 offen{NTF('ntxs')}")
            if not (rb == 3 and r == 3):
                a(f"s_add_u32 s25, s25, {1024 if OPT.get('k1lin') else 2*2*XFB}")
    if OPT.get('katouch') == 2 and OPT.get('kpre'): x_katouch()
    stamp_end(a, O, 0)
    a("s_endpgm")

    a.lab("K1_W")
    a.c("w-type workgroup: CPW consecutive input channels c', wave = column quarter nq")
    srd(a, 16, 6, None, 31 * 524288)
    srd(a, 20, 8, O['WT'], 128 * WSTR)
    a(f"s_mul_i32 s11, s2, {CPW}")
    a("s_lshr_b32 s12, s11, 9")
    a("s_and_b32 s13, s11, 511")
    a("s_lshl_b32 s14, s12, 19")
    a("s_lshl_b32 s15, s13, 10")
    a("s_add_u32 s14, s14, s15")
    a("s_lshl_b32 s15, s3, 8")
    a("s_add_u32 s14, s14, s15")
    a("v_and_b32 v126, 1, v123")
    a("v_lshlrev_b32 v126, 23, v126")
    a("v_lshl_add_u32 v126, v122, 4, v126")
    def wloads():
        a("s_mov_b32 s15, s14")
        for e in range(8):
            if not OPT.get('k1nold'):
                a(f"buffer_load_dwordx4 v[{4*e}:{4*e+3}], v126, s[16:19], s15 offen{NTF('ntw')}")
            if e < 7:
                a("s_add_u32 s15, s15, 0x100000")
    wloads()
    def w_katouch():
        KP_ = OPT['kpre']
        a("v_lshrrev_b32 v112, 4, v121")
        a("v_lshrrev_b32 v113, 1, v112")
        a("v_lshlrev_b32 v113, 20, v113")
        a("v_and_b32 v114, 1, v112")
        a("v_lshl_add_u32 v113, v114, 7, v113")
        a(f"s_add_u32 s24, s11, {128*KP_}")
        a.lab("K1_WT")
        a("s_lshr_b32 s25, s24, 9")
        a("s_lshl_b32 s25, s25, 19")
        a("s_and_b32 s26, s24, 511")
        a("s_lshl_b32 s26, s26, 10")
        a("s_add_u32 s25, s25, s26")
        a("s_lshl_b32 s26, s3, 8")
        a("s_add_u32 s25, s25, s26")
        a("s_mov_b64 exec, 0xffffffff")
        a("buffer_load_dword v119, v113, s[16:19], s25 offen")
        a("s_mov_b64 exec, -1")
        a(f"s_add_u32 s24, s24, {128*KP_}")
        a("s_cmp_lt_u32 s24, 1024")
        a("s_cbranch_scc1 K1_WT")
    if OPT.get('katouch') == 1 and OPT.get('kpre'): w_katouch()
    a("v_and_b32 v127, 1, v123")
    a("v_lshlrev_b32 v127, 3, v127")
    a("v_mul_u32_u24 v112, 96, v125")
    a("v_mad_u32_u24 v113, v124, v127, v112")
    trig(a, 124, 113, 64, 72, 76, 80)
    a("v_cmp_lt_u32 vcc, 1, v123")
    a("s_lshl_b32 s24, s3, 10")
    a("v_add_u32 v114, s24, v121")
    for q in range(4):
        a(f"v_cndmask_b32 v{72+q}, v{72+q}, v{76+q}, vcc")
    a("ds_write_b128 v114, v[72:75]")
    a("v_lshrrev_b32 v112, 1, v123")
    a(f"s_mov_b32 s24, {4*WSTR}")
    a("v_mul_lo_u32 v112, v112, s24")
    a("v_and_b32 v113, 1, v123")
    a("v_lshl_add_u32 v112, v113, 8, v112")
    a("v_and_b32 v113, 1, v122")
    a("v_lshl_add_u32 v124, v113, 4, v112")
    a("v_lshrrev_b32 v125, 1, v122")
    a(f"s_mul_i32 s26, s3, {WSTR}")
    a("s_lshl_b32 s24, s11, 9")
    a("s_add_u32 s26, s26, s24")
    a("s_waitcnt lgkmcnt(0)")
    a("s_barrier")
    for rb in range(4):
        a(f"ds_read_b128 v[{96+4*rb}:{99+4*rb}], v121 offset:{rb*1024}")
    a("s_mov_b32 s27, 0")
    a("s_waitcnt vmcnt(0) lgkmcnt(0)")
    stamp_mid(a)
    a.lab("K1_W_LOOP")
    a("s_add_u32 s24, s11, s27")
    a("s_and_b32 s30, s24, 3")
    a("s_lshr_b32 s24, s24, 1")
    a("s_and_b32 s24, s24, 4")
    a("s_or_b32 s30, s30, s24")
    a("v_xor_b32 v112, s30, v125")
    a("v_lshl_add_u32 v120, v112, 5, v124")
    a("s_lshl_b32 s25, s27, 9")
    a("s_add_u32 s25, s25, s26")
    if OPT.get('k1lin'):
        a("v_mov_b32 v120, v121")
        a(f"s_add_u32 s25, s11, s27")
        a("s_lshl_b32 s25, s25, 2")
        a("s_add_u32 s25, s25, s3")
        a("s_lshl_b32 s25, s25, 14")
    interleave_perm(a, 0, 32, 28, 29)
    a("s_add_u32 s27, s27, 1")
    a("s_add_u32 s14, s14, 1024")
    a(f"s_cmp_ge_u32 s27, {CPW}")
    a("s_cbranch_scc1 K1_W_NOLOAD")
    wloads()
    a.lab("K1_W_NOLOAD")
    for rb in range(4):
        for i in range(8 if not OPT.get('k1nocomp') else 0):
            a(f"v_mfma_f32_16x16x32_bf16 v[{64+4*i}:{67+4*i}], v[{96+4*rb}:{99+4*rb}], v[{32+4*i}:{35+4*i}], 0")
        a("s_nop 7")
        for r in range(4):
            t = 112 + 4 * (r & 1)
            for q in range(4 if not OPT.get('k1nocomp') else 1):
                a(f"v_cvt_pk_bf16_f32 v{t+q}, v{64+4*(2*q)+r}, v{64+4*(2*q+1)+r}")
            if not OPT.get('k1nost'):
                a(f"buffer_store_dwordx4 v[{t}:{t+3}], v120, s[20:23], s25 offen{NTF('ntws')}")
            if not (rb == 3 and r == 3):
                a(f"s_add_u32 s25, s25, {1024 if OPT.get('k1lin') else 2*4*WSTR}")
    a("s_waitcnt vmcnt(16)")
    a(f"s_cmp_lt_u32 s27, {CPW}")
    a("s_cbranch_scc1 K1_W_LOOP")
    if OPT.get('katouch') == 2 and OPT.get('kpre'): w_katouch()
    stamp_end(a, O, 0)
    a.lab("K1_END")
    a("s_endpgm")
    return NW + NX

def descriptor(a, name, vgpr, sgpr=96):
    a.raw(".p2align 6")
    a.raw(f".amdhsa_kernel {name}")
    a.raw(f"  .amdhsa_next_free_vgpr {vgpr}")
    a.raw(f"  .amdhsa_next_free_sgpr {sgpr}")
    a.raw(f"  .amdhsa_accum_offset {min(256, (vgpr+3)//4*4)}")
    a.raw("  .amdhsa_group_segment_fixed_size 0")
    a.raw("  .amdhsa_kernarg_size 56")
    a.raw("  .amdhsa_user_sgpr_count 2")
    a.raw("  .amdhsa_user_sgpr_kernarg_segment_ptr 1")
    a.raw("  .amdhsa_system_sgpr_workgroup_id_x 1")
    a.raw(".end_amdhsa_kernel")

HEADER = """; Kernarg layout for this problem (56 bytes, ptrs only, base s[0:1]):
"""

def main():
    out = NAME + ".s"
    for arg in sys.argv[1:]:
        if "=" in arg:
            k, v = arg.split("=")
            OPT[k] = int(v)
        else:
            out = arg
    O = layout()
    import kernels2
    a = A()
    body = A()
    launches = []
    if OPT.get('fused'):
        import kernels4
        import gen as _g
        _g.OPT.update(OPT)
        if OPT.get('kpre') and OPT.get('kamix', 0):
            launches.append(kernels4.k1mix(body, O, OPT))
        elif OPT.get('kpre'):
            g1 = k1(body, O)
            launches.append(("k1_xform_kernel", g1, 256, OPT.get('k1lds', 16384), 128))
        launches.append(kernels4.k12(body, O, OPT))
        launches += kernels2.emit(body, O, OPT)
    else:
        g1 = k1(body, O)
        launches.append(("k1_xform_kernel", g1, 256, OPT.get('k1lds', 16384), 128))
        launches += kernels2.emit(body, O, OPT)
    only = OPT.get('only', 0)
    a.raw(HEADER.rstrip("\n"))
    for (n, g, b, lds, v) in launches:
        a.raw(f"; @launch kernel={n} grid=({g},1,1) block=({b},1,1) lds={lds}")
    a.raw('.amdgcn_target "amdgcn-amd-amdhsa--gfx950"')
    a.raw(".text")
    for (n, g, b, lds, v) in launches:
        a.raw(f".globl {n}")
    body.lab("TEXT_END")
    txt = a.text() + body.text()
    d = A()
    d.raw('.section .rodata,"a"')
    for (n, g, b, lds, v) in launches:
        descriptor(d, n, v)
    txt += d.text()
    open(out, "w").write(txt)
    print("wrote", out, len(txt), "bytes;", {k: hex(v) for k, v in O.items()})

if __name__ == "__main__":
    main()
```
